```python
import torch

def _softmax(x, axis=-1):
    return torch.softmax(x, dim=axis)

def _gelu(x):
    return torch.nn.functional.gelu(x, approximate='tanh')

def _silu(x):
    return torch.nn.functional.silu(x)

def _sigmoid(x):
    return torch.sigmoid(x)

def _layernorm(x, axis=-1, eps=1e-05):
    m = x.mean(dim=axis, keepdim=True)
    v = x.var(dim=axis, keepdim=True, unbiased=False)
    return (x - m) / torch.sqrt(v + eps)

def _scatter_add(tgt, idx, src, axis=0):
    return tgt.clone().index_add_(axis, idx, src)

def _segment_sum(src, seg, n):
    out = torch.zeros((n,) + src.shape[1:], dtype=src.dtype)
    return out.index_add_(0, seg, src)

def _pad(x, pw):
    flat = tuple((v for pair in reversed(pw) for v in pair))
    return torch.nn.functional.pad(x, flat)
kernel_name = 'adaLN_cond__grouped_kv_mqa__glu_gated_reglu__prompt'

def setup_inputs():

    _w = lambda a: (lambda t: t.to(torch.bfloat16) if t.is_floating_point() else t)(torch.as_tensor(a))

    def _A_setup():
        B, S, D, H = (1, 2048, 512, 32)
        Dh = D // H
        return {'x': _w((lambda *s: torch.randn(*s, dtype=torch.bfloat16) * 0.05)(B, S, D)), 'wq': _w((lambda *s: torch.randn(*s, dtype=torch.bfloat16) * 0.05)(D, H * Dh)), 'wk': _w((lambda *s: torch.randn(*s, dtype=torch.bfloat16) * 0.05)(D, Dh)), 'wv': _w((lambda *s: torch.randn(*s, dtype=torch.bfloat16) * 0.05)(D, Dh)), 'wo': _w((lambda *s: torch.randn(*s, dtype=torch.bfloat16) * 0.05)(H * Dh, D))}
    _A_in = _A_setup()

    def _B_setup():
        B, S, D, F = (1, 2048, 512, 1376)
        return {'x': _w((lambda *s: torch.randn(*s, dtype=torch.bfloat16) * 0.05)(B, S, D)), 'W_gate': _w((lambda *s: torch.randn(*s, dtype=torch.bfloat16) * 0.8)(D, F) * (2.0 / D) ** 0.5), 'W_up': _w((lambda *s: torch.randn(*s, dtype=torch.bfloat16) * 0.8)(D, F) * (2.0 / D) ** 0.5), 'W_down': _w((lambda *s: torch.randn(*s, dtype=torch.bfloat16) * 0.8)(F, D) * (1.0 / F) ** 0.5)}
    _B_in = _B_setup()
    return {'A_x': _A_in['x'], 'A_wq': _A_in['wq'], 'A_wk': _A_in['wk'], 'A_wv': _A_in['wv'], 'A_wo': _A_in['wo'], 'B_x': _B_in['x'], 'B_W_gate': _B_in['W_gate'], 'B_W_up': _B_in['W_up'], 'B_W_down': _B_in['W_down'], 'c': _w((lambda *s: torch.randn(*s, dtype=torch.bfloat16) * 0.2)(1, 512) * 8.0), 'w_mod': _w((lambda *s: torch.randn(*s, dtype=torch.bfloat16) * 0.2)(512, 6 * 512) * 512 ** (-0.5) * 8.0)}

def reference(A_x, A_wq, A_wk, A_wv, A_wo, B_x, B_W_gate, B_W_up, B_W_down, c, w_mod):

    def _A_ref(x, wq, wk, wv, wo):
        B, S, D = x.shape
        H = 32
        Dh = D // H
        q = (lambda x, *d: x.permute(*d))((x @ wq).reshape(B, S, H, Dh), 0, 2, 1, 3)
        k = x @ wk
        v = x @ wv
        scores = torch.einsum('bhqd,bkd->bhqk', q, k) * Dh ** (-0.5)
        p = _softmax(scores, axis=-1)
        o = torch.einsum('bhqk,bkd->bhqd', p, v)
        return (lambda x, *d: x.permute(*d))(o, 0, 2, 1, 3).reshape(B, S, H * Dh) @ wo

    def _B_ref(x, W_gate, W_up, W_down):
        gate = torch.einsum('bsd,df->bsf', x, W_gate)
        up = torch.einsum('bsd,df->bsf', x, W_up)
        gate = gate * (lambda x, dt: x.to(dt))(gate > 0, gate.dtype)
        h = gate * up
        return torch.einsum('bsf,fd->bsd', h, W_down)
    x = A_x
    mod = (_silu(c) @ w_mod).reshape(c.shape[0], 6, 1, -1)
    sa, ca, ga, sb, cb, gb = (mod[:, 0].clone(), mod[:, 1].clone(), mod[:, 2].clone(), mod[:, 3].clone(), mod[:, 4].clone(), mod[:, 5].clone())
    h = _layernorm(x, axis=-1) * (1 + ca) + sa
    x = x + ga * _A_ref(h, A_wq, A_wk, A_wv, A_wo)
    h = _layernorm(x, axis=-1) * (1 + cb) + sb
    x = x + gb * _B_ref(h, B_W_gate, B_W_up, B_W_down)
    return x
```

```python
import re

REG_RE = re.compile(r"^(-|\|)?(abs\()?([vas])(\d+|\[(\d+):(\d+)\])\)?\|?$")


def regs_of(tok):
    tok = tok.strip()
    if tok in ("vcc",):
        return {("s", 106), ("s", 107)}
    if tok == "vcc_lo":
        return {("s", 106)}
    if tok == "vcc_hi":
        return {("s", 107)}
    if tok == "exec":
        return {("s", 126), ("s", 127)}
    if tok == "m0":
        return {("s", 124)}
    m = REG_RE.match(tok)
    if not m:
        return set()
    k = m.group(3)
    if m.group(5) is not None:
        return {(k, i) for i in range(int(m.group(5)), int(m.group(6)) + 1)}
    return {(k, int(m.group(4)))}


TRANS = ("v_exp_f32", "v_log_f32", "v_rcp_f32", "v_rsq_f32", "v_sqrt_f32", "v_sin_f32", "v_cos_f32", "v_rcp_iflag_f32",
         "v_exp_f16", "v_rcp_f16")
VCC = {("s", 106), ("s", 107)}


class Ins:
    __slots__ = ("text", "op", "kind", "dst", "src", "srcA", "srcB", "srcC", "passes", "label", "target", "is_dpp",
                 "wide_store", "data", "ops", "lds_dma", "ws", "opsel")

    def __init__(self, text):
        self.text = text
        t = text.split(";")[0].strip()
        self.label = None
        self.target = None
        self.dst = set()
        self.src = set()
        self.srcA = self.srcB = self.srcC = set()
        self.passes = 0
        self.is_dpp = False
        self.wide_store = False
        self.data = set()
        self.lds_dma = False
        self.ws = 1
        self.opsel = False
        if t == "" or t.startswith("."):
            if t.endswith(":"):
                self.kind = "label"
                self.label = t[:-1]
            else:
                self.kind = "none"
            self.op = ""
            self.ws = 0
            return
        if t.endswith(":"):
            self.kind = "label"
            self.label = t[:-1]
            self.op = ""
            self.ws = 0
            return
        sp = t.split(None, 1)
        op = sp[0]
        self.op = op
        rest = sp[1] if len(sp) > 1 else ""
        ops = [o.strip() for o in rest.split(",")] if rest else []
        mods = ""
        clean = []
        for i, o in enumerate(ops):
            parts = o.split()
            if not parts:
                continue
            clean.append(parts[0])
            if len(parts) > 1:
                mods = " ".join(parts[1:]) + " " + ",".join(ops[i + 1:])
                break
        ops = clean
        self.ops = ops
        R = [regs_of(o) for o in ops]
        if op.startswith("v_mfma") or op.startswith("v_smfmac"):
            self.kind = "mfma"
            self.dst = R[0]
            self.srcA, self.srcB = R[1], R[2]
            if op.startswith("v_mfma"):
                self.srcC = R[3]
            else:
                self.srcC = R[0]
                self.srcB = R[2] | R[3]
            self.src = self.srcA | self.srcB | self.srcC
            self.passes = 8 if "32x32" in op else 4
        elif op.startswith("v_"):
            self.kind = "valu"
            self.is_dpp = "_dpp" in op or "row_" in mods or "quad_perm" in mods
            self.opsel = "dst_sel" in mods
            if op.startswith("v_nop"):
                pass
            elif op.startswith("v_permlane") and "swap" in op:
                self.dst = R[0] | R[1]
                self.src = R[0] | R[1]
            elif re.match(r"v_(add|sub|subrev|addc|subb)_co", op) or op.startswith("v_div_scale"):
                self.dst = R[0] | R[1]
                self.src = set().union(*R[2:])
            else:
                self.dst = R[0]
                self.src = set().union(*R[1:]) if len(R) > 1 else set()
                if op.startswith(("v_fmac", "v_dot2c", "v_pk_fmac", "v_writelane")) or self.is_dpp or self.opsel:
                    self.src |= R[0]
                if op.startswith("v_div_fmas"):
                    self.src |= VCC
        elif op.startswith(("buffer_", "global_")):
            self.kind = "vmem"
            if op in ("buffer_inv", "buffer_wbl2"):
                pass
            elif op.startswith("global_load_lds") or (op.startswith("buffer_load") and re.search(r"\blds\b", t)):
                self.lds_dma = True
                self.src = set().union(*R) | {("s", 124)}
            elif "load" in op:
                self.dst = R[0]
                self.src = set().union(*R[1:])
            elif "atomic" in op:
                if op.startswith("buffer_"):
                    self.src = set().union(*R)
                    if "sc0" in t:
                        self.dst = R[0]
                else:
                    if "sc0" in t:
                        self.dst = R[0]
                        self.src = set().union(*R[1:])
                    else:
                        self.src = set().union(*R)
            else:
                self.src = set().union(*R)
                self.data = R[0] if op.startswith("buffer_") else R[1]
                self.wide_store = op.endswith(("x3", "x4"))
        elif op.startswith("ds_"):
            self.kind = "ds"
            if op.startswith(("ds_read", "ds_bpermute", "ds_permute", "ds_swizzle")) or "_rtn" in op:
                self.dst = R[0]
                self.src = set().union(*R[1:])
            else:
                self.src = set().union(*R)
        elif op.startswith(("s_load", "s_buffer_load", "s_memtime", "s_memrealtime", "s_atomic")):
            self.kind = "smem"
            self.dst = R[0]
            self.src = set().union(*R[1:]) if len(R) > 1 else set()
        elif op == "s_waitcnt":
            self.kind = "wait"
        elif op == "s_nop":
            self.kind = "nop"
            self.ws = int(ops[0], 0) + 1
        elif op.startswith(("s_cbranch", "s_branch")):
            self.kind = "branch"
            self.target = ops[0]
            if "vcc" in op:
                self.src = set(VCC)
        elif op == "s_endpgm":
            self.kind = "end"
        elif op.startswith("s_"):
            self.kind = "salu"
            if op.startswith(("s_cmp", "s_bitcmp", "s_barrier", "s_sleep", "s_setprio", "s_setreg")):
                self.src = set().union(*R) if R else set()
            else:
                self.dst = R[0] if R else set()
                self.src = set().union(*R[1:]) if len(R) > 1 else set()
                if "saveexec" in op:
                    self.dst = self.dst | regs_of("exec")
                if op.startswith(("s_addk", "s_mulk")):
                    self.src |= R[0]
        else:
            raise ValueError("unknown instruction: " + text)


def vg(s):
    return {r for r in s if r[0] in "va"}


def sg(s):
    return {r for r in s if r[0] == "s"}


def need_ws(p, c):
    n = 0
    if p.kind == "valu":
        pv, ps = vg(p.dst), sg(p.dst)
        if c.kind == "mfma" and pv & c.src:
            n = max(n, 2)
        if c.kind == "valu":
            if pv & c.src:
                if p.op.replace("_e32", "").replace("_e64", "") in TRANS and not (
                        c.op.replace("_e32", "").replace("_e64", "") in TRANS):
                    n = max(n, 1)
                if c.op.startswith(("v_readlane", "v_readfirstlane")):
                    n = max(n, 1)
                if c.is_dpp or c.op.startswith("v_permlane"):
                    n = max(n, 2)
                if p.opsel:
                    n = max(n, 1)
            if ps & c.src:
                n = max(n, 4 if c.op.startswith(("v_readlane", "v_writelane", "v_div_fmas")) else 2)
        if c.kind == "vmem" and ps & c.src:
            n = max(n, 5)
        if c.kind in ("salu", "smem", "branch") and ps & c.src:
            n = max(n, 1)
    elif p.kind == "mfma":
        big = p.passes == 8
        if c.kind == "mfma":
            if p.dst & (c.srcA | c.srcB):
                n = max(n, 12 if big else 8)
            if p.dst & c.srcC and not (p.dst == c.srcC and p.passes == c.passes):
                n = max(n, 10 if big else 6)
            if p.dst & c.dst and not (p.dst == c.dst and p.passes == c.passes):
                n = max(n, 10 if big else 6)
        elif c.kind in ("valu", "vmem", "ds"):
            if p.dst & (c.src | c.dst):
                n = max(n, 12 if big else 8)
            if c.kind == "valu" and p.srcC & c.dst:
                n = max(n, 7 if big else 3)
    elif p.kind == "salu":
        if ("s", 124) in p.dst and (c.lds_dma or "addtid" in c.op):
            n = max(n, 1)
    elif p.kind == "vmem":
        if p.wide_store and p.data & c.dst:
            n = max(n, 2 if c.kind in ("valu", "mfma") else 1)
    return n


MAXWS = 12


class Asm:
    def __init__(self):
        self.ins = []

    def __call__(self, text):
        for line in text.split("\n"):
            line = line.strip()
            if line == "" or line.startswith(";"):
                continue
            self.ins.append(Ins(line))

    def _succ(self, ins):
        lab = {x.label: i for i, x in enumerate(ins) if x.kind == "label"}
        succ = []
        for i, x in enumerate(ins):
            s = []
            if x.kind == "end":
                pass
            elif x.kind == "branch":
                s.append(lab[x.target])
                if x.op != "s_branch":
                    s.append(i + 1)
            elif i + 1 < len(ins):
                s.append(i + 1)
            succ.append(s)
        return succ

    def insert_waits(self):
        ins = self.ins
        succ = self._succ(ins)
        need = {}
        for _ in range(20):
            changed = False
            seen = set()
            stack = [(0, (), ())]
            steps = 0
            while stack:
                i, vm, lg = stack.pop()
                while True:
                    x = ins[i]
                    if x.kind == "label":
                        key = (i, vm, lg)
                        if key in seen:
                            break
                        seen.add(key)
                    steps += 1
                    if steps > 3000000:
                        raise RuntimeError("wait insertion does not converge")
                    touched = x.src | x.dst
                    w = need.get(i)
                    nv = nl = None
                    if touched:
                        for k in range(len(vm) - 1, -1, -1):
                            if vm[k] & touched:
                                nv = len(vm) - 1 - k
                                break
                        for k in range(len(lg) - 1, -1, -1):
                            if lg[k][1] & touched:
                                nl = len(lg) - 1 - k
                                if any(e[0] for e in lg):
                                    nl = 0
                                break
                    if nv is not None:
                        nv = min(nv, 63)
                    if nl is not None:
                        nl = min(nl, 15)
                    if nv is not None or nl is not None:
                        if w is None:
                            w = need[i] = [None, None]
                        if nv is not None and (w[0] is None or nv < w[0]):
                            w[0] = nv
                            changed = True
                        if nl is not None and (w[1] is None or nl < w[1]):
                            w[1] = nl
                            changed = True
                    if w is not None:
                        if w[0] is not None and len(vm) > w[0]:
                            vm = vm[len(vm) - w[0]:]
                        if w[1] is not None and len(lg) > w[1]:
                            if w[1] == 0 or not any(e[0] for e in lg):
                                lg = lg[len(lg) - w[1]:]
                    if x.kind == "wait":
                        m = re.search(r"vmcnt\((\d+)\)", x.text)
                        if m and len(vm) > int(m.group(1)):
                            vm = vm[len(vm) - int(m.group(1)):]
                        m = re.search(r"lgkmcnt\((\d+)\)", x.text)
                        if m and len(lg) > int(m.group(1)):
                            n = int(m.group(1))
                            if n == 0 or not any(e[0] for e in lg):
                                lg = lg[len(lg) - n:]
                    elif x.kind == "vmem":
                        vm = vm + (frozenset(x.dst),)
                        while vm and not vm[0]:
                            vm = vm[1:]
                    elif x.kind == "ds":
                        lg = lg + ((False, frozenset(x.dst)),)
                        while lg and not lg[0][1]:
                            lg = lg[1:]
                    elif x.kind == "smem":
                        lg = lg + ((True, frozenset(x.dst)),)
                    s = succ[i]
                    if not s:
                        break
                    for t in s[1:]:
                        stack.append((t, vm, lg))
                    i = s[0]
            if not changed:
                break
        out = []
        for i, x in enumerate(ins):
            w = need.get(i)
            if w:
                parts = []
                if w[0] is not None:
                    parts.append(f"vmcnt({w[0]})")
                if w[1] is not None:
                    parts.append(f"lgkmcnt({w[1]})")
                out.append(Ins("s_waitcnt " + " ".join(parts)))
            out.append(x)
        self.ins = out

    def insert_nops(self, verbose=False):
        for _ in range(50):
            ins = self.ins
            succ = self._succ(ins)
            pred = [[] for _ in ins]
            for i, s in enumerate(succ):
                for t in s:
                    pred[t].append(i)
            add = {}
            for i, c in enumerate(ins):
                if c.ws == 0:
                    continue
                best = 0
                stack = [(p, 0) for p in pred[i]]
                seen = set()
                while stack:
                    j, d = stack.pop()
                    if (j, d) in seen:
                        continue
                    seen.add((j, d))
                    p = ins[j]
                    if p.ws:
                        n = need_ws(p, c)
                        if n - d > best:
                            best = n - d
                    d2 = d + p.ws + add.get(j, 0)
                    if d2 < MAXWS:
                        for q in pred[j]:
                            stack.append((q, d2))
                if best > 0:
                    add[i] = best
            if not add:
                return
            out = []
            for i, x in enumerate(ins):
                if i in add:
                    if verbose:
                        print("nop", add[i], "before", x.text)
                    out.append(Ins(f"s_nop {add[i] - 1}"))
                out.append(x)
            self.ins = out
        raise RuntimeError("nop insertion does not converge")

    def finish(self, verbose=False):
        self.insert_waits()
        self.insert_nops(verbose)
        return self.text()

    def text(self):
        return "\n".join((x.text if x.kind in ("label",) else "    " + x.text) for x in self.ins) + "\n"

    def max_regs(self):
        mv = ma = ms = -1
        for x in self.ins:
            for k, i in x.src | x.dst:
                if k == "v":
                    mv = max(mv, i)
                elif k == "a":
                    ma = max(ma, i)
                elif i < 106:
                    ms = max(ms, i)
        return mv + 1, ma + 1, ms + 1


def v(i, n=1):
    return f"v{i}" if n == 1 else f"v[{i}:{i + n - 1}]"


def a(i, n=1):
    return f"a{i}" if n == 1 else f"a[{i}:{i + n - 1}]"


def s(i, n=1):
    return f"s{i}" if n == 1 else f"s[{i}:{i + n - 1}]"


def r(i, n=1):
    if i < 256:
        assert i + n <= 256
        return v(i, n)
    return a(i - 256, n)


def kernel_text(name, asm, verbose=False, min_vgpr=0):
    body = asm.finish(verbose)
    nv, na, ns = asm.max_regs()
    acc = max(4, (nv + 3) // 4 * 4)
    nfv = acc + na if na else nv
    nfv = max(nfv, min_vgpr)
    text = f""".text
.globl {name}
.p2align 8
.type {name},@function
{name}:
{body}"""
    kd = f""".section .rodata,"a"
.p2align 6
.amdhsa_kernel {name}
  .amdhsa_next_free_vgpr {nfv}
  .amdhsa_next_free_sgpr {max(ns, 16)}
  .amdhsa_accum_offset {acc}
  .amdhsa_group_segment_fixed_size 0
  .amdhsa_kernarg_size 112
  .amdhsa_user_sgpr_count 2
  .amdhsa_user_sgpr_kernarg_segment_ptr 1
  .amdhsa_system_sgpr_workgroup_id_x 1
  .amdhsa_float_denorm_mode_32 3
.end_amdhsa_kernel
"""
    return text + kd
```

```python
import sys
from asmlib import Asm, v, a, s, r, kernel_text

NAME = "adaLN_cond__grouped_kv_mqa__glu_gated_reglu__prompt"
KA_X, KA_WQ, KA_WK, KA_WV, KA_WO, KA_BX, KA_WG, KA_WU, KA_WD, KA_C, KA_WMOD, KA_OUT, KA_DBG, KA_WS = [8 * i for i in range(14)]
WS_MOD = 0x000000
WS_WQ = 0x100000
WS_WKV = 0x180000
WS_WO = 0x200000
WS_WGU = 0x300000
WS_WD = 0x600000
WS_Q = 0x800000
WS_KV = 0xA00000
WS_O = 0xB00000
WS_X1 = 0xD00000
WS_H2 = 0x1000000
WS_SIZE = 0x2000000
QSCALE = 0.25 * 1.4426950408889634


def f2u(x):
    import struct
    return struct.unpack("<I", struct.pack("<f", x))[0]


def load_srd(A, d, ka, size):
    A(f"s_load_dwordx2 {s(d, 2)}, s[0:1], {ka}")
    A(f"s_mov_b32 {s(d + 2)}, {size}")
    A(f"s_mov_b32 {s(d + 3)}, 0x20000")


def wave_id(A, sd, vt):
    A(f"v_lshrrev_b32 {v(vt)}, 6, v0")
    A(f"v_readfirstlane_b32 {s(sd)}, {v(vt)}")


def group_ids(A, sg_, sj):
    A(f"s_lshr_b32 {s(sj)}, s2, 3")
    A(f"s_and_b32 {s(sj)}, {s(sj)}, 7")
    A(f"s_lshr_b32 {s(sg_)}, s2, 6")
    A(f"s_lshl_b32 {s(sg_)}, {s(sg_)}, 3")
    A(f"s_and_b32 s3, s2, 7")
    A(f"s_add_u32 {s(sg_)}, {s(sg_)}, s3")


N_MODWG = 96
JOBS = [("wq", 64), ("wo", 64), ("wd", 172), ("gu", 352), ("kv", 4)]
N_JOBS = sum(n for _, n in JOBS)
K0_GRID = N_MODWG + N_JOBS // 4


def k0(perm_gu):
    A = Asm()
    A(f"s_cmp_ge_u32 s2, {K0_GRID}")
    A("s_cbranch_scc1 K0_end")
    load_srd(A, 8, KA_WS, WS_SIZE)
    wave_id(A, 20, 1)
    A("v_and_b32 v1, 63, v0")
    A(f"s_cmp_ge_u32 s2, {N_MODWG}")
    A("s_cbranch_scc1 K0_relayout")
    load_srd(A, 12, KA_WMOD, 512 * 3072 * 2)
    load_srd(A, 16, KA_C, 1024)
    A("v_lshrrev_b32 v2, 2, v0")
    A("v_and_b32 v3, 3, v0")
    A("v_mul_u32_u24 v4, 6144, v2")
    A("v_lshl_add_u32 v4, v3, 4, v4")
    A("v_lshlrev_b32 v5, 1, v2")
    A("s_lshl_b32 s21, s2, 6")
    for i in range(8):
        A(f"buffer_load_ushort {v(8 + i)}, v5, s[16:19], 0 offen offset:{128 * i}")
    for i in range(8):
        A(f"buffer_load_dwordx4 {v(16 + 4 * i, 4)}, v4, s[12:15], s21 offen")
        if i < 7:
            A(f"s_add_u32 s21, s21, {64 * 6144}")
    for i in range(8):
        c = 8 + i
        A(f"v_lshlrev_b32 {v(c)}, 16, {v(c)}")
        A(f"v_mul_f32 v6, {hex(f2u(-1.4426950408889634))}, {v(c)}")
        A("v_exp_f32 v6, v6")
        A("v_add_f32 v6, 1.0, v6")
        A("v_rcp_f32 v6, v6")
        A(f"v_mul_f32 {v(c)}, {v(c)}, v6")
        A(f"v_cvt_pk_bf16_f32 {v(c)}, {v(c)}, {v(c)}")
        A(f"v_lshlrev_b32 {v(c)}, 16, {v(c)}")
    for e in range(8):
        A(f"v_mov_b32 {v(48 + e)}, 0")
    for i in range(8):
        for d in range(4):
            w = 16 + 4 * i + d
            A(f"v_lshlrev_b32 v6, 16, {v(w)}")
            A(f"v_and_b32 v7, 0xffff0000, {v(w)}")
            A(f"v_fmac_f32 {v(48 + 2 * d)}, v6, {v(8 + i)}")
            A(f"v_fmac_f32 {v(49 + 2 * d)}, v7, {v(8 + i)}")
    for rot in (4, 8):
        for e in range(8):
            A(f"v_add_f32_dpp {v(48 + e)}, {v(48 + e)}, {v(48 + e)} row_ror:{rot} row_mask:0xf bank_mask:0xf")
    A("v_lshrrev_b32 v6, 4, v0")
    A("v_lshlrev_b32 v6, 7, v6")
    A("v_lshl_add_u32 v6, v3, 5, v6")
    A("ds_write_b128 v6, v[48:51]")
    A("ds_write_b128 v6, v[52:55] offset:16")
    A("s_waitcnt lgkmcnt(0)")
    A("s_barrier")
    A("s_cmp_lg_u32 s20, 0")
    A("s_cbranch_scc1 K0_end")
    A("v_and_b32 v2, 31, v0")
    A("v_lshlrev_b32 v6, 2, v2")
    for i in range(16):
        A(f"ds_read_b32 {v(16 + i)}, v6 offset:{128 * i}")
    for i in range(1, 16):
        A(f"v_add_f32 v16, v16, {v(16 + i)}")
    A("v_cvt_pk_bf16_f32 v16, v16, v16")
    A("v_lshlrev_b32 v16, 16, v16")
    A("s_lshr_b32 s21, s2, 4")
    A("s_cmp_eq_u32 s21, 1")
    A("s_cselect_b32 s22, 1.0, 0")
    A("s_cmp_eq_u32 s21, 4")
    A("s_cselect_b32 s22, 1.0, s22")
    A("v_add_f32 v16, s22, v16")
    A("v_cvt_pk_bf16_f32 v16, v16, v16")
    A("v_lshlrev_b32 v16, 16, v16")
    A("s_lshl_b32 s21, s2, 7")
    A(f"buffer_store_dword v16, v6, s[8:11], s21 offen offset:{WS_MOD}")
    A("s_endpgm")
    A("K0_relayout:")
    A(f"s_sub_u32 s21, s2, {N_MODWG}")
    A("s_lshl_b32 s21, s21, 2")
    A("s_add_u32 s21, s21, s20")
    A("s_mul_i32 s22, s20, 9216")
    A("v_and_b32 v2, 3, v1")
    A("v_bfe_u32 v3, v1, 2, 2")
    A("v_bfe_u32 v4, v1, 4, 1")
    A("v_lshrrev_b32 v5, 5, v1")
    A("v_lshlrev_b32 v9, 4, v1")
    base = 0
    for kind, n in JOBS:
        A(f"s_cmp_lt_u32 s21, {base + n}")
        A(f"s_cbranch_scc1 K0_{kind}")
        base += n
    A("s_endpgm")

    def finish(RS, mh_stride, frag_lds, perm, dst_inc):
        hmul, jmul = (4, 8) if perm else (8, 4)
        A(f"v_mul_u32_u24 v6, {hmul}, v5")
        A("v_add_u32 v6, v6, v3")
        A(f"v_mul_u32_u24 v6, {RS}, v6")
        A(f"v_mul_u32_u24 v7, {mh_stride}, v4")
        A("v_lshl_add_u32 v7, v2, 3, v7")
        A("v_add3_u32 v6, v6, v7, s22")
        A("s_waitcnt lgkmcnt(0)")
        for f in range(8):
            A(f"ds_read_b64_tr_b16 {v(16 + 4 * f, 2)}, v6 offset:{f * frag_lds}")
            A(f"ds_read_b64_tr_b16 {v(18 + 4 * f, 2)}, v6 offset:{f * frag_lds + jmul * RS}")
        for f in range(8):
            A(f"buffer_store_dwordx4 {v(16 + 4 * f, 4)}, v9, s[8:11], s23 offen")
            if f < 7:
                A(f"s_add_u32 s23, s23, {dst_inc}")
        A("s_endpgm")

    base = 0
    for kind, n in JOBS:
        A(f"K0_{kind}:")
        A(f"s_sub_u32 s21, s21, {base}")
        base += n
        if kind in ("wq", "wo", "wd"):
            ka, rows, dst, nks, perm = {"wq": (KA_WQ, 512, WS_WQ, 32, False), "wo": (KA_WO, 512, WS_WO, 32, True),
                                        "wd": (KA_WD, 1376, WS_WD, 86, True)}[kind]
            load_srd(A, 12, ka, rows * 1024)
            A("s_lshr_b32 s24, s21, 1")
            A("s_and_b32 s25, s21, 1")
            A("s_lshl_b32 s26, s24, 14")
            A("s_lshl_b32 s27, s25, 9")
            A("s_add_u32 s26, s26, s27")
            A(f"s_mul_i32 s23, s25, {8 * nks * 1024}")
            A("s_lshl_b32 s27, s24, 10")
            A("s_add_u32 s23, s23, s27")
            A(f"s_add_u32 s23, s23, {dst}")
            A("v_and_b32 v7, 31, v1")
            A("v_lshlrev_b32 v7, 4, v7")
            A("v_lshl_add_u32 v8, v5, 10, v7")
            A("v_mul_u32_u24 v10, 576, v5")
            A("v_add3_u32 v10, v10, v7, s22")
            for q in range(8):
                A(f"buffer_load_dwordx4 {v(16 + 4 * q, 4)}, v8, s[12:15], s26 offen")
                if q < 7:
                    A("s_add_u32 s26, s26, 2048")
            for q in range(8):
                A(f"ds_write_b128 v10, {v(16 + 4 * q, 4)} offset:{q * 2 * 576}")
            finish(576, 32, 64, perm, nks * 1024)
        elif kind == "gu":
            load_srd(A, 12, KA_WG, 512 * 2752)
            load_srd(A, 16, KA_WU, 512 * 2752)
            A("s_and_b32 s24, s21, 31")
            A("s_lshr_b32 s25, s21, 5")
            A(f"s_mul_i32 s26, s24, {16 * 2752}")
            A("s_lshl_b32 s27, s25, 8")
            A("s_add_u32 s26, s26, s27")
            A("s_lshl_b32 s23, s25, 18")
            A("s_lshl_b32 s27, s24, 10")
            A("s_add_u32 s23, s23, s27")
            A(f"s_add_u32 s23, s23, {WS_WGU}")
            A("v_and_b32 v7, 15, v1")
            A("v_lshlrev_b32 v7, 4, v7")
            A("v_lshrrev_b32 v11, 4, v1")
            A("v_mul_u32_u24 v8, 2752, v11")
            A("v_add_u32 v8, v8, v7")
            A("v_mul_u32_u24 v10, 576, v11")
            A("v_add3_u32 v10, v10, v7, s22")
            for q in range(8):
                A(f"buffer_load_dwordx4 {v(16 + 4 * q, 4)}, v8, {s(12 + 4 * (q & 1), 4)}, s26 offen")
                if q & 1 and q < 7:
                    A(f"s_add_u32 s26, s26, {4 * 2752}")
            for q in range(8):
                A(f"ds_write_b128 v10, {v(16 + 4 * q, 4)} offset:{(q >> 1) * 4 * 576 + (q & 1) * 256}")
            finish(576, 256, 32, perm_gu, 32 * 1024)
        else:
            load_srd(A, 12, KA_WK, 512 * 32)
            load_srd(A, 16, KA_WV, 512 * 32)
            A("s_lshl_b32 s26, s21, 12")
            A("s_lshl_b32 s23, s21, 13")
            A(f"s_add_u32 s23, s23, {WS_WKV}")
            A("v_lshrrev_b32 v10, 1, v1")
            A("v_lshlrev_b32 v10, 6, v10")
            A("v_and_b32 v7, 1, v1")
            A("v_lshl_add_u32 v10, v7, 4, v10")
            A("v_add_u32 v10, s22, v10")
            for q in range(8):
                A(f"buffer_load_dwordx4 {v(16 + 4 * q, 4)}, v9, {s(12 + 4 * (q & 1), 4)}, s26 offen offset:{(q >> 1) * 1024}")
            for q in range(8):
                A(f"ds_write_b128 v10, {v(16 + 4 * q, 4)} offset:{(q >> 1) * 2048 + (q & 1) * 32}")
            finish(64, 32, 1024, False, 1024)
    A("K0_end:")
    A("s_endpgm")
    return A


HT = 32 * 1056


def wave_sum64(A, regs, tmp):
    for ctl in ("quad_perm:[1,0,3,2]", "quad_perm:[2,3,0,1]", "row_ror:4", "row_ror:8"):
        for x in regs:
            A(f"v_add_f32_dpp {v(x)}, {v(x)}, {v(x)} {ctl} row_mask:0xf bank_mask:0xf")
    for op in ("v_permlane16_swap_b32", "v_permlane32_swap_b32"):
        for i, x in enumerate(regs):
            A(f"v_mov_b32 {v(tmp + i)}, {v(x)}")
        for i, x in enumerate(regs):
            A(f"{op} {v(tmp + i)}, {v(x)}")
        for i, x in enumerate(regs):
            A(f"v_add_f32 {v(x)}, {v(x)}, {v(tmp + i)}")


def ln_to_lds(A, srd_x, soff, srd_ws, mod_shift, mod_scale, swave, X=64, T=128):
    A("v_lshlrev_b32 v2, 4, v1")
    A(f"s_lshl_b32 s30, {s(swave)}, 14")
    A(f"s_add_u32 s30, s30, {s(soff)}")
    for i in range(16):
        A(f"buffer_load_dwordx4 {v(X + 4 * i, 4)}, v2, {s(srd_x, 4)}, s30 offen offset:{(i & 3) * 1024}")
        if i & 3 == 3 and i < 15:
            A("s_add_u32 s30, s30, 4096")
    A("v_lshlrev_b32 v3, 5, v1")
    SH, SC = 8, 16
    A(f"s_mov_b32 s31, {WS_MOD + mod_shift * 2048}")
    A(f"buffer_load_dwordx4 {v(SH, 4)}, v3, {s(srd_ws, 4)}, s31 offen")
    A(f"buffer_load_dwordx4 {v(SH + 4, 4)}, v3, {s(srd_ws, 4)}, s31 offen offset:16")
    A(f"s_mov_b32 s31, {WS_MOD + mod_scale * 2048}")
    A(f"buffer_load_dwordx4 {v(SC, 4)}, v3, {s(srd_ws, 4)}, s31 offen")
    A(f"buffer_load_dwordx4 {v(SC + 4, 4)}, v3, {s(srd_ws, 4)}, s31 offen offset:16")
    A(f"s_lshr_b32 s31, {s(swave)}, 1")
    A(f"s_mul_i32 s31, s31, {HT}")
    A(f"s_and_b32 s33, {s(swave)}, 1")
    A("s_lshl_b32 s33, s33, 8")
    A("s_add_u32 s31, s31, s33")
    A("v_mul_u32_u24 v4, 528, v1")
    A("v_add_u32 v4, s31, v4")
    return SH, SC


def ln_compute(A, SH, SC, X=64, T=128):
    S1, S2 = 24, 40
    A("v_mov_b32 v5, 0x3f803f80")
    for i in range(16):
        A(f"v_mov_b32 {v(S1 + i)}, 0")
        A(f"v_mov_b32 {v(S2 + i)}, 0")
    for i in range(16):
        for d in range(4):
            A(f"v_dot2c_f32_bf16 {v(S1 + i)}, {v(X + 4 * i + d)}, v5")
            A(f"v_dot2c_f32_bf16 {v(S2 + i)}, {v(X + 4 * i + d)}, {v(X + 4 * i + d)}")
    A("s_nop 3")
    wave_sum64(A, list(range(S1, S1 + 32)), T)
    A(f"s_mov_b32 s33, {hex(f2u(1.0 / 512))}")
    for i in range(16):
        A(f"v_mul_f32 {v(S1 + i)}, s33, {v(S1 + i)}")
        A(f"v_mul_f32 {v(S2 + i)}, s33, {v(S2 + i)}")
        A(f"v_fma_f32 {v(S2 + i)}, -{v(S1 + i)}, {v(S1 + i)}, {v(S2 + i)}")
        A(f"v_max_f32 {v(S2 + i)}, 0, {v(S2 + i)}")
        A(f"v_add_f32 {v(S2 + i)}, {hex(f2u(1e-5))}, {v(S2 + i)}")
        A(f"v_rsq_f32 {v(S2 + i)}, {v(S2 + i)}")
    for i in range(16):
        for d in range(4):
            x = X + 4 * i + d
            t = T + 2 * d
            A(f"v_lshlrev_b32 {v(t)}, 16, {v(x)}")
            A(f"v_and_b32 {v(t + 1)}, 0xffff0000, {v(x)}")
            for e in range(2):
                A(f"v_sub_f32 {v(t + e)}, {v(t + e)}, {v(S1 + i)}")
                A(f"v_mul_f32 {v(t + e)}, {v(t + e)}, {v(S2 + i)}")
                A(f"v_fma_f32 {v(t + e)}, {v(t + e)}, {v(SC + 2 * d + e)}, {v(SH + 2 * d + e)}")
            A(f"v_cvt_pk_bf16_f32 {v(x)}, {v(t)}, {v(t + 1)}")
        A(f"ds_write_b128 v4, {v(X + 4 * i, 4)} offset:{16 * i}")
    A("s_waitcnt lgkmcnt(0)")
    A("s_barrier")


def frag_read_addr(A, vd, stt):
    A(f"v_lshrrev_b32 {v(vd)}, 5, v1")
    A(f"v_mul_u32_u24 {v(vd)}, 528, {v(vd)}")
    A("v_and_b32 v6, 31, v1")
    A(f"v_lshl_add_u32 {v(vd)}, v6, 4, {v(vd)}")
    if stt is not None:
        A(f"s_mul_i32 s33, {s(stt)}, {HT}")
        A(f"v_add_u32 {v(vd)}, s33, {v(vd)}")


MF = "v_mfma_f32_32x32x16_bf16"


def k1():
    A = Asm()
    A("s_cmp_ge_u32 s2, 256")
    A("s_cbranch_scc1 K1_end")
    load_srd(A, 8, KA_WS, WS_SIZE)
    load_srd(A, 12, KA_X, 2048 * 1024)
    wave_id(A, 20, 1)
    A("v_and_b32 v1, 63, v0")
    group_ids(A, 21, 22)
    A("s_lshl_b32 s23, s21, 16")
    SH, SC = ln_to_lds(A, 12, 23, 8, 0, 1, 20)
    A("s_lshr_b32 s24, s20, 1")
    A("s_and_b32 s25, s20, 1")
    A("s_lshl_b32 s26, s22, 1")
    A("s_add_u32 s26, s26, s24")
    A("s_lshl_b32 s26, s26, 15")
    A(f"s_add_u32 s26, s26, {WS_WQ}")
    for ks in range(32):
        A(f"buffer_load_dwordx4 {a(4 * ks, 4)}, v2, s[8:11], s26 offen offset:{(ks & 3) * 1024}")
        if ks & 3 == 3 and ks < 31:
            A("s_add_u32 s26, s26, 4096")
    ln_compute(A, SH, SC)
    frag_read_addr(A, 7, 25)
    B = 64
    for ks in range(32):
        A(f"ds_read_b128 {v(B + 4 * ks, 4)}, v7 offset:{ks * 1056}")
    A("s_cmp_lg_u32 s22, 0")
    A("s_cbranch_scc1 K1_q")
    A(f"s_mov_b32 s26, {WS_WKV}")
    for ks in range(32):
        A(f"buffer_load_dwordx4 {a(128 + 4 * ks, 4)}, v2, s[8:11], s26 offen offset:{(ks & 3) * 1024}")
        if ks & 3 == 3 and ks < 31:
            A("s_add_u32 s26, s26, 4096")
    A("s_lshl_b32 s27, s21, 1")
    A("s_add_u32 s27, s27, s25")
    A("s_lshl_b32 s27, s27, 11")
    A(f"s_add_u32 s27, s27, {WS_KV}")
    A("s_cmp_lg_u32 s24, 0")
    A("s_cbranch_scc1 K1_v")
    for ks in range(32):
        c = "0" if ks == 0 else v(16, 16)
        A(f"{MF} {v(16, 16)}, {a(128 + 4 * ks, 4)}, {v(B + 4 * ks, 4)}, {c}")
    A("v_and_b32 v8, 0x33, v1")
    A("v_bfe_u32 v9, v1, 2, 1")
    A("v_lshl_add_u32 v8, v9, 3, v8")
    A("v_bfe_u32 v9, v1, 3, 1")
    A("v_lshl_add_u32 v8, v9, 2, v8")
    A("v_lshlrev_b32 v8, 4, v8")
    for d in range(4):
        A(f"v_cvt_pk_bf16_f32 {v(32 + d)}, {v(16 + 2 * d)}, {v(17 + 2 * d)}")
    A("buffer_store_dwordx4 v[32:35], v8, s[8:11], s27 offen")
    A("s_branch K1_q")
    A("K1_v:")
    for ks in range(32):
        c = "0" if ks == 0 else v(16, 16)
        A(f"{MF} {v(16, 16)}, {v(B + 4 * ks, 4)}, {a(128 + 4 * ks, 4)}, {c}")
    A("v_lshrrev_b32 v8, 5, v1")
    A("v_lshlrev_b32 v8, 4, v8")
    A("v_and_b32 v9, 15, v1")
    A("v_add_lshl_u32 v8, v8, v9, 4")
    for d in range(8):
        A(f"v_cvt_pk_bf16_f32 {v(32 + d)}, {v(16 + 2 * d)}, {v(17 + 2 * d)}")
    A("s_mov_b32 s28, 0xffff0000")
    A("s_mov_b32 s29, 0xffff0000")
    A("s_mov_b64 exec, s[28:29]")
    A("buffer_store_dwordx4 v[32:35], v8, s[8:11], s27 offen offset:1024")
    A("buffer_store_dwordx4 v[36:39], v8, s[8:11], s27 offen offset:1536")
    A("s_mov_b64 exec, -1")
    A("K1_q:")
    for ks in range(32):
        c = "0" if ks == 0 else v(40, 16)
        A(f"{MF} {v(40, 16)}, {a(4 * ks, 4)}, {v(B + 4 * ks, 4)}, {c}")
    A(f"s_mov_b32 s28, {hex(f2u(QSCALE))}")
    for i in range(16):
        A(f"v_mul_f32 {v(40 + i)}, s28, {v(40 + i)}")
    for d in range(8):
        A(f"v_cvt_pk_bf16_f32 {v(56 + d)}, {v(40 + 2 * d)}, {v(41 + 2 * d)}")
    A("s_lshl_b32 s27, s21, 3")
    A("s_add_u32 s27, s27, s22")
    A("s_lshl_b32 s27, s27, 2")
    A("s_add_u32 s27, s27, s20")
    A("s_lshl_b32 s27, s27, 11")
    A(f"s_add_u32 s27, s27, {WS_Q}")
    A("buffer_store_dwordx4 v[56:59], v2, s[8:11], s27 offen")
    A("buffer_store_dwordx4 v[60:63], v2, s[8:11], s27 offen offset:1024")
    A("K1_end:")
    A("s_endpgm")
    return A


KVB = 2064
SM = "v_smfmac_f32_32x32x32_bf16"


def k2():
    A = Asm()
    A("s_cmp_ge_u32 s2, 256")
    A("s_cbranch_scc1 K2_end")
    load_srd(A, 8, KA_WS, WS_SIZE)
    wave_id(A, 20, 1)
    A("v_and_b32 v1, 63, v0")
    group_ids(A, 21, 22)
    A("v_lshlrev_b32 v2, 4, v1")
    Q = 8
    S = [16, 32]
    C = [48, 64]
    KF = [80, 84]
    VF = [88, 96]
    IDX = 104
    O = [0, 16]
    A("s_lshl_b32 s27, s21, 3")
    A("s_add_u32 s27, s27, s22")
    A("s_lshl_b32 s27, s27, 2")
    A("s_add_u32 s27, s27, s20")
    A("s_lshl_b32 s27, s27, 11")
    A(f"s_add_u32 s27, s27, {WS_Q}")
    A(f"buffer_load_dwordx4 {v(Q, 4)}, v2, s[8:11], s27 offen")
    A(f"buffer_load_dwordx4 {v(Q + 4, 4)}, v2, s[8:11], s27 offen offset:1024")
    A("s_lshl_b32 s24, s20, 11")
    A(f"s_add_u32 s24, s24, {WS_KV}")
    A(f"s_mul_i32 s25, s20, {KVB}")
    for i in range(16):
        A("s_mov_b32 m0, s25")
        A("buffer_load_dwordx4 v2, s[8:11], s24 offen lds")
        A("buffer_load_dwordx4 v2, s[8:11], s24 offen offset:1024 lds")
        if i < 15:
            A("s_add_u32 s24, s24, 8192")
            A(f"s_add_u32 s25, s25, {4 * KVB}")
    A(f"v_mul_u32_u24 v3, {KVB}, v1")
    for d in range(4):
        A(f"v_mov_b32 {v(16 + d)}, 0x3f803f80")
    A("ds_write_b128 v3, v[16:19] offset:2048")
    A("v_mov_b32 v4, v2")
    A("v_lshrrev_b32 v5, 5, v1")
    A("v_lshlrev_b32 v5, 4, v5")
    A("v_and_b32 v6, 15, v1")
    A("v_add_lshl_u32 v5, v5, v6, 4")
    A("v_add_u32 v6, 1536, v5")
    A("v_add_u32 v5, 1024, v5")
    A("v_and_b32 v7, 16, v1")
    A("v_cmp_ne_u32 vcc, 0, v7")
    A("v_mov_b32 v7, 2048")
    A("v_cndmask_b32 v5, v5, v7, vcc")
    A("v_cndmask_b32 v6, v6, v7, vcc")
    A(f"v_mov_b32 {v(IDX)}, 0xdddddddd")
    for i in range(32):
        A(f"v_accvgpr_write_b32 {a(i)}, 0")
    A("s_waitcnt vmcnt(0) lgkmcnt(0)")
    A("s_barrier")

    def rdk(buf, off):
        A(f"ds_read_b128 {v(KF[buf], 4)}, v4 offset:{off}")

    def rdv(buf, off):
        A(f"ds_read_b128 {v(VF[buf], 4)}, v5 offset:{off}")
        A(f"ds_read_b128 {v(VF[buf] + 4, 4)}, v6 offset:{off}")

    rdk(0, 0)
    rdv(0, 0)
    rdk(1, KVB)
    for q in range(2):
        A(f"{MF} {v(S[q], 16)}, {v(KF[0], 4)}, {v(Q + 4 * q, 4)}, 0")
    for q in range(2):
        m = C[q]
        A(f"v_max3_f32 {v(m)}, {v(S[q])}, {v(S[q] + 1)}, {v(S[q] + 2)}")
        for i in range(3, 15, 2):
            A(f"v_max3_f32 {v(m)}, {v(m)}, {v(S[q] + i)}, {v(S[q] + i + 1)}")
        A(f"v_max_f32 {v(m)}, {v(m)}, {v(S[q] + 15)}")
        A(f"v_mov_b32 {v(m + 1)}, {v(m)}")
        A(f"v_permlane32_swap_b32 {v(m + 1)}, {v(m)}")
        A(f"v_max_f32 {v(m)}, {v(m)}, {v(m + 1)}")
        A(f"v_sub_f32 {v(m)}, 0, {v(m)}")
        for i in range(1, 16):
            A(f"v_mov_b32 {v(m + i)}, {v(m)}")
    A("s_mov_b32 s31, 0")
    A("K2_main:")
    for q in range(2):
        A(f"{MF} {v(S[q], 16)}, {v(KF[0], 4)}, {v(Q + 4 * q, 4)}, {v(C[q], 16)}")
    U = 8
    A(f"s_mov_b32 s30, {64 // U}")
    first = True
    A("s_branch K2_entry")
    A("K2_loop:")
    for u in range(U):
        kb = u & 1
        for q in range(2):
            p = 1 - q
            pv = kb if q == 1 else 1 - kb
            pk = 1 - kb if q == 1 else kb
            for i in range(16):
                A(f"v_exp_f32 {v(S[q] + i)}, {v(S[q] + i)}")
                if i == 1:
                    A(f"{SM} {a(O[p], 16)}, {v(VF[pv] + 4, 4)}, {v(S[p] + 8, 8)}, {v(IDX)}")
                if i == 4:
                    A(f"{MF} {v(S[p], 16)}, {v(KF[pk], 4)}, {v(Q + 4 * p, 4)}, {v(C[p], 16)}")
                    if u == 0 and q == 0:
                        A("K2_resume:")
                if i == 6 and q == 0:
                    rdv(1 - kb, (u + 1) * KVB)
                    rdk(kb, (u + 2) * KVB)
                if i == 9:
                    A(f"{SM} {a(O[q], 16)}, {v(VF[kb], 4)}, {v(S[q], 8)}, {v(IDX)}")
    for x in (4, 5, 6):
        A(f"v_add_u32 {v(x)}, {U * KVB}, {v(x)}")
    A("s_sub_u32 s30, s30, 1")
    A("s_cmp_lg_u32 s30, 0")
    A("s_cbranch_scc1 K2_loop")
    A(f"{SM} {a(O[1], 16)}, {v(VF[1] + 4, 4)}, {v(S[1] + 8, 8)}, {v(IDX)}")
    A("s_branch K2_done")
    A("K2_entry:")
    for i in range(5):
        A(f"v_exp_f32 {v(S[0] + i)}, {v(S[0] + i)}")
    A("s_branch K2_resume")
    A("K2_done:")
    for q in range(2):
        for i in range(9):
            A(f"v_accvgpr_read_b32 {v(S[q] + i)}, {a(O[q] + i)}")
    A("s_cmp_lg_u32 s31, 0")
    A("s_cbranch_scc1 K2_store")
    A(f"v_max_f32 v7, {v(S[0] + 8)}, {v(S[1] + 8)}")
    for q in range(2):
        for i in range(0, 8, 2):
            A(f"v_max3_f32 v7, v7, abs({v(S[q] + i)}), abs({v(S[q] + i + 1)})")
    A(f"v_add_f32 v3, {v(S[0] + 8)}, {v(S[1] + 8)}")
    A(f"s_mov_b32 s28, {hex(f2u(2.0 ** 100))}")
    A("v_cmp_nge_f32 vcc, s28, v7")
    A("s_cbranch_vccnz K2_fallback")
    A("v_cmp_nge_f32 vcc, s28, v3")
    A("s_cbranch_vccnz K2_fallback")
    A(f"v_min_f32 v7, {v(S[0] + 8)}, {v(S[1] + 8)}")
    A(f"s_mov_b32 s28, {hex(f2u(2.0 ** -60))}")
    A("v_cmp_nle_f32 vcc, s28, v7")
    A("s_cbranch_vccnz K2_fallback")
    A("K2_store:")
    for q in range(2):
        A(f"v_rcp_f32 {v(S[q] + 8)}, {v(S[q] + 8)}")
        for i in range(8):
            A(f"v_mul_f32 {v(S[q] + i)}, {v(S[q] + i)}, {v(S[q] + 8)}")
        for d in range(4):
            A(f"v_cvt_pk_bf16_f32 {v(S[q] + 12 + d)}, {v(S[q] + 2 * d)}, {v(S[q] + 2 * d + 1)}")
    A("s_and_b32 s25, s20, 1")
    A("s_lshl_b32 s27, s21, 1")
    A("s_add_u32 s27, s27, s25")
    A("s_lshl_b32 s27, s27, 5")
    A("s_lshl_b32 s26, s22, 2")
    A("s_add_u32 s27, s27, s26")
    A("s_and_b32 s26, s20, 2")
    A("s_add_u32 s27, s27, s26")
    A("s_lshl_b32 s27, s27, 10")
    A(f"s_add_u32 s27, s27, {WS_O}")
    A(f"buffer_store_dwordx4 {v(S[0] + 12, 4)}, v2, s[8:11], s27 offen")
    A(f"buffer_store_dwordx4 {v(S[1] + 12, 4)}, v2, s[8:11], s27 offen offset:1024")
    A("K2_end:")
    A("s_endpgm")
    A("K2_fallback:")
    A("s_mov_b32 s31, 1")
    for x in (4, 5, 6):
        A(f"v_subrev_u32 {v(x)}, {64 * KVB}, {v(x)}")
    A("v_mov_b32 v7, v4")
    for q in range(2):
        A(f"v_mov_b32 {v(C[q])}, 0xff800000")
    A("s_mov_b32 s30, 64")
    A("K2_fb_loop:")
    A(f"ds_read_b128 {v(KF[0], 4)}, v7")
    A(f"v_add_u32 v7, {KVB}, v7")
    for q in range(2):
        A(f"{MF} {v(S[q], 16)}, {v(KF[0], 4)}, {v(Q + 4 * q, 4)}, 0")
    for q in range(2):
        for i in range(0, 16, 2):
            A(f"v_max3_f32 {v(C[q])}, {v(C[q])}, {v(S[q] + i)}, {v(S[q] + i + 1)}")
    A("s_sub_u32 s30, s30, 1")
    A("s_cmp_lg_u32 s30, 0")
    A("s_cbranch_scc1 K2_fb_loop")
    for q in range(2):
        m = C[q]
        A(f"v_mov_b32 {v(m + 1)}, {v(m)}")
        A(f"v_permlane32_swap_b32 {v(m + 1)}, {v(m)}")
        A(f"v_max_f32 {v(m)}, {v(m)}, {v(m + 1)}")
        A(f"v_sub_f32 {v(m)}, 0, {v(m)}")
        for i in range(1, 16):
            A(f"v_mov_b32 {v(m + i)}, {v(m)}")
    for i in range(32):
        A(f"v_accvgpr_write_b32 {a(i)}, 0")
    rdk(0, 0)
    rdv(0, 0)
    rdk(1, KVB)
    A("s_branch K2_main")
    return A


def resid_loads(A, srd_x, sxoff, R, G, modvec, snt_global):
    A("v_and_b32 v3, 31, v1")
    A("v_lshlrev_b32 v3, 10, v3")
    A("v_lshrrev_b32 v4, 5, v1")
    A("v_lshl_add_u32 v3, v4, 3, v3")
    A("s_lshl_b32 s33, s25, 15")
    A(f"s_lshl_b32 s34, {s(snt_global)}, 6")
    A("s_add_u32 s33, s33, s34")
    A("v_add_u32 v3, s33, v3")
    for q in range(4):
        A(f"buffer_load_dwordx2 {v(R + 2 * q, 2)}, v3, {s(srd_x, 4)}, {s(sxoff)} offen offset:{16 * q}")
    A("v_lshlrev_b32 v4, 4, v4")
    A(f"s_lshl_b32 s34, {s(snt_global)}, 7")
    A(f"s_add_u32 s34, s34, {WS_MOD + modvec * 2048}")
    for q in range(4):
        A(f"buffer_load_dwordx4 {v(G + 4 * q, 4)}, v4, s[8:11], s34 offen offset:{32 * q}")


def resid_store(A, Y, R, G, srd_o, sooff):
    for q in range(4):
        for d in range(2):
            x = R + 2 * q + d
            i = 4 * q + 2 * d
            A(f"v_lshlrev_b32 v5, 16, {v(x)}")
            A(f"v_and_b32 v6, 0xffff0000, {v(x)}")
            A(f"v_fmac_f32 v5, {v(Y + i)}, {v(G + i)}")
            A(f"v_fmac_f32 v6, {v(Y + i + 1)}, {v(G + i + 1)}")
            A(f"v_cvt_pk_bf16_f32 {v(x)}, v5, v6")
        A(f"buffer_store_dwordx2 {v(R + 2 * q, 2)}, v3, {s(srd_o, 4)}, {s(sooff)} offen offset:{16 * q}")


def k3():
    A = Asm()
    A("s_cmp_ge_u32 s2, 256")
    A("s_cbranch_scc1 K3_end")
    load_srd(A, 8, KA_WS, WS_SIZE)
    load_srd(A, 12, KA_X, 2048 * 1024)
    wave_id(A, 20, 1)
    A("v_and_b32 v1, 63, v0")
    group_ids(A, 21, 22)
    A("v_lshlrev_b32 v2, 4, v1")
    A("s_lshr_b32 s24, s20, 1")
    A("s_and_b32 s25, s20, 1")
    A("s_lshl_b32 s26, s22, 1")
    A("s_add_u32 s26, s26, s24")
    A("s_lshl_b32 s27, s26, 15")
    A(f"s_add_u32 s27, s27, {WS_WO}")
    A("s_lshl_b32 s28, s21, 1")
    A("s_add_u32 s28, s28, s25")
    A("s_lshl_b32 s28, s28, 15")
    A(f"s_add_u32 s28, s28, {WS_O}")
    B = 64
    for ks in range(32):
        A(f"buffer_load_dwordx4 {a(4 * ks, 4)}, v2, s[8:11], s27 offen offset:{(ks & 3) * 1024}")
        A(f"buffer_load_dwordx4 {v(B + 4 * ks, 4)}, v2, s[8:11], s28 offen offset:{(ks & 3) * 1024}")
        if ks & 3 == 3 and ks < 31:
            A("s_add_u32 s27, s27, 4096")
            A("s_add_u32 s28, s28, 4096")
    A("s_lshl_b32 s23, s21, 16")
    resid_loads(A, 12, 23, 8, 16, 2, 26)
    for ks in range(32):
        c = "0" if ks == 0 else v(40, 16)
        A(f"{MF} {v(40, 16)}, {a(4 * ks, 4)}, {v(B + 4 * ks, 4)}, {c}")
    A(f"s_add_u32 s23, s23, {WS_X1}")
    resid_store(A, 40, 8, 16, 8, 23)
    A("K3_end:")
    A("s_endpgm")
    return A


def k4():
    A = Asm()
    A("s_cmp_ge_u32 s2, 256")
    A("s_cbranch_scc1 K4_end")
    load_srd(A, 8, KA_WS, WS_SIZE)
    wave_id(A, 20, 1)
    A("v_and_b32 v1, 63, v0")
    group_ids(A, 21, 22)
    A("s_lshl_b32 s23, s21, 16")
    A(f"s_add_u32 s23, s23, {WS_X1}")
    SH, SC = ln_to_lds(A, 8, 23, 8, 3, 4, 20)
    A("s_mul_i32 s24, s22, 11")
    A("s_add_u32 s24, s24, s20")
    A("s_add_u32 s29, s22, 1")
    A("s_mul_i32 s29, s29, 11")
    A("s_min_u32 s29, s29, 86")

    def loadw(buf, su):
        A(f"s_min_u32 s26, {s(su)}, 85")
        A("s_lshl_b32 s26, s26, 15")
        A(f"s_add_u32 s26, s26, {WS_WGU}")
        for ks in range(32):
            A(f"buffer_load_dwordx4 {a(128 * buf + 4 * ks, 4)}, v2, s[8:11], s26 offen offset:{(ks & 3) * 1024}")
            if ks & 3 == 3 and ks < 31:
                A("s_add_u32 s26, s26, 4096")

    loadw(0, 24)
    ln_compute(A, SH, SC)
    frag_read_addr(A, 7, None)
    A(f"v_add_u32 v8, {HT}, v7")
    ACC = [16, 32]
    B = 64
    for p in range(3):
        if p:
            A("s_add_u32 s24, s24, 4")
            A("s_cmp_ge_u32 s24, s29")
            A("s_cbranch_scc1 K4_end")
        if p < 2:
            A("s_add_u32 s25, s24, 4")
            loadw((p + 1) & 1, 25)
        NB = 8
        for ks in range(32 + 2):
            if ks < 32:
                for tt in range(2):
                    A(f"ds_read_b128 {v(B + 8 * (ks % NB) + 4 * tt, 4)}, {v(7 + tt)} offset:{ks * 1056}")
            k = ks - 2
            if k >= 0:
                for tt in range(2):
                    c = "0" if k == 0 else v(ACC[tt], 16)
                    A(f"{MF} {v(ACC[tt], 16)}, {a(128 * (p & 1) + 4 * k, 4)}, {v(B + 8 * (k % NB) + 4 * tt, 4)}, {c}")
        A(f"s_mul_i32 s27, s21, {2 * 86}")
        A("s_add_u32 s27, s27, s24")
        A("s_lshl_b32 s27, s27, 10")
        A(f"s_add_u32 s27, s27, {WS_H2}")
        for tt in range(2):
            for i in range(8):
                A(f"v_max_f32 {v(ACC[tt] + i)}, 0, {v(ACC[tt] + i)}")
                A(f"v_mul_f32 {v(ACC[tt] + i)}, {v(ACC[tt] + i)}, {v(ACC[tt] + 8 + i)}")
            for d in range(4):
                A(f"v_cvt_pk_bf16_f32 {v(48 + 4 * tt + d)}, {v(ACC[tt] + 2 * d)}, {v(ACC[tt] + 2 * d + 1)}")
            A(f"buffer_store_dwordx4 {v(48 + 4 * tt, 4)}, v2, s[8:11], s27 offen")
            if tt == 0:
                A(f"s_add_u32 s27, s27, {86 * 1024}")
    A("K4_end:")
    A("s_endpgm")
    return A


def k5():
    A = Asm()
    A("s_cmp_ge_u32 s2, 256")
    A("s_cbranch_scc1 K5_end")
    load_srd(A, 8, KA_WS, WS_SIZE)
    load_srd(A, 12, KA_OUT, 2048 * 1024)
    wave_id(A, 20, 1)
    A("v_and_b32 v1, 63, v0")
    group_ids(A, 21, 22)
    A("v_lshlrev_b32 v2, 4, v1")
    A("s_lshr_b32 s24, s20, 1")
    A("s_and_b32 s25, s20, 1")
    A("s_lshl_b32 s26, s22, 1")
    A("s_add_u32 s26, s26, s24")
    for i in range(2):
        A(f"s_xor_b32 s27, s26, {i}")
        A("s_mul_i32 s27, s27, 86")
        A("s_add_u32 s27, s27, s20")
        A("s_lshl_b32 s27, s27, 10")
        A(f"s_add_u32 {s(36 + i)}, s27, {WS_WD}")
        A(f"s_xor_b32 s27, s25, {i}")
        A("s_lshl_b32 s28, s21, 1")
        A("s_add_u32 s27, s27, s28")
        A("s_mul_i32 s27, s27, 86")
        A("s_add_u32 s27, s27, s20")
        A("s_lshl_b32 s27, s27, 10")
        A(f"s_add_u32 {s(38 + i)}, s27, {WS_H2}")
    A("s_lshl_b32 s23, s21, 16")
    A(f"s_add_u32 s35, s23, {WS_X1}")
    resid_loads(A, 8, 35, 8, 16, 5, 26)
    B = 64
    ACC = 176
    for st in range(22):
        for i in range(2):
            A(f"buffer_load_dwordx4 {a(8 * st + 4 * i, 4)}, v2, s[8:11], {s(36 + i)} offen")
            A(f"buffer_load_dwordx4 {v(B + 8 * st + 4 * i, 4)}, v2, s[8:11], {s(38 + i)} offen")
        if st < 21:
            for i in range(4):
                A(f"s_add_u32 {s(36 + i)}, {s(36 + i)}, 4096")
    for st in range(22):
        if st == 21:
            A("s_cmp_ge_u32 s20, 2")
            A("s_cbranch_scc1 K5_red")
        for t in range(4):
            c = "0" if st == 0 else a(ACC + 16 * t, 16)
            A(f"{MF} {a(ACC + 16 * t, 16)}, {a(8 * st + 4 * (t >> 1), 4)}, {v(B + 8 * st + 4 * (t & 1), 4)}, {c}")
    A("K5_red:")
    A("s_waitcnt vmcnt(0)")
    for t in range(1, 4):
        A(f"s_xor_b32 s27, s20, {t}")
        A("s_mul_i32 s27, s27, 12288")
        A("v_add_u32 v5, s27, v2")
        for q in range(4):
            A(f"ds_write_b128 v5, {a(ACC + 16 * t + 4 * q, 4)} offset:{(t - 1) * 4096 + q * 1024}")
    for i in range(16):
        A(f"v_accvgpr_read_b32 {v(40 + i)}, {a(ACC + i)}")
    A("s_mul_i32 s27, s20, 12288")
    A("v_add_u32 v5, s27, v2")
    A("s_waitcnt lgkmcnt(0)")
    A("s_barrier")
    for t in range(3):
        for q in range(4):
            A(f"ds_read_b128 {v(B + 16 * t + 4 * q, 4)}, v5 offset:{t * 4096 + q * 1024}")
    for t in range(3):
        for i in range(16):
            A(f"v_add_f32 {v(40 + i)}, {v(40 + i)}, {v(B + 16 * t + i)}")
    resid_store(A, 40, 8, 16, 12, 23)
    A("K5_end:")
    A("s_endpgm")
    return A


def empty():
    A = Asm()
    A("s_endpgm")
    return A


def main(out, n_empty=0):
    ks = [("prep_kernel", k0(False), K0_GRID, 4 * 9216),
          ("qkv_kernel", k1(), 256, 2 * HT),
          ("attn_kernel", k2(), 256, 66 * KVB),
          ("oproj_kernel", k3(), 256, 0),
          ("up_kernel", k4(), 256, 2 * HT),
          ("down_kernel", k5(), 256, 49152)]
    head = [f"; {NAME}: generated by gen/base.py"]
    for n, _, g, lds in ks:
        head.append(f"; @launch kernel={n} grid=({g},1,1) block=(256,1,1) lds={lds}")
    for i in range(n_empty):
        head.append(f"; @launch kernel=empty_kernel grid=(256,1,1) block=(256,1,1) lds=0")
    if n_empty:
        ks.append(("empty_kernel", empty(), 256, 0))
    text = "\n".join(head) + '\n.amdgcn_target "amdgcn-amd-amdhsa--gfx950"\n'
    for n, A, g, lds in ks:
        text += kernel_text(n, A)
    open(out, "w").write(text)


if __name__ == "__main__":
    main(sys.argv[1], int(sys.argv[2]) if len(sys.argv) > 2 else 0)
```

```python
import re

REG_RE = re.compile(r"^(-|\|)?(abs\()?([vas])(\d+|\[(\d+):(\d+)\])\)?\|?$")


def regs_of(tok):
    tok = tok.strip()
    if tok in ("vcc",):
        return {("s", 106), ("s", 107)}
    if tok == "vcc_lo":
        return {("s", 106)}
    if tok == "vcc_hi":
        return {("s", 107)}
    if tok == "exec":
        return {("s", 126), ("s", 127)}
    if tok == "m0":
        return {("s", 124)}
    m = REG_RE.match(tok)
    if not m:
        return set()
    k = m.group(3)
    if m.group(5) is not None:
        return {(k, i) for i in range(int(m.group(5)), int(m.group(6)) + 1)}
    return {(k, int(m.group(4)))}


TRANS = ("v_exp_f32", "v_log_f32", "v_rcp_f32", "v_rsq_f32", "v_sqrt_f32", "v_sin_f32", "v_cos_f32", "v_rcp_iflag_f32",
         "v_exp_f16", "v_rcp_f16")
VCC = {("s", 106), ("s", 107)}


class Ins:
    __slots__ = ("text", "op", "kind", "dst", "src", "srcA", "srcB", "srcC", "passes", "label", "target", "is_dpp",
                 "wide_store", "data", "ops", "lds_dma", "ws", "opsel")

    def __init__(self, text):
        self._parse(text)
        if ";" in text:
            cm = text.split(";", 1)[1]
            for m in re.finditer(r"def:(\w+)", cm):
                self.dst = self.dst | {("t", m.group(1))}
            for m in re.finditer(r"use:(\w+)", cm):
                self.src = self.src | {("t", m.group(1))}

    def _parse(self, text):
        self.text = text
        t = text.split(";")[0].strip()
        self.label = None
        self.target = None
        self.dst = set()
        self.src = set()
        self.srcA = self.srcB = self.srcC = set()
        self.passes = 0
        self.is_dpp = False
        self.wide_store = False
        self.data = set()
        self.lds_dma = False
        self.ws = 1
        self.opsel = False
        if t == "" or t.startswith("."):
            if t.endswith(":"):
                self.kind = "label"
                self.label = t[:-1]
            else:
                self.kind = "none"
            self.op = ""
            self.ws = 0
            return
        if t.endswith(":"):
            self.kind = "label"
            self.label = t[:-1]
            self.op = ""
            self.ws = 0
            return
        sp = t.split(None, 1)
        op = sp[0]
        self.op = op
        rest = sp[1] if len(sp) > 1 else ""
        ops = [o.strip() for o in rest.split(",")] if rest else []
        mods = ""
        clean = []
        for i, o in enumerate(ops):
            parts = o.split()
            if not parts:
                continue
            clean.append(parts[0])
            if len(parts) > 1:
                mods = " ".join(parts[1:]) + " " + ",".join(ops[i + 1:])
                break
        ops = clean
        self.ops = ops
        R = [regs_of(o) for o in ops]
        if op.startswith("v_mfma") or op.startswith("v_smfmac"):
            self.kind = "mfma"
            self.dst = R[0]
            self.srcA, self.srcB = R[1], R[2]
            if op.startswith("v_mfma"):
                self.srcC = R[3]
            else:
                self.srcC = R[0]
                self.srcB = R[2] | R[3]
            self.src = self.srcA | self.srcB | self.srcC
            self.passes = 8 if "32x32" in op else 4
        elif op.startswith("v_"):
            self.kind = "valu"
            self.is_dpp = "_dpp" in op or "row_" in mods or "quad_perm" in mods
            self.opsel = "dst_sel" in mods
            if self.is_dpp:
                self.srcA = R[1]
            if op.startswith("v_nop"):
                pass
            elif op.startswith("v_permlane") and "swap" in op:
                self.dst = R[0] | R[1]
                self.src = R[0] | R[1]
            elif re.match(r"v_(add|sub|subrev|addc|subb)_co", op) or op.startswith("v_div_scale"):
                self.dst = R[0] | R[1]
                self.src = set().union(*R[2:])
            else:
                self.dst = R[0]
                self.src = set().union(*R[1:]) if len(R) > 1 else set()
                if op.startswith(("v_fmac", "v_dot2c", "v_pk_fmac", "v_writelane")) or self.is_dpp or self.opsel:
                    self.src |= R[0]
                if op.startswith("v_div_fmas"):
                    self.src |= VCC
        elif op.startswith(("buffer_", "global_")):
            self.kind = "vmem"
            if op in ("buffer_inv", "buffer_wbl2"):
                pass
            elif op.startswith("global_load_lds") or (op.startswith("buffer_load") and re.search(r"\blds\b", t)):
                self.lds_dma = True
                self.src = set().union(*R) | {("s", 124)}
            elif "load" in op:
                self.dst = R[0]
                self.src = set().union(*R[1:])
            elif "atomic" in op:
                if op.startswith("buffer_"):
                    self.src = set().union(*R)
                    if "sc0" in t:
                        self.dst = R[0]
                else:
                    if "sc0" in t:
                        self.dst = R[0]
                        self.src = set().union(*R[1:])
                    else:
                        self.src = set().union(*R)
            else:
                self.src = set().union(*R)
                self.data = R[0] if op.startswith("buffer_") else R[1]
                self.wide_store = op.endswith(("x3", "x4"))
        elif op.startswith("ds_"):
            self.kind = "ds"
            if op.startswith(("ds_read", "ds_bpermute", "ds_permute", "ds_swizzle")) or "_rtn" in op:
                self.dst = R[0]
                self.src = set().union(*R[1:])
            else:
                self.src = set().union(*R)
        elif op.startswith(("s_load", "s_buffer_load", "s_memtime", "s_memrealtime", "s_atomic")):
            self.kind = "smem"
            self.dst = R[0]
            self.src = set().union(*R[1:]) if len(R) > 1 else set()
        elif op == "s_waitcnt":
            self.kind = "wait"
        elif op == "s_nop":
            self.kind = "nop"
            self.ws = int(ops[0], 0) + 1
        elif "; warm" in text:
            self.kind = "salu"
        elif op.startswith(("s_cbranch", "s_branch")):
            self.kind = "branch"
            self.target = ops[0]
            if "vcc" in op:
                self.src = set(VCC)
        elif op == "s_endpgm":
            self.kind = "end"
        elif op.startswith("s_"):
            self.kind = "salu"
            if op.startswith(("s_cmp", "s_bitcmp", "s_barrier", "s_sleep", "s_setprio", "s_setreg")):
                self.src = set().union(*R) if R else set()
            else:
                self.dst = R[0] if R else set()
                self.src = set().union(*R[1:]) if len(R) > 1 else set()
                if "saveexec" in op:
                    self.dst = self.dst | regs_of("exec")
                if op.startswith(("s_addk", "s_mulk")):
                    self.src |= R[0]
        else:
            raise ValueError("unknown instruction: " + text)


def vg(s):
    return {r for r in s if r[0] in "va"}


def sg(s):
    return {r for r in s if r[0] == "s"}


def need_ws(p, c):
    n = 0
    if p.kind == "valu":
        pv, ps = vg(p.dst), sg(p.dst)
        if c.kind == "mfma" and pv & c.src:
            n = max(n, 2)
        if c.kind == "valu":
            if pv & c.src:
                if p.op.replace("_e32", "").replace("_e64", "") in TRANS and not (
                        c.op.replace("_e32", "").replace("_e64", "") in TRANS):
                    n = max(n, 1)
                if c.op.startswith(("v_readlane", "v_readfirstlane")):
                    n = max(n, 1)
                if c.is_dpp or c.op.startswith("v_permlane"):
                    n = max(n, 2)
                if p.opsel:
                    n = max(n, 1)
            if ps & c.src:
                n = max(n, 4 if c.op.startswith(("v_readlane", "v_writelane", "v_div_fmas")) else 2)
        if p.op.startswith("v_dot") and c.kind in ("valu", "mfma", "vmem", "ds") and pv & (c.src | c.dst):
            same = c.op.replace("_dpp", "") == p.op.replace("_dpp", "")
            if not (same and not (pv & (c.src - c.dst))):
                n = max(n, 3)
        if c.kind == "vmem" and ps & c.src:
            n = max(n, 5)
        if c.kind in ("salu", "smem", "branch") and ps & c.src:
            n = max(n, 1)
    elif p.kind == "mfma":
        big = p.passes == 8
        if c.kind == "mfma":
            if p.dst & (c.srcA | c.srcB):
                n = max(n, 12 if big else 8)
            if p.dst & c.srcC and not (p.dst == c.srcC and p.passes == c.passes):
                n = max(n, 10 if big else 6)
            if p.dst & c.dst and not (p.dst == c.dst and p.passes == c.passes):
                n = max(n, 10 if big else 6)
        elif c.kind in ("valu", "vmem", "ds"):
            if p.dst & (c.src | c.dst):
                n = max(n, 12 if big else 8)
            if c.kind == "valu" and p.srcC & c.dst:
                n = max(n, 7 if big else 3)
    elif p.kind == "salu":
        if ("s", 124) in p.dst and (c.lds_dma or "addtid" in c.op):
            n = max(n, 1)
    elif p.kind == "vmem":
        if p.wide_store and p.data & c.dst:
            n = max(n, 2 if c.kind in ("valu", "mfma") else 1)
    return n


MAXWS = 12


class Asm:
    def __init__(self):
        self.ins = []

    def __call__(self, text):
        for line in text.split("\n"):
            line = line.strip()
            if line == "" or (line.startswith(";") and "use:" not in line):
                continue
            self.ins.append(Ins(line))

    def _succ(self, ins):
        lab = {x.label: i for i, x in enumerate(ins) if x.kind == "label"}
        succ = []
        for i, x in enumerate(ins):
            s = []
            if x.kind == "end":
                pass
            elif x.kind == "branch":
                s.append(lab[x.target])
                if x.op != "s_branch":
                    s.append(i + 1)
            elif i + 1 < len(ins):
                s.append(i + 1)
            succ.append(s)
        return succ

    def insert_waits(self):
        ins = self.ins
        succ = self._succ(ins)
        need = {}
        for _ in range(20):
            changed = False
            seen = set()
            stack = [(0, (), ())]
            steps = 0
            while stack:
                i, vm, lg = stack.pop()
                while True:
                    x = ins[i]
                    if x.kind == "label":
                        key = (i, vm, lg)
                        if key in seen:
                            break
                        seen.add(key)
                    steps += 1
                    if steps > 3000000:
                        raise RuntimeError("wait insertion does not converge")
                    touched = x.src | {e for e in x.dst if e[0] != "t"}
                    w = need.get(i)
                    nv = nl = None
                    if touched:
                        for k in range(len(vm) - 1, -1, -1):
                            if vm[k] & touched:
                                nv = len(vm) - 1 - k
                                break
                        for k in range(len(lg) - 1, -1, -1):
                            if lg[k][1] & touched:
                                nl = len(lg) - 1 - k
                                if any(e[0] for e in lg):
                                    nl = 0
                                break
                    if nv is not None:
                        nv = min(nv, 63)
                    if nl is not None:
                        nl = min(nl, 15)
                    if nv is not None or nl is not None:
                        if w is None:
                            w = need[i] = [None, None]
                        if nv is not None and (w[0] is None or nv < w[0]):
                            w[0] = nv
                            changed = True
                        if nl is not None and (w[1] is None or nl < w[1]):
                            w[1] = nl
                            changed = True
                    if w is not None:
                        if w[0] is not None and len(vm) > w[0]:
                            vm = vm[len(vm) - w[0]:]
                        if w[1] is not None and len(lg) > w[1]:
                            if w[1] == 0 or not any(e[0] for e in lg):
                                lg = lg[len(lg) - w[1]:]
                    if x.kind == "wait":
                        m = re.search(r"vmcnt\((\d+)\)", x.text)
                        if m and len(vm) > int(m.group(1)):
                            vm = vm[len(vm) - int(m.group(1)):]
                        m = re.search(r"lgkmcnt\((\d+)\)", x.text)
                        if m and len(lg) > int(m.group(1)):
                            n = int(m.group(1))
                            if n == 0 or not any(e[0] for e in lg):
                                lg = lg[len(lg) - n:]
                    elif x.kind == "vmem":
                        vm = vm + (frozenset(x.dst),)
                        while vm and not vm[0]:
                            vm = vm[1:]
                    elif x.kind == "ds":
                        lg = lg + ((False, frozenset(x.dst)),)
                        while lg and not lg[0][1]:
                            lg = lg[1:]
                    elif x.kind == "smem":
                        lg = lg + ((True, frozenset(x.dst)),)
                    s = succ[i]
                    if not s:
                        break
                    for t in s[1:]:
                        stack.append((t, vm, lg))
                    i = s[0]
            if not changed:
                break
        out = []
        for i, x in enumerate(ins):
            w = need.get(i)
            if w:
                parts = []
                if w[0] is not None:
                    parts.append(f"vmcnt({w[0]})")
                if w[1] is not None:
                    parts.append(f"lgkmcnt({w[1]})")
                out.append(Ins("s_waitcnt " + " ".join(parts)))
            out.append(x)
        self.ins = out

    def insert_nops(self, verbose=False):
        for _ in range(50):
            ins = self.ins
            succ = self._succ(ins)
            pred = [[] for _ in ins]
            for i, s in enumerate(succ):
                for t in s:
                    pred[t].append(i)
            add = {}
            for i, c in enumerate(ins):
                if c.ws == 0:
                    continue
                best = 0
                stack = [(p, 0) for p in pred[i]]
                seen = set()
                while stack:
                    j, d = stack.pop()
                    if (j, d) in seen:
                        continue
                    seen.add((j, d))
                    p = ins[j]
                    if p.ws:
                        n = need_ws(p, c)
                        if n - d > best:
                            best = n - d
                    d2 = d + p.ws + add.get(j, 0)
                    if d2 < MAXWS:
                        for q in pred[j]:
                            stack.append((q, d2))
                if best > 0:
                    add[i] = best
            if not add:
                return
            out = []
            for i, x in enumerate(ins):
                if i in add:
                    if verbose:
                        print("nop", add[i], "before", x.text)
                    out.append(Ins(f"s_nop {add[i] - 1}"))
                out.append(x)
            self.ins = out
        raise RuntimeError("nop insertion does not converge")

    def finish(self, verbose=False):
        self.insert_waits()
        self.insert_nops(verbose)
        return self.text()

    def text(self):
        return "\n".join((x.text if x.kind in ("label",) else "    " + x.text) for x in self.ins) + "\n"

    def max_regs(self):
        mv = ma = ms = -1
        for x in self.ins:
            for k, i in x.src | x.dst:
                if k == "v":
                    mv = max(mv, i)
                elif k == "a":
                    ma = max(ma, i)
                elif k == "s" and i < 106:
                    ms = max(ms, i)
        return mv + 1, ma + 1, ms + 1


def v(i, n=1):
    return f"v{i}" if n == 1 else f"v[{i}:{i + n - 1}]"


def a(i, n=1):
    return f"a{i}" if n == 1 else f"a[{i}:{i + n - 1}]"


def s(i, n=1):
    return f"s{i}" if n == 1 else f"s[{i}:{i + n - 1}]"


def r(i, n=1):
    if i < 256:
        assert i + n <= 256
        return v(i, n)
    return a(i - 256, n)


def ins_sizes(asm):
    import subprocess, tempfile, os
    lines = ['.amdgcn_target "amdgcn-amd-amdhsa--gfx950"', ".text"]
    for x in asm.ins:
        if x.kind == "label" or x.ws:
            lines.append("s_nop 0" if "; warm" in x.text else x.text)
    d = tempfile.mkdtemp()
    open(d + "/a.s", "w").write("\n".join(lines) + "\n")
    subprocess.run(["clang", "-x", "assembler", "-target", "amdgcn-amd-amdhsa", "-mcpu=gfx950", "-c",
                    d + "/a.s", "-o", d + "/a.o"], check=True)
    out = subprocess.run(["llvm-objdump", "-d", "--mcpu=gfx950", d + "/a.o"], capture_output=True,
                         text=True).stdout
    sz = [4 * len(l.split("//")[1].split(":")[1].split("<")[0].split()) for l in out.splitlines() if "//" in l]
    res = []
    k = 0
    for x in asm.ins:
        if x.ws:
            res.append(sz[k])
            k += 1
        else:
            res.append(0)
    assert k == len(sz)
    return res


def kernel_text(name, asm, verbose=False, min_vgpr=0, post=None):
    body = asm.finish(verbose)
    if post:
        post(asm)
        body = asm.text()
    nv, na, ns = asm.max_regs()
    acc = max(4, (nv + 3) // 4 * 4)
    nfv = acc + na if na else nv
    nfv = max(nfv, min_vgpr)
    text = f""".text
.globl {name}
.p2align 8
.type {name},@function
{name}:
{body}"""
    kd = f""".section .rodata,"a"
.p2align 6
.amdhsa_kernel {name}
  .amdhsa_next_free_vgpr {nfv}
  .amdhsa_next_free_sgpr {max(ns, 16)}
  .amdhsa_accum_offset {acc}
  .amdhsa_group_segment_fixed_size 0
  .amdhsa_kernarg_size 112
  .amdhsa_user_sgpr_count 2
  .amdhsa_user_sgpr_kernarg_segment_ptr 1
  .amdhsa_system_sgpr_workgroup_id_x 1
  .amdhsa_float_denorm_mode_32 3
.end_amdhsa_kernel
"""
    return text + kd
```

```python
import struct
import sys

from asmlib import Asm, Ins, a, ins_sizes, kernel_text, r, s, v

NAME = "adaLN_cond__grouped_kv_mqa__glu_gated_reglu__prompt"
WS_NONCE = 0x0
WS_MODG = 0x1000
WS_FKV = 0x4000
WS_FRL = 0x6000
WS_KV = 0x20000
WS_WGU = 0x100000
WS_GA = 0x400000
GA_O, GA_STAT, GA_FG = 0, 0x15800, 0x1F800
GA_H2 = [0x20000, 0, 0x10000]
WS_STAMP = 0x1C00000
WS_SIZE = 0x2000000
QSCALE = 0.25 * 1.4426950408889634
HT = 32 * 1056
L_H1 = 0
L_WQ = 2 * HT
KVB = 2080
L_SP = 64 * KVB
L_MODL = L_SP
L_OWN = L_SP + 4096
L_MPART = L_SP + 5120
L_RED = L_SP + 6144
L_WO = 0
L_H = 65536
LDS_BYTES = 163840
assert L_WQ + 65536 == L_SP and L_RED + 16384 <= LDS_BYTES

MF = "v_mfma_f32_32x32x16_bf16"
MF16 = "v_mfma_f32_16x16x32_bf16"
SM = "v_smfmac_f32_32x32x32_bf16"
DPPF = "row_mask:0xf bank_mask:0xf"
SPIN_MAX = 1 << 18

WS, WSF, WSS, SX, SOUT, T1, T2 = 8, 12, 16, 20, 24, 28, 4
sW, sG, sJ, sTAG, sTT, sHP = 32, 33, 34, 35, 36, 37
sGA = 62
OPT = set()
STAMPS = []
STAMP_SETS = {
    "stA": ["start", "modpub", "ln0", "ln1", "hop1", "hop1done", "kvst", "rows", "qdone", "hop2", "attn0", "attn1", "end"],
    "stC": ["start", "attn0", "kt4", "kt8", "kt12", "kt16", "kt24", "kt32", "kt40", "kt48", "kt56", "attn1", "end"],
    "stB": ["start", "attn0", "attn1", "e1", "oproj", "stat", "e2a", "e2b", "up0", "up1", "down1", "end"],
}


def P(name, default):
    for o in OPT:
        if o.startswith(name + "="):
            return int(o.split("=")[1])
    return default


def f2u(x):
    return hex(struct.unpack("<I", struct.pack("<f", x))[0])


class K(Asm):
    def __init__(self):
        super().__init__()
        self.stubs = []
        self.nlab = 0

    def lab(self, p):
        self.nlab += 1
        return f"L_{p}_{self.nlab}"

    def stamp(self, name):
        if "pad=" + name in OPT:
            self("s_memrealtime s[98:99]")
        if name in STAMPS:
            self(f"{'s_memtime' if 'cyc' in OPT else 's_memrealtime'} {s(76 + 2 * STAMPS.index(name), 2)}")

    def srd(self, d, src, size):
        self(f"s_mov_b32 {s(d)}, {s(src)}")
        self(f"s_mov_b32 {s(d + 1)}, {s(src + 1)}")
        self(f"s_mov_b32 {s(d + 2)}, {size}")
        self(f"s_mov_b32 {s(d + 3)}, 0x20000")

    def xstore(self, op, data, vaddr, soff, extra="", tok=None):
        t = f" ; def:{tok}" if tok else ""
        self(f"{op} {data}, {vaddr}, {s(WSF, 4)}, {soff} offen {extra}{t}")
        self(f"{op} {data}, {vaddr}, {s(WSS, 4)}, {soff} offen {extra} sc1{t}")

    def xflag(self, soff, off, vt, use):
        self(f"; use:{use}")
        self(f"buffer_store_dword {v(vt)}, off, {s(WSF, 4)}, {soff} offset:{off}")
        self(f"buffer_store_dword {v(vt)}, off, {s(WSS, 4)}, {soff} offset:{off} sc1")

    def spin(self, loads, check, sleep=0):
        L, E = self.lab("spin"), self.lab("spun")
        self("s_mov_b32 s3, 0")
        self(f"{L}:")
        for x in loads:
            self(x)
        for x in check:
            self(x)
        self(f"s_cbranch_vccz {E}")
        if sleep:
            self(f"s_sleep {sleep}")
        self("s_add_u32 s3, s3, 1")
        self(f"s_cmp_lt_u32 s3, {SPIN_MAX}")
        self(f"s_cbranch_scc1 {L}")
        self(f"{E}:")

    def check_or_spin(self, loads, check):
        L, E, S = self.lab("late"), self.lab("ok"), self.lab("lspin")
        for x in check:
            self(x)
        self(f"s_cbranch_vccnz {L}")
        self(f"{E}:")
        st = [f"{L}:", "s_mov_b32 s3, 0", f"{S}:"] + list(loads) + list(check) + [
            f"s_cbranch_vccz {E}", "s_add_u32 s3, s3, 1", f"s_cmp_lt_u32 s3, {SPIN_MAX}", f"s_cbranch_scc1 {S}",
            f"s_branch {E}"]
        self.stubs += st


SD = 32


def mod_loads(SD=SD):
    setup = ["v_lshrrev_b32 v89, 2, v0", "v_and_b32 v90, 3, v0", "v_lshlrev_b32 v91, 2, v89",
             "v_lshl_add_u32 v91, v90, 8, v91", "v_mul_u32_u24 v89, 12288, v89", "v_lshl_add_u32 v89, v90, 4, v89",
             "s_lshl_b32 s42, s41, 6"]
    loads = [[f"buffer_load_dword v88, v91, {s(T2, 4)}, 0 offen"]]
    for i in range(8):
        pre = [f"s_add_u32 s42, s42, {6144 if i & 1 else 127 * 6144}"] if i else []
        loads.append(pre + [f"buffer_load_dwordx4 {v(SD + 4 * i, 4)}, v89, {s(T1, 4)}, s42 offen"])
    return setup, loads


def mod_partial(A, T, SD=SD):
    c0, c1, acc, pm = T, T + 1, T + 4, T + 12
    A(f"v_lshlrev_b32 {v(c0)}, 16, v88")
    A(f"v_and_b32 {v(c1)}, 0xffff0000, v88")
    for x in (c0, c1):
        A(f"v_mul_f32 {v(x + 2)}, {f2u(-1.4426950408889634)}, {v(x)}")
    for x in (c0, c1):
        A(f"v_exp_f32 {v(x + 2)}, {v(x + 2)}")
    for e in range(8):
        A(f"v_mov_b32 {v(acc + e)}, 0")
    for x in (c0, c1):
        A(f"v_add_f32 {v(x + 2)}, 1.0, {v(x + 2)}")
    for x in (c0, c1):
        A(f"v_rcp_f32 {v(x + 2)}, {v(x + 2)}")
    A("s_mov_b32 s38, 0x05040100")
    A("s_mov_b32 s39, 0x07060302")
    for x in (c0, c1):
        A(f"v_mul_f32 {v(x)}, {v(x)}, {v(x + 2)}")
    A(f"v_cvt_pk_bf16_f32 {v(c0)}, {v(c0)}, {v(c1)}")
    for p in range(4):
        for d in range(4):
            w0, w1 = SD + 8 * p + d, SD + 4 + 8 * p + d
            A(f"v_perm_b32 {v(pm + 2 * d)}, {v(w1)}, {v(w0)}, s38")
            A(f"v_perm_b32 {v(pm + 1 + 2 * d)}, {v(w1)}, {v(w0)}, s39")
        for e in range(8):
            A(f"v_dot2c_f32_bf16_dpp {v(acc + e)}, {v(c0)}, {v(pm + e)} quad_perm:[{p},{p},{p},{p}] {DPPF}")
    for e in range(4):
        A(f"v_permlane32_swap_b32 {v(acc + e)}, {v(acc + 4 + e)}")
    for e in range(4):
        A(f"v_add_f32 {v(acc + e)}, {v(acc + e)}, {v(acc + 4 + e)}")
    A(f"v_lshrrev_b32 {v(c0)}, 4, v1")
    for e in range(2):
        A(f"v_permlane16_swap_b32 {v(acc + e)}, {v(acc + 2 + e)}")
    for e in range(2):
        A(f"v_add_f32 {v(acc + e)}, {v(acc + e)}, {v(acc + 2 + e)}")
    A(f"v_and_b32 {v(c1)}, 3, v1")
    A(f"v_lshl_add_u32 {v(c0)}, {v(c1)}, 2, {v(c0)}")
    for e in range(2):
        A(f"v_add_f32_dpp {v(acc + e)}, {v(acc + e)}, {v(acc + e)} row_ror:8 {DPPF}")
    A(f"s_lshl_b32 s38, {s(sW)}, 7")
    A(f"v_lshl_add_u32 {v(c0)}, {v(c0)}, 3, s38")
    for e in range(2):
        A(f"v_add_f32_dpp {v(acc + e)}, {v(acc + e)}, {v(acc + e)} row_ror:4 {DPPF}")
    A(f"v_add_u32 {v(c0)}, {L_MPART}, {v(c0)}")
    A(f"ds_write_b64 {v(c0)}, {v(acc, 2)}")


def mod_publish(A, T):
    A(f"v_and_b32 {v(T)}, 15, v1")
    A(f"v_lshlrev_b32 {v(T)}, 3, {v(T)}")
    A(f"v_add_u32 {v(T + 1)}, {L_MPART}, {v(T)}")
    P = T + 2
    for i in range(4):
        A(f"ds_read_b64 {v(P + 2 * i, 2)}, {v(T + 1)} offset:{128 * i}")
    A("s_lshr_b32 s38, s41, 4")
    A("s_cmp_eq_u32 s38, 1")
    A("s_cselect_b32 s39, 1.0, 0")
    A("s_cmp_eq_u32 s38, 4")
    A("s_cselect_b32 s39, 1.0, s39")
    A("s_lshl_b32 s38, s41, 7")
    A(f"s_add_u32 s38, s38, {WS_MODG}")
    A(f"v_pk_add_f32 {v(P, 2)}, {v(P, 2)}, {v(P + 2, 2)}")
    A(f"v_pk_add_f32 {v(P + 4, 2)}, {v(P + 4, 2)}, {v(P + 6, 2)}")
    A(f"v_pk_add_f32 {v(P, 2)}, {v(P, 2)}, {v(P + 4, 2)}")
    A(f"v_cvt_pk_bf16_f32 {v(P)}, {v(P)}, {v(P + 1)}")
    A(f"v_mov_b32 {v(P + 3)}, {s(sTAG)}")
    A(f"v_and_b32 {v(P + 1)}, 0xffff0000, {v(P)}")
    A(f"v_lshlrev_b32 {v(P)}, 16, {v(P)}")
    A(f"v_add_f32 {v(P + 1)}, s39, {v(P + 1)}")
    A(f"v_add_f32 {v(P)}, s39, {v(P)}")
    A(f"v_cvt_pk_bf16_f32 {v(P + 2)}, {v(P)}, {v(P + 1)}")
    A("s_mov_b64 exec, 0xffff")
    A(f"buffer_store_dwordx2 {v(P + 2, 2)}, {v(T)}, {s(WS, 4)}, s38 offen sc1")
    A("s_mov_b64 exec, -1")


def relayout_setup(A):
    A(f"s_sub_u32 s38, {s(sJ)}, 5")
    A("s_lshl_b32 s38, s38, 5")
    A(f"s_add_u32 s38, s38, {s(sG)}")
    A("s_lshl_b32 s38, s38, 2")
    A(f"s_add_u32 s38, s38, {s(sW)}")
    A("s_cmp_lt_u32 s38, 352")
    A(f"s_cselect_b32 s40, {512 * 2752}, 0")
    A.srd(T1, 56, "s40")
    A.srd(T2, 58, "s40")
    A("s_lshr_b32 s3, s38, 5")
    A("s_and_b32 s38, s38, 31")
    A(f"s_mul_i32 s41, s38, {16 * 2752}")
    A("s_lshl_b32 s39, s3, 8")
    A("s_add_u32 s41, s41, s39")
    A("s_lshl_b32 s42, s3, 18")
    A("s_lshl_b32 s38, s38, 10")
    A("s_add_u32 s42, s42, s38")
    A(f"s_add_u32 s42, s42, {WS_WGU}")


def relayout_loads(A):
    A("v_lshrrev_b32 v89, 4, v1")
    A("v_and_b32 v90, 15, v1")
    A("v_mul_u32_u24 v89, 2752, v89")
    A("v_lshl_add_u32 v89, v90, 4, v89")
    for q in range(8):
        A(f"buffer_load_dwordx4 {v(SD + 4 * q, 4)}, v89, {s(T2 if q & 1 else T1, 4)}, s41 offen")
        if q & 1 and q < 7:
            A(f"s_add_u32 s41, s41, {4 * 2752}")


def relayout_finish(A, T):
    A(f"s_mul_i32 s38, {s(sW)}, 9216")
    A(f"v_lshrrev_b32 {v(T)}, 4, v1")
    A(f"v_mul_u32_u24 {v(T)}, 576, {v(T)}")
    A(f"v_and_b32 {v(T + 1)}, 15, v1")
    A(f"v_lshlrev_b32 {v(T + 1)}, 4, {v(T + 1)}")
    A(f"v_add3_u32 {v(T)}, {v(T)}, {v(T + 1)}, s38")
    for q in range(8):
        A(f"ds_write_b128 {v(T)}, {v(SD + 4 * q, 4)} offset:{(q >> 1) * 4 * 576 + (q & 1) * 288}")
    A(f"v_lshl_add_u32 {v(T)}, v11, 2, v9")
    A(f"v_mul_u32_u24 {v(T)}, 576, {v(T)}")
    A(f"v_bfe_u32 {v(T + 1)}, v1, 4, 1")
    A(f"v_mul_u32_u24 {v(T + 1)}, 288, {v(T + 1)}")
    A(f"v_add3_u32 {v(T)}, {v(T)}, {v(T + 1)}, s38")
    A(f"v_add_u32 {v(T)}, {v(T)}, v8")
    A("s_waitcnt lgkmcnt(0)")
    for f in range(8):
        A(f"ds_read_b64_tr_b16 {v(SD + 4 * f, 2)}, {v(T)} offset:{32 * f}")
        A(f"ds_read_b64_tr_b16 {v(SD + 2 + 4 * f, 2)}, {v(T)} offset:{32 * f + 8 * 576}")
    for f in range(8):
        A(f"buffer_store_dwordx4 {v(SD + 4 * f, 4)}, v2, {s(WS, 4)}, s42 offen sc1 ; def:rl")
        if f < 7:
            A("s_add_u32 s42, s42, 32768")


def slice_voffset(A, d, t):
    A(f"v_lshrrev_b32 {v(d)}, 3, v1")
    A(f"v_lshrrev_b32 {v(t)}, 2, v1")
    A(f"v_and_b32 {v(t)}, 4, {v(t)}")
    A(f"v_xor_b32 {v(t)}, {v(t)}, v1")
    A(f"v_and_b32 {v(t)}, 7, {v(t)}")
    A(f"v_lshlrev_b32 {v(t)}, 4, {v(t)}")
    A(f"v_lshl_add_u32 {v(d)}, {v(d)}, 10, {v(t)}")


def slice_read_addr(A, d, t, hshift, base):
    A(f"v_lshrrev_b32 {v(d)}, 5, v1")
    A(f"v_bfe_u32 {v(t)}, v1, 2, 2")
    A(f"v_lshl_add_u32 {v(d)}, {v(d)}, {hshift}, {v(t)}")
    A(f"v_lshrrev_b32 {v(t)}, 1, {v(t)}")
    A(f"v_xor_b32 {v(t)}, {s(sHP)}, {v(t)}")
    A(f"v_lshl_add_u32 {v(d)}, {v(d)}, 1, {v(t)}")
    A(f"v_bfe_u32 {v(t)}, v1, 4, 1")
    A(f"v_lshl_add_u32 {v(d)}, {v(d)}, 1, {v(t)}")
    A(f"v_and_b32 {v(t)}, 3, v1")
    A(f"v_lshl_add_u32 {v(d)}, {v(d)}, 2, {v(t)}")
    A(f"v_lshlrev_b32 {v(d)}, 3, {v(d)}")
    A(f"v_add_u32 {v(d)}, {base}, {v(d)}")


def column_id(A, d):
    A(f"s_cmp_eq_u32 {s(sJ)}, 3")
    A(f"s_cselect_b32 {s(d)}, 5, {s(sJ)}")
    A(f"s_cmp_eq_u32 {s(sJ)}, 5")
    A(f"s_cselect_b32 {s(d)}, 3, {s(d)}")


def prologue(A):
    X, N = 64, 128
    XA = 192
    A("s_cmp_ge_u32 s2, 256")
    A("s_cbranch_scc1 L_end")
    A.stamp("start")
    A("s_load_dwordx16 s[44:59], s[0:1], 0")
    A("s_load_dwordx8 s[60:67], s[0:1], 64")
    A(f"s_load_dwordx2 {s(WS, 2)}, s[0:1], 104")
    A("v_lshrrev_b32 v3, 6, v0")
    A("v_and_b32 v1, 63, v0")
    A(f"v_readfirstlane_b32 {s(sW)}, v3")
    A("v_lshlrev_b32 v2, 4, v1")
    A(f"s_lshr_b32 {s(sJ)}, s2, 3")
    A(f"s_and_b32 {s(sJ)}, {s(sJ)}, 7")
    A(f"s_lshr_b32 {s(sG)}, s2, 6")
    A(f"s_cmp_lt_u32 {s(sJ)}, 5")
    A("s_cbranch_scc1 L_nocode")
    A("s_getpc_b64 s[38:39]")
    A("L_pc:")
    A(f"s_sub_u32 s3, {s(sJ)}, 5")
    A("s_lshl_b32 s3, s3, 2")
    A(f"s_add_u32 s3, s3, {s(sG)}")
    A("s_lshl_b32 s3, s3, 12")
    A("v_lshrrev_b32 v4, 3, v0")
    A("v_lshl_add_u32 v4, v4, 7, s3")
    A("v_min_u32 v4, L_end-L_pc, v4")
    A("global_load_dword v5, v4, s[38:39]")
    A("L_nocode:")
    A(f"s_lshl_b32 {s(sG)}, {s(sG)}, 3")
    A("s_and_b32 s3, s2, 7")
    A(f"s_add_u32 {s(sG)}, {s(sG)}, s3")
    A(f"s_and_b32 {s(sTT)}, {s(sW)}, 1")
    A(f"s_lshr_b32 {s(sHP)}, {s(sW)}, 1")
    A(f"s_mov_b32 {s(WS + 2)}, {WS_SIZE}")
    A(f"s_mov_b32 {s(WS + 3)}, 0x20000")
    A("s_bfe_u32 s38, s2, 0x10007")
    A("s_lshl_b32 s39, s38, 2")
    A("s_xor_b32 s3, s3, s39")
    A("s_lshl_b32 s38, s38, 3")
    A("s_add_u32 s3, s3, s38")
    A("s_lshl_b32 s3, s3, 1")
    A("s_bfe_u32 s38, s2, 0x10006")
    A("s_add_u32 s3, s3, s38")
    A(f"s_sub_u32 s41, {s(sJ)}, 2")
    A("s_lshl_b32 s41, s41, 5")
    A("s_add_u32 s41, s41, s3")
    msetup, mloads = mod_loads()
    for x in msetup:
        A(x)
    A(f"s_and_b32 s38, {s(sJ)}, 1")
    A("s_lshl_b32 s38, s38, 15")
    A(f"s_lshl_b32 s43, {s(sG)}, 16")
    A(f"s_lshl_b32 s40, {s(sW)}, 13")
    A("s_add_u32 s43, s43, s40")
    A("s_add_u32 s43, s43, s38")
    nonce = f"buffer_load_dword v7, off, {s(WS, 4)}, 0 offset:{WS_NONCE} sc1"

    def x_loads():
        for i in range(16):
            A(f"buffer_load_dwordx4 {v(XA + 4 * i, 4)}, v2, {s(SX, 4)}, s43 offen offset:{(i & 3) * 1024}")
            if i in (3, 11):
                A("s_add_u32 s43, s43, 4096")
            if i == 7:
                A("s_xor_b32 s43, s43, 0x9000")

    def get_tag():
        A(f"v_readfirstlane_b32 {s(sTAG)}, v7")
        A(f"s_mul_i32 {s(sTAG)}, {s(sTAG)}, 1664525")
        A(f"s_add_u32 {s(sTAG)}, {s(sTAG)}, 1013904223")

    A.srd(T1, 64, 512 * 6144)
    A.stamp("karg")
    A.srd(T2, 62, 1024)
    A.srd(SX, 44, 2048 * 1024)
    A(f"s_cmp_lg_u32 {s(sJ)}, 2")
    A("s_cbranch_scc1 L_not_crit")
    for g in mloads:
        for x in g:
            A(x)
    A(nonce)
    A.stamp("modiss")
    if "modarr" in STAMPS:
        A("s_waitcnt vmcnt(9)")
        A.stamp("carr")
        A("s_waitcnt vmcnt(8)")
        A.stamp("mod1st")
        A("s_waitcnt vmcnt(1)")
        A.stamp("modarr")
        A("s_waitcnt vmcnt(0)")
        A.stamp("nonce")
    mod_partial(A, 8)
    get_tag()
    A("s_waitcnt lgkmcnt(0)")
    A("s_barrier")
    A(f"s_cmp_lg_u32 {s(sW)}, 0")
    A("s_cbranch_scc1 L_crit_done")
    mod_publish(A, 8)
    A("L_crit_done:")
    A.stamp("modpub")
    x_loads()
    A("s_branch L_ln")
    A("L_not_crit:")
    x_loads()
    A(nonce)
    A(f"s_cmp_gt_u32 {s(sJ)}, 2")
    A("s_cbranch_scc1 L_role_rl")
    A(f"s_cmp_eq_u32 {s(sHP)}, 0")
    A(f"s_cselect_b32 {s(WSF)}, s48, s50")
    A(f"s_cselect_b32 {s(WSF + 1)}, s49, s51")
    A(f"s_mov_b32 {s(WSF + 2)}, 16384")
    A(f"s_mov_b32 {s(WSF + 3)}, 0x20000")
    A(f"s_lshl_b32 m0, {s(sW)}, 13")
    A(f"s_lshl_b32 s38, {s(sTT)}, 13")
    for i in range(8):
        A(f"buffer_load_dwordx4 v2, {s(WSF, 4)}, s38 offen offset:{(i & 3) * 1024} lds ; def:kvw")
        if i == 3:
            A("s_add_u32 m0, m0, 4096")
            A("s_add_u32 s38, s38, 4096")
    A("s_branch L_ln")
    A("L_role_rl:")
    A(f"s_cmp_gt_u32 {s(sJ)}, 4")
    A("s_cbranch_scc1 L_nomod2")
    for x in sum(mloads, []):
        A(x)
    A("s_branch L_ln")
    A("L_nomod2:")
    relayout_setup(A)

    A("L_ln:")
    A.stamp("ln0")
    A.srd(SOUT, 66, 2048 * 1024)
    A.srd(WSF, 46, 512 * 1024)
    slice_voffset(A, 6, 4)
    A(f"s_lshl_b32 s38, {s(sW)}, 17")
    column_id(A, 39)
    A("s_lshl_b32 s39, s39, 7")
    A("s_add_u32 s38, s38, s39")
    A(f"s_lshl_b32 s39, {s(sW)}, 14")
    A(f"s_add_u32 m0, s39, {L_WQ}")
    wq = []
    for i in range(16):
        wq.append([f"buffer_load_dwordx4 v6, {s(WSF, 4)}, s38 offen lds ; def:wq"]
                  + (["s_add_u32 m0, m0, 1024", "s_add_u32 s38, s38, 8192"] if i < 15 else []))
    cnt = [0]

    def V(x, every=20):
        A(x)
        cnt[0] += 1
        if cnt[0] >= every and wq:
            cnt[0] = 0
            for y in wq.pop(0):
                A(y)

    S1, S2 = 96, 112
    A("v_mov_b32 v3, 0x3f803f80")
    for i in range(16):
        E = A if i < 15 else V
        E(f"v_dot2_f32_bf16 {v(S1 + i)}, {v(XA + 4 * i)}, v3, 0")
        E(f"v_dot2_f32_bf16 {v(S2 + i)}, {v(XA + 4 * i)}, {v(XA + 4 * i)}, 0")
        if i:
            for d in range(1, 4):
                E(f"v_dot2c_f32_bf16 {v(S1 + i - 1)}, {v(XA + 4 * i - 4 + d)}, v3")
                E(f"v_dot2c_f32_bf16 {v(S2 + i - 1)}, {v(XA + 4 * i - 4 + d)}, {v(XA + 4 * i - 4 + d)}")
            if i <= 8:
                for d in range(4):
                    E(f"v_lshlrev_b32 {v(N + 8 * (i - 1) + 2 * d)}, 16, {v(XA + 4 * (i - 1) + d)}")
                    E(f"v_and_b32 {v(N + 8 * (i - 1) + 2 * d + 1)}, 0xffff0000, {v(XA + 4 * (i - 1) + d)}")
    cnt[0] = 100
    for d in range(1, 4):
        V(f"v_dot2c_f32_bf16 {v(S1 + 15)}, {v(XA + 60 + d)}, v3")
        V(f"v_dot2c_f32_bf16 {v(S2 + 15)}, {v(XA + 60 + d)}, {v(XA + 60 + d)}")
    EV = 14
    for op, n in (("v_permlane32_swap_b32", 8), ("v_permlane16_swap_b32", 4)):
        for b in (S1, S2):
            for i in range(n):
                V(f"{op} {v(b + i)}, {v(b + i + n)}", EV)
        for b in (S1, S2):
            for i in range(n):
                V(f"v_add_f32 {v(b + i)}, {v(b + i)}, {v(b + i + n)}", EV)
    for b in (S1, S2):
        for i in range(2):
            V(f"v_add_f32_dpp {v(b + i)}, {v(b + i)}, {v(b + i)} row_ror:8 row_mask:0xf bank_mask:0x3", EV)
    for b in (S1, S2):
        for i in range(2):
            V(f"v_add_f32_dpp {v(b + i)}, {v(b + i + 2)}, {v(b + i + 2)} row_ror:8 row_mask:0xf bank_mask:0xc", EV)
    unp = []
    for i in range(8, 16):
        for d in range(4):
            src, dst = XA + 4 * i + d, N + 8 * i + 2 * d
            assert dst + 1 <= src
            unp.append(f"v_lshlrev_b32 {v(dst)}, 16, {v(src)}")
            unp.append(f"v_and_b32 {v(dst + 1)}, 0xffff0000, {v(src)}")

    def fill(n):
        for _ in range(n):
            V(unp.pop(0), EV)

    for b in (S1, S2):
        A(f"v_add_f32_dpp {v(b)}, {v(b)}, {v(b)} row_half_mirror row_mask:0xf bank_mask:0x5")
    fill(1)
    for b in (S1, S2):
        A(f"v_add_f32_dpp {v(b)}, {v(b + 1)}, {v(b + 1)} row_half_mirror row_mask:0xf bank_mask:0xa")
    for qp in ("[1,0,3,2]", "[2,3,0,1]"):
        fill(1)
        for b in (S1, S2):
            A(f"v_add_f32_dpp {v(b)}, {v(b)}, {v(b)} quad_perm:{qp} {DPPF}")
    A(f"v_mul_f32 v3, {f2u(1 / 512)}, {v(S1)}")
    A(f"v_mul_f32 v4, {f2u(1 / 512)}, {v(S2)}")
    A("v_fma_f32 v4, -v3, v3, v4")
    A("v_max_f32 v4, 0, v4")
    A(f"v_add_f32 v4, {f2u(1e-5)}, v4")
    A("v_rsq_f32 v4, v4")
    fill(1)
    A("v_mul_f32 v3, -v3, v4")
    for i in range(16):
        V(f"v_readlane_b32 {s(44 + 2 * i)}, v4, {4 * i}", EV)
        V(f"v_readlane_b32 {s(45 + 2 * i)}, v3, {4 * i}", EV)
    fill(len(unp))
    for i in range(16):
        for d in range(4):
            n = v(N + 8 * i + 2 * d, 2)
            V(f"v_pk_fma_f32 {n}, {n}, {s(44 + 2 * i, 2)}, {s(44 + 2 * i, 2)} op_sel:[0,0,1] op_sel_hi:[1,0,1]", EV)
    while wq:
        for y in wq.pop(0):
            A(y)
    A.stamp("ln1")
    A.srd(WSF, WS, 0)
    A.srd(WSS, WS, WS_SIZE)
    A("v_and_b32 v8, 3, v1")
    A("v_lshlrev_b32 v8, 3, v8")
    A("v_bfe_u32 v9, v1, 2, 2")
    A("v_lshrrev_b32 v11, 5, v1")
    A(f"s_cmp_eq_u32 {s(sJ)}, 2")
    A("s_cbranch_scc1 L_hop1")
    get_tag()
    A(f"s_cmp_lt_u32 {s(sJ)}, 2")
    A("s_cbranch_scc1 L_kvw")
    A(f"s_cmp_gt_u32 {s(sJ)}, 4")
    A("s_cbranch_scc1 L_rl_loads")
    mod_partial(A, 64)
    A("s_branch L_hop1")
    A("L_rl_loads:")
    relayout_loads(A)
    A("s_branch L_hop1")
    A("L_kvw:")
    A("v_lshrrev_b32 v3, 4, v1")
    A("v_lshl_add_u32 v3, v3, 3, v9")
    A("v_lshl_add_u32 v3, v3, 5, v8")
    A(f"s_lshl_b32 s38, {s(sHP)}, 14")
    A("v_add_u32 v3, s38, v3")
    A("s_barrier ; use:kvw")
    for ks in range(16):
        A(f"ds_read_b64_tr_b16 {a(128 + 4 * ks, 2)}, v3 offset:{ks * 1024}")
        A(f"ds_read_b64_tr_b16 {a(130 + 4 * ks, 2)}, v3 offset:{ks * 1024 + 128}")
    A("L_hop1:")
    A.stamp("hop1")
    A("v_lshlrev_b32 v3, 4, v0")
    A(f"s_mov_b32 s38, {WS_MODG}")
    A("v_lshlrev_b32 v4, 3, v0")
    A(f"v_add_u32 v4, {L_MODL}, v4")
    A(f"s_and_b32 s39, {s(sJ)}, 1")
    A(f"s_mul_i32 s44, s39, {HT}")
    A("s_xor_b32 s39, s39, 1")
    A(f"s_mul_i32 s39, s39, {HT}")
    A(f"s_lshl_b32 s45, {s(sW)}, 7")
    A("v_mul_u32_u24 v5, 528, v1")
    A("v_add_u32 v5, s45, v5")
    A("v_add_u32 v6, s39, v5")
    A("v_add_u32 v5, s44, v5")
    A(f"v_add_u32 v7, {L_MODL}, v2")
    A.spin([f"buffer_load_dwordx4 v[12:15], v3, {s(WS, 4)}, s38 offen sc1"],
           [f"v_xor_b32 v13, {s(sTAG)}, v13", f"v_xor_b32 v15, {s(sTAG)}, v15", "v_or_b32 v15, v13, v15",
            "v_cmp_ne_u32 vcc, 0, v15"])
    A(f"s_cmp_le_u32 {s(sJ)}, 4")
    A("s_cbranch_scc1 L_no_rl")
    relayout_finish(A, 64)
    A("L_no_rl:")
    A("v_mov_b32 v13, v14")
    A("v_xor_b32 v16, 0x80008000, v12")
    A("v_xor_b32 v17, 0x80008000, v14")
    A("ds_write_b64 v4, v[12:13]")
    A("ds_write_b64 v4, v[16:17] offset:2048")
    A("s_waitcnt lgkmcnt(0)")
    A("s_barrier")
    A.stamp("hop1done")
    SH, SC = 16, 24
    A("ds_read_b128 v[12:15], v7")
    A("ds_read_b128 v[64:67], v7 offset:1024")
    A(f"s_sub_u32 s40, {s(sJ)}, 3")
    A(f"s_lshl_b32 s3, {s(sW)}, 1")
    A("s_or_b32 s3, s3, s40")
    A("s_cmp_gt_u32 s3, 1")
    A("s_cbranch_scc1 L_nopub2")
    mod_publish(A, 70)
    A("L_nopub2:")
    for d in range(4):
        A(f"v_lshlrev_b32 {v(SH + 2 * d)}, 16, {v(12 + d)}")
        A(f"v_and_b32 {v(SH + 2 * d + 1)}, 0xffff0000, {v(12 + d)}")
    for d in range(4):
        A(f"v_lshlrev_b32 {v(SC + 2 * d)}, 16, {v(64 + d)}")
        A(f"v_and_b32 {v(SC + 2 * d + 1)}, 0xffff0000, {v(64 + d)}")

    def modrow(i):
        t = 64 + 4 * (i & 3)
        for d in range(4):
            n = v(N + 8 * i + 2 * d, 2)
            A(f"v_pk_fma_f32 {n}, {n}, {v(SC + 2 * d, 2)}, {v(SH + 2 * d, 2)}")
        for d in range(4):
            A(f"v_cvt_pk_bf16_f32 {v(t + d)}, {v(N + 8 * i + 2 * d)}, {v(N + 8 * i + 2 * d + 1)}")
        A(f"ds_write_b128 {v(5 + (i >> 3))}, {v(t, 4)} offset:{16 * (i & 7)}")

    for i in range(8):
        modrow(i)
    A(f"s_cmp_ge_u32 {s(sJ)}, 2")
    A("s_cbranch_scc1 L_rows2")
    KA = "v[80:83]"
    A("v_lshrrev_b32 v3, 4, v1")
    A("v_and_b32 v4, 15, v1")
    A("v_mul_u32_u24 v12, 528, v3")
    A("v_lshl_add_u32 v12, v4, 4, v12")
    A(f"s_lshl_b32 s38, {s(sTT)}, 8")
    A("s_add_u32 s38, s38, s44")
    A("v_add_u32 v12, s38, v12")
    A(f"s_lshl_b32 s38, {s(sG)}, 1")
    A(f"s_add_u32 s38, s38, {s(sJ)}")
    A("s_lshl_b32 s38, s38, 11")
    A(f"s_add_u32 s38, s38, {WS_KV}")
    A(f"s_cmp_lg_u32 {s(sHP)}, 0")
    A("s_cbranch_scc1 L_vjob")
    A("v_lshlrev_b32 v13, 4, v3")
    A(f"v_add_u32 v13, {L_MODL + 2048}, v13")
    for ks in range(16):
        A(f"ds_read_b128 {a(64 + 4 * ks, 4)}, v13 offset:{ks * 64}")
        if ks == 11:
            A("s_waitcnt lgkmcnt(12)")
            A("s_barrier")
    A("v_and_b32 v3, 1, v3")
    A("v_lshl_add_u32 v4, v3, 5, v4")
    A(f"s_lshl_b32 s39, {s(sTT)}, 4")
    A("v_add_lshl_u32 v4, v4, s39, 4")
    for ks in range(16):
        A(f"{MF16} {KA}, {a(128 + 4 * ks, 4)}, {a(64 + 4 * ks, 4)}, {'0' if ks == 0 else KA}")
        A(f"ds_read_b128 {a(4 * ks, 4)}, v12 offset:{ks * 2112}")
    for ks in range(16):
        A(f"{MF16} {KA}, {a(128 + 4 * ks, 4)}, {a(4 * ks, 4)}, {KA}")
    A("v_cvt_pk_bf16_f32 v84, v80, v81")
    A("v_cvt_pk_bf16_f32 v86, v80, v81")
    A("v_cvt_pk_bf16_f32 v85, v82, v83")
    A("v_cvt_pk_bf16_f32 v87, v82, v83")
    A("v_permlane32_swap_b32 v84, v86")
    A("v_permlane32_swap_b32 v85, v87")
    A("s_mov_b32 exec_hi, 0")
    A(f"buffer_store_dwordx4 v[84:87], v4, {s(WS, 4)}, s38 offen sc1 ; def:pub1")
    A("s_mov_b32 exec_hi, -1")
    A("s_branch L_rows2")
    A("L_vjob:")
    A("s_waitcnt lgkmcnt(0)")
    A("s_barrier")
    for ks in range(16):
        A(f"ds_read_b128 {a(4 * ks, 4)}, v12 offset:{ks * 2112}")
    A("v_lshrrev_b32 v3, 1, v3")
    A("v_lshl_add_u32 v4, v3, 4, v4")
    A(f"s_lshl_b32 s39, {s(sTT)}, 5")
    A("v_add_lshl_u32 v4, v4, s39, 4")
    for ks in range(16):
        A(f"{MF16} {KA}, {a(4 * ks, 4)}, {a(128 + 4 * ks, 4)}, {'0' if ks == 0 else KA}")
    A("v_cvt_pk_bf16_f32 v84, v80, v81")
    A("v_cvt_pk_bf16_f32 v86, v80, v81")
    A("v_cvt_pk_bf16_f32 v85, v82, v83")
    A("v_cvt_pk_bf16_f32 v87, v82, v83")
    A("v_permlane16_swap_b32 v84, v86")
    A("v_permlane16_swap_b32 v85, v87")
    A("s_mov_b32 exec_lo, 0xffff")
    A("s_mov_b32 exec_hi, 0xffff")
    A(f"buffer_store_dwordx4 v[84:87], v4, {s(WS, 4)}, s38 offen offset:1024 sc1 ; def:pub1")
    A("s_mov_b64 exec, -1")
    A("L_rows2:")
    A.stamp("kvst")
    for i in range(8, 16):
        modrow(i)
    A("v_mul_u32_u24 v3, 528, v11")
    A("v_and_b32 v4, 31, v1")
    A("v_lshl_add_u32 v3, v4, 4, v3")
    A(f"s_mul_i32 s38, {s(sTT)}, {HT}")
    A("v_add_u32 v3, s38, v3")
    slice_read_addr(A, 4, 9, 3, L_WQ)
    A(f"s_cmp_ge_u32 {s(sJ)}, 2")
    A("s_cbranch_scc1 L_nokvflag")
    A(f"v_mov_b32 v8, {s(sTAG)}")
    A(f"s_lshl_b32 s38, {s(sG)}, 1")
    A(f"s_add_u32 s38, s38, {s(sJ)}")
    A("s_lshl_b32 s38, s38, 7")
    A(f"s_add_u32 s38, s38, {WS_FKV}")
    A(f"s_cmp_eq_u32 {s(sW)}, 0")
    A(f"s_cselect_b32 {s(WSF + 2)}, {s(WS + 2)}, 0")
    A("s_waitcnt lgkmcnt(0) ; use:pub1")
    A("s_barrier")
    A(f"buffer_store_dword v8, off, {s(WSF, 4)}, s38 sc1")
    A("s_branch L_qgemm")
    A("L_nokvflag:")
    A("s_waitcnt lgkmcnt(0) ; use:wq")
    A("s_barrier")
    A("L_qgemm:")
    A.stamp("rows")
    NB, D = 8, 4
    for ks in range(32 + D):
        k = ks - D
        if k >= 0:
            A(f"{MF} v[16:31], {a(32 + 4 * (k % NB), 4)}, {a(4 * (k % NB), 4)}, {'0' if k == 0 else 'v[16:31]'}")
        if ks < 32:
            A(f"ds_read_b128 {a(4 * (ks % NB), 4)}, v3 offset:{ks * 1056}")
            A(f"ds_read_b64_tr_b16 {a(32 + 4 * (ks % NB), 2)}, v4 offset:{ks * 2048}")
            A(f"ds_read_b64_tr_b16 {a(34 + 4 * (ks % NB), 2)}, v4 offset:{ks * 2048 + 512}")
    column_id(A, 3)
    A(f"s_mov_b32 {s(sJ)}, s3")
    A("s_barrier")
    A.stamp("qdone")


Q, S, O, KF, VF, XR = 8, [16, 32], [48, 64], [80, 84], [88, 96], 112
vK, vV0, vV1, IDX = 4, 5, 6, 7
U = [128, 256, 384]


def attention(A):
    NPRE = 4
    A("v_and_b32 v3, 15, v1")
    A("v_lshlrev_b32 v105, 9, v3")
    A(f"s_lshl_b32 s48, {s(sW)}, 7")
    A(f"s_add_u32 s48, s48, {WS_FKV}")
    kv_ld = [f"buffer_load_dword v104, v105, {s(WS, 4)}, s48 offen sc1"]
    A(kv_ld[0])
    A("v_and_b32 v0, 31, v1")
    A("v_lshlrev_b32 v0, 10, v0")
    A("v_lshrrev_b32 v106, 5, v1")
    A("v_lshl_add_u32 v0, v106, 3, v0")
    A(f"s_lshl_b32 s52, {s(sG)}, 16")
    A(f"s_lshl_b32 s3, {s(sTT)}, 15")
    A("s_add_u32 s52, s52, s3")
    A(f"s_lshl_b32 s3, {s(sJ)}, 7")
    A("s_add_u32 s52, s52, s3")
    A(f"s_lshl_b32 s3, {s(sHP)}, 6")
    A("s_add_u32 s52, s52, s3")
    A(f"s_load_dwordx2 {s(T1, 2)}, s[0:1], 32")
    A(f"s_load_dwordx2 {s(T2, 2)}, s[0:1], 64")
    A(f"s_mov_b32 {s(T1 + 2)}, {512 * 1024}")
    A(f"s_mov_b32 {s(T2 + 2)}, {1376 * 1024}")
    A(f"s_mov_b32 s46, {f2u(QSCALE)}")
    A(f"s_lshl_b32 s44, {s(sW)}, 11")
    A(f"s_add_u32 s44, s44, {WS_KV}")
    A(f"s_mul_i32 m0, {s(sW)}, {KVB}")
    for d in range(8):
        A(f"v_pk_mul_f32 {v(16 + 2 * d, 2)}, {v(16 + 2 * d, 2)}, s[46:47] op_sel_hi:[1,0]")
    for d in range(8):
        A(f"v_cvt_pk_bf16_f32 {v(Q + d)}, {v(16 + 2 * d)}, {v(17 + 2 * d)}")
    A(f"v_mul_u32_u24 v3, {KVB}, v1")
    for d in range(4):
        A(f"v_mov_b32 {v(120 + d)}, 0x3f803f80")
        A(f"v_mov_b32 {v(124 + d)}, 0")
    A("ds_write_b128 v3, v[120:123] offset:2048")
    A("ds_write_b128 v3, v[124:127] offset:2064")
    A(f"v_mov_b32 {v(vK)}, v2")
    A("v_lshrrev_b32 v106, 5, v1")
    A("v_lshlrev_b32 v106, 4, v106")
    A("v_and_b32 v107, 15, v1")
    A("v_add_lshl_u32 v106, v106, v107, 4")
    A(f"v_add_u32 {v(vV0)}, 1024, v106")
    A(f"v_add_u32 {v(vV1)}, 1536, v106")
    A("v_and_b32 v108, 27, v1")
    A("v_cmp_eq_u32 vcc, 16, v108")
    A("v_mov_b32 v106, 2048")
    A("v_mov_b32 v107, 2064")
    A(f"v_cndmask_b32 {v(vV0)}, {v(vV0)}, v106, vcc")
    A(f"v_cndmask_b32 {v(vV1)}, {v(vV1)}, v106, vcc")
    A("v_cmp_lt_u32 vcc, 16, v108")
    A(f"v_mov_b32 {v(IDX)}, 0xdddddddd")
    A("s_nop 0")
    A(f"v_cndmask_b32 {v(vV0)}, {v(vV0)}, v107, vcc")
    A(f"v_cndmask_b32 {v(vV1)}, {v(vV1)}, v107, vcc")
    for i in range(32):
        A(f"v_mov_b32 {v(O[0] + i)}, 0")
    A.check_or_spin(kv_ld, [f"v_cmp_ne_u32 vcc, {s(sTAG)}, v104"])
    A.stamp("hop2")

    def kv_dma(n):
        tok = "kv0" if n < 2 else ("kv1" if n <= 5 else "kv2")
        pre = [] if n == 0 else [f"s_add_u32 m0, m0, {4 * KVB}", "s_add_u32 s44, s44, 8192"]
        return [(pre, f"buffer_load_dwordx4 v2, {s(WS, 4)}, s44 offen sc1 lds ; def:{tok}"),
                ([], f"buffer_load_dwordx4 v2, {s(WS, 4)}, s44 offen offset:1024 sc1 lds ; def:{tok}")]

    for n in range(NPRE):
        for pre, x in kv_dma(n):
            for y in pre:
                A(y)
            A(x)
    A(f"s_lshl_b32 s45, {s(sW)}, 3")
    A(f"s_add_u32 s45, s45, {s(sJ)}")
    A("s_lshl_b32 s47, s45, 15")
    A(f"s_add_u32 s47, s47, {WS_WGU + 64 * 32768}")
    A("s_cmp_lt_u32 s45, 22")
    A(f"s_cselect_b32 s47, s47, {WS_SIZE}")
    A("s_lshl_b32 s46, s45, 15")
    A(f"s_add_u32 s46, s46, {WS_WGU}")
    A(f"s_lshl_b32 s48, {s(sJ)}, 7")
    A(f"s_lshl_b32 s49, {s(sW)}, 17")
    A("s_add_u32 s48, s48, s49")
    A(f"s_lshl_b32 s49, {s(sW)}, 14")
    slice_voffset(A, 124, 125)
    A("v_add_u32 v126, 7168, v124")
    A(f"s_mov_b32 s50, {WS_FRL}")
    A(f"s_lshl_b32 s51, {s(sG)}, 5")
    A(f"s_add_u32 s51, s51, {WS_FRL}")
    A(f"s_lshl_b32 s53, {s(sJ)}, 2")
    A("s_add_u32 s53, s53, s51")
    A(f"s_lshl_b32 s54, {s(sJ)}, 8")
    A(f"s_add_u32 s54, s54, {WS_MODG + 4096}")
    A("s_getreg_b32 s55, hwreg(HW_REG_XCC_ID, 0, 3)")
    A(f"s_add_u32 s56, s55, {s(sTAG)}")
    A(f"s_cmp_eq_u32 {s(sW)}, 0")
    A(f"s_cselect_b32 {s(WSF + 2)}, {s(WS + 2)}, 0")
    A("v_and_b32 v3, 7, v1")
    A("v_lshlrev_b32 v3, 2, v3")
    A(f"s_lshl_b32 {s(sGA)}, {s(sG)}, 18")
    A(f"s_add_u32 {s(sGA)}, {s(sGA)}, {WS_GA}")
    A("s_mul_i32 s57, s45, 6144")
    A(f"s_add_u32 s57, s57, {s(sGA)}")
    A("v_lshrrev_b32 v110, 4, v1")
    A("v_and_b32 v111, 15, v1")
    A("v_lshlrev_b32 v111, 4, v111")
    A("v_lshl_add_u32 v110, v110, 11, v111")
    A("v_mov_b32 v109, s56")
    A("v_lshlrev_b32 v111, 3, v111")
    if "pad" in OPT:
        A("s_mov_b64 exec, 0")
        for w in range(3):
            A(f"s_cmp_eq_u32 {s(sW)}, {w}")
            A(f"s_cbranch_scc1 L_page{w} ; warm")
        A("s_branch L_page3 ; warm")
        A("L_warmed:")
        A("s_mov_b64 exec, -1")
    A("s_branch L_aligned")
    A("L_gap:")
    A(".p2align 12")
    A("L_aligned:")
    A("s_waitcnt lgkmcnt(0) ; use:kv0")
    A("s_barrier")
    A.stamp("attn0")
    A(f"ds_read_b128 {v(KF[0], 4)}, {v(vK)}")
    A(f"ds_read_b128 {v(VF[0], 4)}, {v(vV0)}")
    A(f"ds_read_b128 {v(VF[0] + 4, 4)}, {v(vV1)}")
    A(f"ds_read_b128 {v(KF[1], 4)}, {v(vK)} offset:{KVB}")
    A(f"buffer_store_dword v109, off, {s(WSF, 4)}, s53 sc1")
    for q in range(2):
        A(f"{MF} {v(S[q], 16)}, {v(KF[0], 4)}, {v(Q + 4 * q, 4)}, 0")
    A("s_nop 7")

    KT_CHECK = 11
    grp = {}
    for n in range(NPRE, 16):
        (pre, x), (_, y) = kv_dma(n)
        grp[n - NPRE] = [pre, [x, y]]
    frl_ld = [f"buffer_load_dwordx4 v[104:107], v2, {s(WS, 4)}, s50 offen sc1",
              f"buffer_load_dword v108, v3, {s(WS, 4)}, s51 offen sc1",
              f"buffer_load_dwordx4 v[120:123], v110, {s(WS, 4)}, s54 offen sc1"]
    for q in range(4):
        grp[2 + (q >> 1)][1].append(f"buffer_load_dwordx2 {v(XR + 2 * q, 2)}, v0, {s(SX, 4)}, s52 offen offset:{16 * q}")
    grp[7][1].append(frl_ld[2])
    grp[8][1] += frl_ld[:2]

    def unit_loads(p, first, n):
        sreg = 47 if p == 2 else 46
        pre = []
        if first & 3 == 0 and not (first == 0 and p != 1):
            pre = [f"s_add_u32 {s(sreg)}, {s(sreg)}, {4096 if first else (32 * 32768 - 7 * 4096)}"]
        return [pre, [f"buffer_load_dwordx4 {r(U[p] + 4 * ks, 4)}, v2, {s(WS, 4)}, {s(sreg)} offen offset:{(ks & 3) * 1024} sc1"
                      for ks in range(first, first + n)]]

    later = [unit_loads(p, 4 * i, 4) for p in range(2) for i in range(8)]
    for i in range(8):
        pre, x = unit_loads(2, 2 * i, 2)
        pre = pre + ([f"s_add_u32 m0, s49, {L_WO}"] if i == 0 else ["s_add_u32 m0, m0, 2048", "s_add_u32 s48, s48, 16384"])
        later.append([pre, x + [f"buffer_load_dwordx4 v124, {s(T1, 4)}, s48 offen lds ; def:wo",
                                f"buffer_load_dwordx4 v126, {s(T1, 4)}, s48 offen offset:1024 lds ; def:wo"]])
    later += [unit_loads(2, 16 + 4 * i, 4) for i in range(4)]
    if "notouch" not in OPT:
        later[14][1].append("global_load_dword v109, v111, s[58:59]")
        later[24][1].append("global_load_dword v125, v111, s[60:61]")
        later[25][1].append("global_load_dword v110, v111, s[60:61] offset:2048")
        t = [f"buffer_load_dword {v(104 + i)}, v111, {s(WS, 4)}, {'s57' if i < 2 else 's63'} offen offset:{(i & 1) * 2048} sc1"
             for i in range(3)]
        later.append([["s_add_u32 s63, s57, 4096"], t + [f"buffer_load_dword v108, off, {s(SOUT, 4)}, s52 sc1"]])
        NA = P("wda", 2)
        if NA:
            A(f"s_lshr_b32 s3, {s(sG)}, 3")
            A("s_lshl_b32 s3, s3, 2")
            A(f"s_add_u32 s3, s3, {s(sW)}")
            A("s_lshl_b32 s3, s3, 14")
            A(f"s_lshl_b32 s64, {s(sJ)}, 7")
            A("s_add_u32 s64, s64, s3")
            A("v_lshlrev_b32 v127, 3, v111")
            for i in range(NA):
                g = later[-2 - P("wdg", 1) * (NA - 1 - i)]
                if i:
                    g[0].append("s_add_u32 s64, s64, 0x40000")
                g[1].append(f"buffer_load_dword {v(120 + i)}, v127, {s(T2, 4)}, s64 offen")
        A("s_getpc_b64 s[60:61]")
        A("L_pc2:")
        A(f"s_lshl_b32 s3, {s(sW)}, 11")
        A("s_add_u32 s3, s3, L_post-L_pc2-8192")
        A("s_add_u32 s58, s60, s3")
        A("s_addc_u32 s59, s61, 0")
        A(f"s_lshl_b32 s3, {s(sW)}, 12")
        A("s_min_u32 s3, s3, L_end-L_post-4096")
        A("s_add_u32 s3, s3, L_post-L_pc2")
        A("s_add_u32 s60, s60, s3")
        A("s_addc_u32 s61, s61, 0")
    SPAN = P("span", 38)
    for i, g in enumerate(later):
        kt = 12 + (i * SPAN) // (len(later) - 1)
        assert kt not in grp and (kt >= 32 or not any("def:wo" in x for x in g[1]))
        grp[kt] = g

    base = [0]

    def off(kt):
        o = kt * KVB - base[0]
        assert 0 <= o < 65536 - 2096
        return o

    def salu(kt, n):
        while n and kt in grp and grp[kt][0]:
            A(grp[kt][0].pop(0))
            n -= 1

    rest = []
    for kt in range(64):
        kb = kt & 1
        A.stamp(f"kt{kt}")
        if kt in (28, 56):
            base[0] += 28 * KVB
            for x in (vK, vV0, vV1):
                A(f"v_add_u32 {v(x)}, {28 * KVB}, {v(x)}")
        for q in range(2):
            p = 1 - q
            pv = kb if q == 1 else 1 - kb
            pk = 1 - kb if q == 1 else kb
            first = kt == 0 and q == 0
            for i in range(16):
                A(f"v_exp_f32 {v(S[q] + i)}, {v(S[q] + i)}")
                if i == 1:
                    if not first:
                        A(f"{SM} {v(O[p], 16)}, {v(VF[pv] + 4, 4)}, {v(S[p] + 8, 8)}, {v(IDX)}")
                    if q == 0:
                        A("s_waitcnt lgkmcnt(0)")
                        if kt == 6:
                            A("s_barrier ; use:kv1")
                        elif kt == 22:
                            A("s_barrier ; use:kv2")
                        elif kt == 32:
                            A("s_barrier")
                        elif kt == 58:
                            A("s_barrier ; use:wo")
                        elif kt == KT_CHECK:
                            chk = []
                            for d in range(5):
                                chk.append(f"v_subrev_u32 {v(104 + d)}, {s(sTAG)}, {v(104 + d)}")
                            chk += ["v_or3_b32 v104, v104, v105, v106", "v_or3_b32 v104, v104, v107, v108",
                                    f"v_xor_b32 v121, {s(sTAG)}, v121", f"v_xor_b32 v123, {s(sTAG)}, v123",
                                    "v_or3_b32 v104, v104, v121, v123", "v_cmp_lt_u32 vcc, 7, v104"]
                            A.check_or_spin(frl_ld, chk)
                            A("v_and_b32 v121, 0xffff0000, v120")
                            A("v_lshlrev_b32 v120, 16, v120")
                            A("v_and_b32 v123, 0xffff0000, v122")
                            A("v_lshlrev_b32 v122, 16, v122")
                            A(f"v_add_u32 v110, {L_OWN}, v2")
                            A("ds_write_b128 v110, v[120:123]")
                            A(f"v_mov_b32 v109, {s(sTAG)}")
                            A("v_cmp_ne_u32 vcc, s55, v108")
                            A("s_cmp_eq_u32 s2, 0")
                            A(f"s_cselect_b32 {s(WSF + 2)}, 4, 0")
                            A(f"buffer_store_dword v109, off, {s(WSF, 4)}, 0 offset:{WS_NONCE} sc1")
                            if "slow" in OPT:
                                A("s_cmp_eq_u32 s2, 999")
                            else:
                                A("s_cmp_eq_u64 vcc, 0")
                            A(f"s_cselect_b32 {s(WSF + 2)}, {s(WS + 2)}, 0")
                            A(f"s_cselect_b32 {s(WSS + 2)}, 0, {s(WS + 2)}")
                        for x in rest:
                            A(x)
                        rest = []
                    elif kt in grp:
                        assert not grp[kt][0]
                        rest = grp.pop(kt)[1]
                        nsplit = P("split", 2)
                        for _ in range((len(rest) + nsplit - 1) // nsplit if len(rest) > P("mins", 1) else len(rest)):
                            A(rest.pop(0))
                if i == 4:
                    if not first and not (q == 1 and kt == 63):
                        A(f"{MF} {v(S[p], 16)}, {v(KF[pk], 4)}, {v(Q + 4 * p, 4)}, 0")
                    if q == 0 and kt < 63:
                        salu(kt, 1)
                        A(f"ds_read_b128 {v(VF[1 - kb], 4)}, {v(vV0)} offset:{off(kt + 1)}")
                    if q == 1 and kt < 62:
                        A(f"ds_read_b128 {v(KF[kb], 4)}, {v(vK)} offset:{off(kt + 2)}")
                if i == 9:
                    A(f"{SM} {v(O[q], 16)}, {v(VF[kb], 4)}, {v(S[q], 8)}, {v(IDX)}")
                    if q == 0:
                        salu(kt, 2)
                        if kt < 63:
                            A(f"ds_read_b128 {v(VF[1 - kb] + 4, 4)}, {v(vV1)} offset:{off(kt + 1)}")
                    elif P("split", 2) == 3:
                        for _ in range((len(rest) + 1) // 2):
                            A(rest.pop(0))
    assert not grp
    A(f"s_add_u32 s46, {s(sGA)}, {GA_FG}")
    A(f"s_lshl_b32 s47, {s(sJ)}, 2")
    A(f"{SM} {v(O[1], 16)}, {v(VF[1] + 4, 4)}, {v(S[1] + 8, 8)}, {v(IDX)}")
    A.stamp("attn1")


def attn_epilogue(A):
    A("L_post:")
    A(f"s_add_u32 s47, s47, {s(sW)}")
    A("s_lshl_b32 s47, s47, 2")
    A("s_add_u32 s47, s47, s46")
    A(f"s_lshl_b32 s48, {s(sTT)}, 5")
    A(f"s_lshl_b32 s49, {s(sJ)}, 2")
    A("s_add_u32 s48, s48, s49")
    A(f"s_lshl_b32 s49, {s(sHP)}, 1")
    A("s_add_u32 s48, s48, s49")
    A("s_lshl_b32 s48, s48, 10")
    A(f"s_add_u32 s49, s48, {s(sGA)}")
    A("s_mov_b32 s40, 0")
    A("L_attn_ok:")
    for q in range(2):
        A(f"v_rcp_f32 {v(O[q] + 10)}, {v(O[q] + 8)}")
        if q == 0:
            A(f"s_mov_b32 s50, {f2u(2.0 ** 120)}")
        else:
            A(f"s_mov_b32 s51, {f2u(2.0 ** -90)}")
        for d in range(4):
            o = v(O[q] + 2 * d, 2)
            A(f"v_pk_mul_f32 {o}, {o}, {v(O[q] + 10, 2)} op_sel_hi:[1,0]")
        for d in range(4):
            A(f"v_cvt_pk_bf16_f32 {v(120 + 4 * q + d)}, {v(O[q] + 2 * d)}, {v(O[q] + 2 * d + 1)}")
        A.xstore("buffer_store_dwordx4", v(120 + 4 * q, 4), "v2", "s49", f"offset:{1024 * q}", "o")
    for q in range(2):
        t = 104 + q
        A(f"v_add_f32 {v(t)}, abs({v(O[q])}), {v(O[q] + 8)}")
        for i in range(1, 8):
            A(f"v_add_f32 {v(t)}, abs({v(O[q] + i)}), {v(t)}")
    A("v_add_f32 v104, v104, v105")
    A(f"v_min_f32 v105, {v(O[0] + 8)}, {v(O[1] + 8)}")
    A("v_cmp_nge_f32 vcc, s50, v104")
    A("v_cmp_nle_f32 s[38:39], s51, v105")
    A("s_or_b64 vcc, vcc, s[38:39]")
    A("s_cbranch_vccnz L_fallback")
    A("L_attn_done:")
    A(f"v_mov_b32 v7, {s(sTAG)}")


def fallback(A):
    A("L_fallback:")
    A("s_cmp_lg_u32 s40, 0")
    A("s_cbranch_scc1 L_attn_done")
    A("s_mov_b32 s40, 1")
    M = [104, 105]
    for q in range(2):
        A(f"v_mov_b32 {v(M[q])}, 0xff800000")
    A(f"s_mov_b32 s38, {WS_KV}")
    A("L_fb_max:")
    A(f"buffer_load_dwordx4 {v(KF[0], 4)}, v2, {s(WS, 4)}, s38 offen sc1")
    for q in range(2):
        A(f"{MF} {v(S[q], 16)}, {v(KF[0], 4)}, {v(Q + 4 * q, 4)}, 0")
    for q in range(2):
        for i in range(0, 16, 2):
            A(f"v_max3_f32 {v(M[q])}, {v(M[q])}, {v(S[q] + i)}, {v(S[q] + i + 1)}")
    A("s_add_u32 s38, s38, 2048")
    A(f"s_cmp_lt_u32 s38, {WS_KV + 64 * 2048}")
    A("s_cbranch_scc1 L_fb_max")
    for q in range(2):
        A(f"v_mov_b32 v106, {v(M[q])}")
        A(f"v_permlane32_swap_b32 v106, {v(M[q])}")
        A(f"v_max_f32 {v(M[q])}, {v(M[q])}, v106")
    for i in range(32):
        A(f"v_mov_b32 {v(O[0] + i)}, 0")
    for i in range(8):
        A(f"v_mov_b32 {v(VF[0] + i)}, 0x3f803f80")
    A("v_lshrrev_b32 v106, 5, v1")
    A("v_lshlrev_b32 v106, 4, v106")
    A("v_and_b32 v107, 15, v1")
    A("v_add_lshl_u32 v106, v106, v107, 4")
    A(f"s_mov_b32 s38, {WS_KV}")
    A("L_fb_sum:")
    A(f"buffer_load_dwordx4 {v(KF[0], 4)}, v2, {s(WS, 4)}, s38 offen sc1")
    A("s_mov_b32 exec_lo, 0xffff")
    A("s_mov_b32 exec_hi, 0xffff")
    A(f"buffer_load_dwordx4 {v(VF[0], 4)}, v106, {s(WS, 4)}, s38 offen offset:1024 sc1")
    A(f"buffer_load_dwordx4 {v(VF[0] + 4, 4)}, v106, {s(WS, 4)}, s38 offen offset:1536 sc1")
    A("s_mov_b64 exec, -1")
    for q in range(2):
        A(f"{MF} {v(S[q], 16)}, {v(KF[0], 4)}, {v(Q + 4 * q, 4)}, 0")
    for q in range(2):
        for i in range(16):
            A(f"v_sub_f32 {v(S[q] + i)}, {v(S[q] + i)}, {v(M[q])}")
        for i in range(16):
            A(f"v_exp_f32 {v(S[q] + i)}, {v(S[q] + i)}")
        for h in range(2):
            A(f"{SM} {v(O[q], 16)}, {v(VF[0] + 4 * h, 4)}, {v(S[q] + 8 * h, 8)}, {v(IDX)}")
    A("s_add_u32 s38, s38, 2048")
    A(f"s_cmp_lt_u32 s38, {WS_KV + 64 * 2048}")
    A("s_cbranch_scc1 L_fb_sum")
    A("s_nop 11")
    A("s_branch L_attn_ok")


X1 = 80


def own_vec(A, dst, vec):
    for q in range(4):
        A(f"ds_read_b128 {v(dst + 4 * q, 4)}, v6 offset:{vec * 256 + q * 32}")


def outproj(A):
    B, ACC, AR = 16, [80, 96], [8, 12, 120, 124]
    A(f"s_lshl_b32 s38, {s(sHP)}, 15")
    slice_read_addr(A, 4, 5, 2, "s38")
    A("v_xor_b32 v5, 64, v4")

    seq = [(k, t) for k in range(12) for t in range(2)] + [(k, t) for t in (1, 0) for k in range(12, 16)]

    def aread(m):
        k, t = seq[m]
        A(f"ds_read_b64_tr_b16 {v(AR[m & 3], 2)}, {v(4 + t)} offset:{k * 2048}")
        A(f"ds_read_b64_tr_b16 {v(AR[m & 3] + 2, 2)}, {v(4 + t)} offset:{k * 2048 + 1024}")

    A("v_lshrrev_b32 v6, 5, v1")
    A("v_lshlrev_b32 v6, 4, v6")
    A(f"s_lshl_b32 s38, {s(sHP)}, 7")
    A(f"s_add_u32 s38, s38, {L_OWN}")
    A("v_add_u32 v6, s38, v6")
    A("v_lshlrev_b32 v104, 1, v3")
    A(f"s_lshl_b32 s38, {s(sHP)}, 4")
    A(f"s_add_u32 s38, s38, {s(sTT)}")
    A("s_lshl_b32 s38, s38, 2")
    A("s_add_u32 s38, s38, s46")
    A(f"s_lshl_b32 s39, {s(sTT)}, 15")
    A(f"s_lshl_b32 s40, {s(sHP)}, 14")
    A("s_add_u32 s39, s39, s40")
    A(f"s_add_u32 s39, s39, {s(sGA)}")
    for i in range(4):
        aread(i)
    A.xflag("s47", 0, 7, "o")
    A.spin([f"buffer_load_dword v105, v104, {s(WS, 4)}, s38 offen sc1"], ["v_cmp_ne_u32 vcc, v7, v105"])
    A.stamp("e1")
    def oload(k):
        A(f"buffer_load_dwordx4 {v(B + 4 * k, 4)}, v2, {s(WS, 4)}, s39 offen offset:{(k & 3) * 1024} sc1")
        if k & 3 == 3 and k < 15:
            A("s_add_u32 s39, s39, 4096")

    NO = P("no", 8)
    for k in range(NO):
        oload(k)
    GA, SH, SC, T = 16, 32, 48, 64
    wr = []
    for m, (k, t) in enumerate(seq):
        A(f"{MF} {v(ACC[t], 16)}, {v(AR[m & 3], 4)}, {v(B + 4 * k, 4)}, {'0' if k == 0 else v(ACC[t], 16)}")
        if m & 1 == 0 and NO + (m >> 1) < 16:
            oload(NO + (m >> 1))
        if m + 4 < 32:
            aread(m + 4)
        if "wd1" in OPT:
            NR, M = P("wdrows", 16), P("wdat", 21)
            if m == M - 3:
                A(f"s_lshr_b32 s38, {s(sG)}, 3")
                A("s_lshl_b32 s38, s38, 2")
                A(f"s_add_u32 s38, s38, {s(sW)}")
            if m == M - 2:
                A(f"s_mul_i32 s38, s38, {NR * 1024}")
                A(f"s_lshl_b32 s40, {s(sJ)}, 7")
                A("s_add_u32 s38, s38, s40")
            if m == M - 1:
                A(f"s_add_u32 s38, s38, {P('wda', 2) * 0x40000}")
                A(f"v_min_u32 v7, {NR - 1}, v1")
                A("v_lshlrev_b32 v7, 10, v7")
            if m == M:
                A(f"buffer_load_dword v7, v7, {s(T2, 4)}, s38 offen")
        if m == 27:
            A(f"s_xor_b32 s38, {s(sW)}, 2")
            A("s_lshl_b32 s38, s38, 12")
            A(f"s_add_u32 s38, s38, {L_RED}")
            A("v_add_u32 v4, s38, v2")
        if m == 28:
            own_vec(A, GA, 0)
            wr = [f"ds_write_b128 v4, {v(ACC[1] + 4 * q, 4)} offset:{q * 1024}" for q in range(4)]
        if m >= 29:
            A(wr.pop(0))
    A(wr.pop(0))
    A.stamp("oproj")
    A(f"s_lshl_b32 s38, {s(sW)}, 12")
    A(f"s_add_u32 s38, s38, {L_RED}")
    A("v_add_u32 v5, s38, v2")
    for d in range(8):
        A(f"v_lshlrev_b32 {v(T + 2 * d)}, 16, {v(XR + d)}")
        A(f"v_and_b32 {v(T + 2 * d + 1)}, 0xffff0000, {v(XR + d)}")
    A("s_waitcnt lgkmcnt(0)")
    A("s_barrier")
    for q in range(4):
        A(f"ds_read_b128 {v(ACC[1] + 4 * q, 4)}, v5 offset:{q * 1024}")
    for d in range(8):
        A(f"v_pk_fma_f32 {v(T + 2 * d, 2)}, {v(X1 + 2 * d, 2)}, {v(GA + 2 * d, 2)}, {v(T + 2 * d, 2)}")
    A(f"s_lshl_b32 s38, {s(sTT)}, 15")
    A(f"s_add_u32 s38, s38, {s(sGA)}")
    A(f"s_add_u32 s38, s38, {GA_STAT}")
    A(f"s_lshl_b32 s39, {s(sJ)}, 10")
    A(f"s_lshl_b32 s40, {s(sHP)}, 3")
    A("s_add_u32 s39, s39, s40")
    A("s_add_u32 s39, s39, s38")
    A("s_add_u32 s40, s38, 4096")
    for d in range(8):
        A(f"v_pk_fma_f32 {v(X1 + 2 * d, 2)}, {v(ACC[1] + 2 * d, 2)}, {v(GA + 2 * d, 2)}, {v(T + 2 * d, 2)}")
        if d == 0:
            A(f"v_pk_mul_f32 v[10:11], {v(X1, 2)}, {v(X1, 2)}")
        elif d == 1:
            A(f"v_pk_add_f32 v[8:9], {v(X1, 2)}, {v(X1 + 2, 2)}")
        else:
            A(f"v_pk_add_f32 v[8:9], v[8:9], {v(X1 + 2 * d, 2)}")
        if d:
            A(f"v_pk_fma_f32 v[10:11], {v(X1 + 2 * d, 2)}, {v(X1 + 2 * d, 2)}, v[10:11]")
    A("v_add_f32 v8, v8, v9")
    A("v_add_f32 v10, v10, v11")
    A(f"v_mov_b32 v9, {s(sTAG)}")
    A("v_permlane32_swap_b32 v8, v10")
    A("v_add_f32 v8, v8, v10")
    A.xstore("buffer_store_dwordx2", "v[8:9]", "v2", "s39")
    A.stamp("stat")
    A(f"v_mov_b32 v7, {s(sTAG)}")
    own_vec(A, SH, 1)
    own_vec(A, SC, 2)
    ffn_setup(A)
    G = 96
    lds = [f"buffer_load_dwordx4 {v(G + 4 * i, 4)}, v2, {s(WS, 4)}, {'s38' if i < 4 else 's40'} offen offset:{(i & 3) * 1024} sc1"
           for i in range(8)]
    chk = []
    for i in range(8):
        g = G + 4 * i
        if i == 0:
            chk += [f"v_min_u32 v10, {v(g + 1)}, {v(g + 3)}", f"v_max_u32 v11, {v(g + 1)}, {v(g + 3)}",
                    f"v_add_f32 v12, {v(g)}, {v(g + 2)}"]
        else:
            chk += [f"v_min3_u32 v10, v10, {v(g + 1)}, {v(g + 3)}", f"v_max3_u32 v11, v11, {v(g + 1)}, {v(g + 3)}",
                    f"v_add_f32 v12, v12, {v(g)}", f"v_add_f32 v12, v12, {v(g + 2)}"]
    chk += ["v_xor_b32 v10, v7, v10", "v_xor_b32 v11, v7, v11", "v_or_b32 v10, v10, v11", "v_cmp_ne_u32 vcc, 0, v10"]
    A.spin(lds, chk)
    A.stamp("e2a")
    A(f"v_mul_f32 v12, {f2u(1 / 512)}, v12")
    A("v_mov_b32 v13, v12")
    A(f"s_lshl_b32 s38, {s(sW)}, 5")
    A("v_permlane32_swap_b32 v12, v13")
    A("v_fma_f32 v13, -v12, v12, v13")
    A("v_max_f32 v13, 0, v13")
    A(f"v_add_f32 v13, {f2u(1e-5)}, v13")
    A("v_rsq_f32 v14, v13")
    A("s_add_u32 s38, s38, s46")
    A("v_mul_f32 v15, -v12, v14")
    for hh in range(2):
        for d in range(4 * hh, 4 * hh + 4):
            A(f"v_pk_fma_f32 {v(T + 2 * d, 2)}, {v(X1 + 2 * d, 2)}, v[14:15], v[14:15] op_sel:[0,0,1] op_sel_hi:[1,0,1]")
        for d in range(4 * hh, 4 * hh + 4):
            A(f"v_pk_fma_f32 {v(T + 2 * d, 2)}, {v(T + 2 * d, 2)}, {v(SC + 2 * d, 2)}, {v(SH + 2 * d, 2)}")
        for d in range(4 * hh, 4 * hh + 4):
            A(f"v_cvt_pk_bf16_f32 {v(16 + d)}, {v(T + 2 * d)}, {v(T + 2 * d + 1)}")
        A.xstore("buffer_store_dwordx4", v(16 + 4 * hh, 4), "v2", "s49", f"offset:{1024 * hh}", "h")
    A(f"s_lshl_b32 s40, {s(sW)}, 13")
    A(f"s_add_u32 s39, s40, {s(sGA)}")
    A(f"s_add_u32 m0, s40, {L_H}")
    A(f"v_add_u32 v4, {L_H}, v2")
    A.xflag("s47", 128, 7, "h")
    A.spin([f"buffer_load_dword v8, v3, {s(WS, 4)}, s38 offen offset:128 sc1"], ["v_cmp_ne_u32 vcc, v7, v8"])
    A.hcopy = []
    for c in range(4):
        for i in range(4):
            A.hcopy.append(f"buffer_load_dwordx4 v2, {s(WS, 4)}, s39 offen offset:{i * 1024} sc1 lds")
        if c < 3:
            x = 0x1000 if c == 1 else 0x8000
            A.hcopy += [f"s_xor_b32 m0, m0, {x}", f"s_xor_b32 s39, s39, {x}"]
    for _ in range(P("nh", 14)):
        A(A.hcopy.pop(0))
    A.stamp("e2b")


ORD = [8 * (i >> 2) + (i & 3) for i in range(16)] + [8 * (i >> 2) + 4 + (i & 3) for i in range(16)]


def ffn_setup(A):
    A(f"s_lshl_b32 s55, {s(sW)}, 14")
    A(f"s_lshl_b32 s54, {s(sJ)}, 7")
    A("s_add_u32 s54, s54, s55")
    A(f"s_add_u32 s41, {s(sGA)}, {GA_H2[0]}")
    A(f"s_lshl_b32 s56, {s(sTT)}, 5")
    A(f"s_add_u32 s56, s56, {s(sW)}")
    A("s_lshl_b32 s56, s56, 10")
    A("s_add_u32 s56, s56, s41")
    A("s_xor_b32 s57, s56, 32768")
    A("s_lshl_b32 s58, s45, 10")
    A("s_add_u32 s58, s58, s41")
    A("s_add_u32 s59, s58, 32768")
    A("s_lshl_b32 s60, s45, 2")
    A("s_add_u32 s60, s60, s46")
    A(f"s_lshl_b32 s61, {s(sW)}, 2")
    A("s_add_u32 s61, s61, s46")


def ffn(A):
    ACC = [16, 48]
    BR = 96
    PK, vWD, vA = 8, 12, 13
    D = 16
    BORD = [(st, i) for st in list(range(16)) + [21] for i in range(2)] + [(st, i) for i in (1, 0) for st in range(16, 21)]

    def areg(ai):
        return U[0] + 4 * ORD[ai] if ai < 32 else U[1] + 4 * ORD[ai - 32]

    def breg(bi):
        return U[1] + 4 * ORD[12 + bi] if bi < 20 else U[2] + 4 * ORD[bi - 20]

    A("v_lshlrev_b32 v3, 2, v3")
    slice_voffset(A, vWD, vA)
    slice_read_addr(A, vA, vA + 1, 2, "s55")
    A(f"v_xor_b32 {v(vA + 1)}, 64, {v(vA)}")
    A("v_and_b32 v15, 31, v1")
    A("v_lshlrev_b32 v15, 2, v15")
    A("v_lshrrev_b32 v1, 5, v1")
    A("v_lshl_add_u32 v0, v1, 3, v0")
    A(f"v_add_u32 v1, 7168, {v(vWD)}")

    def flag_ld(p):
        if p == 0:
            return [f"buffer_load_dword v5, v15, {s(WS, 4)}, s46 offen offset:256 sc1"]
        return [f"buffer_load_dword v5, v3, {s(WS, 4)}, s61 offen offset:{256 + 128 * p} sc1"]

    def bread(n, t):
        return f"ds_read_b128 {v(BR + 8 * (n & 3) + 4 * t, 4)}, v4 offset:{t * 32768 + ORD[n % 32] * 1024}"

    mf = []
    for n in range(96):
        p, kk = n >> 5, n & 31
        for t in range(2):
            acc = v(ACC[p & 1] + 16 * t, 16)
            mf.append(f"{MF} {acc}, {r(U[p] + 4 * ORD[kk], 4)}, {v(BR + 8 * (n & 3) + 4 * t, 4)}, {'0' if kk == 0 else acc}")
    HEAD = 7
    seq = [(st, t) for st in range(HEAD) for t in (2, 3)] + [(st, t) for st in range(HEAD) for t in (0, 1)]
    seq += [(st, t) for st in list(range(HEAD, 16)) + [21] for t in range(4)]
    seq += [(st, t) for t in (3, 2, 1, 0) for st in range(16, 21)]
    for st, t in seq:
        acc = v(D + 16 * t, 16)
        mf.append(f"{MF} {acc}, {r(areg(2 * st + (t >> 1)), 4)}, {r(breg(2 * st + (t & 1)), 4)}, {'0' if st == 0 else acc}")
    M21 = 192 + 64

    at = {}
    F = [P("f0", 16), P("f1", 16), P("f2", 13)]
    PL = [P("p0", 16), P("p1", 12), P("p2", 9)]
    C = [P("c0", 12), P("c1", 12), P("c2", 10)]
    LAG = P("lag", 24)
    qepi, qsync, qmem, qrd = [], [], [], []
    for p in range(3):
        e0 = 64 * (p + 1) + (3 if p < 2 else 1)
        for t in range(2):
            b = ACC[p & 1] + 16 * t
            for i in range(8):
                qepi.append([e0, 1, [f"v_max_f32 {v(b + i)}, 0, {v(b + i)}"], None, 0])
            for i in range(8):
                qepi.append([e0, 1, [f"v_mul_f32 {v(b + i)}, {v(b + i)}, {v(b + 8 + i)}"], None, 0])
            for d in range(4):
                qepi.append([e0, 1, [f"v_cvt_pk_bf16_f32 {v(PK + d)}, {v(b + 2 * d)}, {v(b + 2 * d + 1)}"], None, 0])
            e = ("chk0", 0) if p == 1 else e0
            qepi.append([e, 3, [f"buffer_store_dwordx4 {v(PK, 4)}, v2, {s(WSF, 4)}, {s(58 + t)} offen ; def:h2_{p}"], None, 0])
            qepi.append([e, 3, [f"buffer_store_dwordx4 {v(PK, 4)}, v2, {s(WSS, 4)}, {s(58 + t)} offen sc1 ; def:h2_{p}"],
                         f"st{p}" if t else None, 0])
            if p < 2:
                qepi.append([e, 1, [f"s_add_u32 {s(58 + t)}, {s(58 + t)}, {(GA_H2[p + 1] - GA_H2[p]) & 0xffffffff}"], None, 0])
        o = 256 + 128 * p
        qsync.append([(f"st{p}", F[p]), 3, [f"buffer_store_dword v7, off, {s(WSF, 4)}, s60 offset:{o} ; use:h2_{p}"], None, 0])
        qsync.append([0, 2, [f"buffer_store_dword v7, off, {s(WSS, 4)}, s60 offset:{o} sc1"], f"fl{p}", 0])
        if p == 2:
            qsync.append([0, 3, [f"s_lshl_b32 s38, {s(sW)}, 2", "s_sub_u32 s38, 88, s38", "v_cmp_gt_u32 vcc, s38, v3"], "cmp", 0])
            qsync.append([("cmp", 2), 1, ["v_cndmask_b32 v3, 0, v3, vcc"], None, 0])
        qsync.append([(f"fl{p}", PL[p]), 2, flag_ld(p), f"pl{p}", 0])
        qsync.append([(f"pl{p}", C[p]), 4, lambda E, p=p: E.check_or_spin(flag_ld(p), ["v_cmp_ne_u32 vcc, v7, v5"]), f"chk{p}", 0])
    for x in A.hcopy:
        qmem.append([0, 2, [x], None, 2] if "lds" in x else [0, 1, [x], None, 0])
    for d in range(44):
        st, hf = d >> 1, d & 1
        e = 4 if st < 8 else (f"rd{st - 8}", 8)
        if not hf:
            qmem.append([0, 1, [f"s_add_u32 m0, s55, {(st & 7) * 2048}"], None, 0])
            if st:
                qmem.append([0, 1, ["s_add_u32 s54, s54, 65536"], None, 0])
        qmem.append([e, 2, [f"buffer_load_dwordx4 {'v1' if hf else v(vWD)}, {s(T2, 4)}, s54 offen offset:{hf * 1024} lds ; def:wd{st}"],
                     f"dma{d}", 1])
        o = (st & 7) * 2048
        qrd.append([max(0, 2 * d + 2), 0, [], None, 0])
        qrd.append([(f"dma{d | 1}", LAG), 3 - hf, [f"ds_read_b64_tr_b16 {r(areg(d), 2)}, {v(vA + hf)} offset:{o} ; use:wd{st}",
                                              f"ds_read_b64_tr_b16 {r(areg(d) + 2, 2)}, {v(vA + hf)} offset:{o + 1024}"],
                    f"rd{st}" if hf else None, 0])
    pos = lambda x: GA_H2[x >> 3] + (x & 7) * 4096
    cur = [0, 0]
    for st, i in BORD:
        bi = 2 * st + i
        if st:
            qmem.append([0, 1, [f"s_add_u32 {s(56 + i)}, {s(56 + i)}, {(pos(st) - pos(cur[i])) & 0xffffffff}"], None, 0])
            cur[i] = st
        qmem.append([2 * (44 + bi) + 2, 0, [], None, 0])
        qmem.append([(f"chk{st >> 3}", 0), 2,
                     [f"buffer_load_dwordx4 {r(breg(bi), 4)}, v2, {s(WS, 4)}, {s(56 + i)} offen sc1"], f"b{bi}", 1])
    qtail = [[M21 - 12, 1, ["v_add_u32 v8, s55, v2"], None, 0]]
    for i in range(1, 4):
        qtail.append([0, 3, [f"s_xor_b32 s38, {s(sW)}, {i}", "s_lshl_b32 s38, s38, 14", f"v_add_u32 {v(8 + i)}, s38, v2"], None, 0])
    for q in range(4):
        qtail.append([0, 2, [f"ds_read_b128 {v(96 + 4 * q, 4)}, v6 offset:{3 * 256 + q * 32}"], None, 0])
    for t in (3, 2, 1):
        e = M21 + 4 + 5 * (4 - t)
        qtail.append([e - 1, 5, ["s_nop 4"], None, 0])
        qtail.append([e, 5, ["s_nop 4"], None, 0])
        for q in range(4):
            qtail.append([0, 3, [f"ds_write_b128 v8, {v(D + 16 * t + 4 * q, 4)} offset:{(t - 1) * 4096 + q * 1024}"], None, 0])
    queues = [qmem, qsync, qepi, qrd, qtail]

    A("s_barrier ; use:hs0")
    A.stamp("up0")
    for n in range(3):
        for t in range(2):
            A(bread(n, t))
    E = K()
    E.nlab = 1000
    E("L_no_unit2:")
    last_bulk = [-9, -9, -9]
    for m, x in enumerate(mf):
        if m == 64:
            A.stamp("r1")
        if m == 128:
            A.stamp("r2")
            A("s_cmp_ge_u32 s45, 22")
            A("s_cbranch_scc1 L_no_unit2")
        if m == 192:
            A("L_up_done:")
            A.stamp("up1")
        if m == M21:
            A(f"s_cmp_ge_u32 {s(sW)}, 2")
            A("s_cbranch_scc1 L_down_tail")
        if m == M21 + 4:
            A("L_down_tail:")
        if m >= 192:
            st, t = seq[m - 192]
            assert at[f"b{2 * st + (t & 1)}"] + 10 <= m, (m, st, t, at[f"b{2 * st + (t & 1)}"])
            assert t >= 2 or not qepi, (m, len(qepi), at)
        A.stamp(f"m{m}")
        A(x)
        budget = 5
        if m == 26:
            A("s_barrier ; use:hs1")
            budget -= 2
        if m + 6 < 192:
            A(bread((m >> 1) + 3, m & 1))
            budget -= 1
        if m + 1 in (128, M21):
            budget -= 2
        if M21 <= m < M21 + 4:
            continue
        first = budget
        for q in queues:
            while q:
                e, cost, ins, name, bulk = q[0]
                if isinstance(e, tuple):
                    if e[0] not in at or at[e[0]] + e[1] > m:
                        break
                elif e > m:
                    break
                if cost > budget or (bulk and (budget < first or (m - last_bulk[-2] < 3 if "chk2" in at else m - last_bulk[-1] < 2)
                                               or (bulk == 1 and m < 180 and m - last_bulk[0] < P("rate", 7)))):
                    break
                if q is qmem and 192 <= m and qepi and True:
                    break
                q.pop(0)
                budget -= cost
                for X in ([A, E] if 128 <= m < 192 else [A]):
                    if callable(ins):
                        ins(X)
                    else:
                        for y in ins:
                            X(y)
                if name:
                    at[name] = m
                if bulk:
                    last_bulk = last_bulk[1:] + [m]
    for e, cost, ins, name, bulk in qtail:
        for y in ins:
            A(y)
    assert not (qsync or qepi or qrd or qmem)
    if "v" in OPT:
        print({k: x for k, x in at.items() if k[:2] in ("st", "fl", "pl", "ch") or k in ("dma43", "rd21", "b0", "b15", "b16", "b31", "b42", "b40")}, len(qtail))
    E(f"s_mov_b32 {s(WSF + 2)}, 0")
    E(f"s_mov_b32 {s(WSS + 2)}, 0")
    E("s_branch L_up_done")
    A.stubs += [x.text for x in E.ins] + E.stubs
    A.stamp("down1")
    A("s_waitcnt vmcnt(0) lgkmcnt(0)")
    A("s_barrier")
    R = 128
    for q in range(4):
        for t in range(3):
            A(f"ds_read_b128 {v(R + 16 * t + 4 * q, 4)}, {v(9 + t)} offset:{t * 4096 + q * 1024}")
    for q in range(4):
        for d in range(2 * q, 2 * q + 2):
            A(f"v_pk_add_f32 {v(D + 2 * d, 2)}, {v(D + 2 * d, 2)}, {v(R + 2 * d, 2)}")
            A(f"v_pk_add_f32 {v(R + 16 + 2 * d, 2)}, {v(R + 16 + 2 * d, 2)}, {v(R + 32 + 2 * d, 2)}")
            A(f"v_pk_add_f32 {v(D + 2 * d, 2)}, {v(D + 2 * d, 2)}, {v(R + 16 + 2 * d, 2)}")
            A(f"v_pk_fma_f32 {v(D + 2 * d, 2)}, {v(D + 2 * d, 2)}, {v(96 + 2 * d, 2)}, {v(X1 + 2 * d, 2)}")
            A(f"v_cvt_pk_bf16_f32 {v(32 + d)}, {v(D + 2 * d)}, {v(D + 2 * d + 1)}")
        if q & 1:
            b = 32 + 2 * (q - 1)
            A(f"v_permlane32_swap_b32 {v(b)}, {v(b + 2)}")
            A(f"v_permlane32_swap_b32 {v(b + 1)}, {v(b + 3)}")
            A(f"buffer_store_dwordx4 {v(b, 4)}, v0, {s(SOUT, 4)}, s52 offen offset:{16 * (q - 1)}")


def build():
    A = K()
    prologue(A)
    attention(A)
    early, A.stubs = A.stubs, []
    attn_epilogue(A)
    outproj(A)
    ffn(A)
    if STAMPS:
        A("s_waitcnt vmcnt(0)")
        A.stamp("end")
        A("s_lshl_b32 s38, s2, 2")
        A(f"s_add_u32 s38, s38, {s(sW)}")
        A("s_lshl_b32 s38, s38, 7")
        A(f"s_add_u32 s38, s38, {WS_STAMP}")
        for i in range(len(STAMPS)):
            A(f"v_mov_b32 v4, {s(76 + 2 * i)}")
            A(f"buffer_store_dword v4, off, {s(WS, 4)}, s38 offset:{8 * i}")
    if any(o.startswith("pad=") for o in OPT):
        A("L_pad:")
        A("s_sleep 1")
        A("s_memrealtime s[96:97]")
        A("s_sub_u32 s96, s96, s98")
        A("s_cmp_lt_u32 s96, 6000")
        A("s_cbranch_scc1 L_pad")
    A("s_endpgm")
    for x in A.stubs:
        A(x)
    A("L_end:")
    A("s_endpgm")
    B = K()
    for x in early:
        B(x)
    fallback(B)
    g = [x.label for x in A.ins].index("L_gap")
    A.ins[g:g + 1] = B.ins
    return A


def add_pads(A):
    if "pad" not in OPT:
        return
    sz = ins_sizes(A)
    i0 = [x.label for x in A.ins].index("L_aligned") + 1
    pos, addr, page = [], 0, 0
    i = i0
    while i < len(A.ins):
        if addr >= page * 4096 and A.ins[i].ws:
            k, ad = i, addr
            best = i
            while ad + 4 <= page * 4096 + 64 and k < len(A.ins):
                if k > i0 and A.ins[k - 1].kind == "mfma" and A.ins[k].kind == "valu":
                    best = k
                    break
                ad += sz[k]
                k += 1
            pos.append(best)
            addr += 4
            page += 1
        addr += sz[i]
        i += 1
    n = len(pos)
    assert n >= 4
    for p in reversed(range(n)):
        tgt = f"L_page{p + 4}" if p + 4 < n else "L_warmed"
        A.ins[pos[p]:pos[p]] = [Ins(f"L_page{p}:"), Ins(f"s_cbranch_execz {tgt} ; warm")]


HEAD = """; adaLN block: multi-query attention + ReGLU feed-forward, one launch of 256 workgroups (one per CU).
; Generated by gen/fused.py (hand-written generator).
; @launch grid=(256,1,1) block=(256,1,1) lds=%d
.amdgcn_target "amdgcn-amd-amdhsa--gfx950"
""" % LDS_BYTES


def main(out, opt=""):
    OPT.clear()
    OPT.update(x for x in opt.split(",") if x)
    STAMPS.clear()
    for k, names in STAMP_SETS.items():
        if k in OPT:
            STAMPS.extend(names)
    for o in OPT:
        if o.startswith("st="):
            STAMPS.extend(o[3:].split(":"))
    A = build()
    text = ("; stamps: " + ",".join(STAMPS) + "\n" if STAMPS else "") + HEAD + kernel_text(NAME + "_kernel", A, verbose="v" in OPT, post=add_pads)
    open(out, "w").write(text)


if __name__ == "__main__":
    main(sys.argv[1], sys.argv[2] if len(sys.argv) > 2 else "")
```

```python
import struct
import sys

from asmlib import Asm, Ins, a, ins_sizes, kernel_text, r, s, v

NAME = "adaLN_cond__grouped_kv_mqa__glu_gated_reglu__prompt"
WS_NONCE = 0x0
WS_MODG = 0x1000
WS_FKV = 0x4000
WS_FRL = 0x6000
WS_FG = 0x8000
WS_KV = 0x20000
WS_WGU = 0x100000
WS_B = 0x400000
WS_STAMP = 0x1C00000
WS_SIZE = 0x2000000
QSCALE = 0.25 * 1.4426950408889634
HT = 32 * 1056
L_H1 = 0
L_WQ = 2 * HT
KVB = 2080
L_SP = 64 * KVB
L_MODL = L_SP
L_OWN = L_SP + 4096
L_MPART = L_SP + 5120
L_RED = L_SP + 6144
L_WO = 0
L_H = 65536
LDS_BYTES = 163840
assert L_WQ + 65536 == L_SP and L_RED + 16384 <= LDS_BYTES

MF = "v_mfma_f32_32x32x16_bf16"
MF16 = "v_mfma_f32_16x16x32_bf16"
SM = "v_smfmac_f32_32x32x32_bf16"
DPPF = "row_mask:0xf bank_mask:0xf"
SPIN_MAX = 1 << 18

WS, WSF, WSS, SX, SOUT, T1, T2, OF, OS = 8, 12, 16, 20, 24, 28, 4, 68, 72
sW, sG, sJ, sTAG, sTT, sHP = 32, 33, 34, 35, 36, 37
sGA = 62
OPT = set()
STAMPS = []
STAMP_SETS = {
    "stA": ["start", "modpub", "ln0", "ln1", "hop1", "hop1done", "kvst", "rows", "qdone", "hop2", "attn0", "attn1", "end"],
    "stC": ["start", "attn0", "kt4", "kt8", "kt12", "kt16", "kt24", "kt32", "kt40", "kt48", "kt56", "attn1", "end"],
    "stB": ["start", "attn0", "attn1", "e1", "oproj", "stat", "e2a", "e2b", "up0", "up1", "down1", "end"],
}


def P(name, default):
    for o in OPT:
        if o.startswith(name + "="):
            return int(o.split("=")[1])
    return default


def f2u(x):
    return hex(struct.unpack("<I", struct.pack("<f", x))[0])


class K(Asm):
    def __init__(self):
        super().__init__()
        self.stubs = []
        self.nlab = 0

    def lab(self, p):
        self.nlab += 1
        return f"L_{p}_{self.nlab}"

    def stamp(self, name):
        if "pad=" + name in OPT or (name == "start" and any(o.startswith("pad=") for o in OPT)):
            self("s_memrealtime s[98:99]")
        if name in STAMPS:
            self(f"{'s_memtime' if 'cyc' in OPT else 's_memrealtime'} {s(76 + 2 * STAMPS.index(name), 2)}")

    def srd(self, d, src, size):
        self(f"s_mov_b32 {s(d)}, {s(src)}")
        self(f"s_mov_b32 {s(d + 1)}, {s(src + 1)}")
        self(f"s_mov_b32 {s(d + 2)}, {size}")
        self(f"s_mov_b32 {s(d + 3)}, 0x20000")

    def xstore(self, op, data, vaddr, soff, extra="", tok=None, out=False):
        t = f" ; def:{tok}" if tok else ""
        self(f"{op} {data}, {vaddr}, {s(OF if out else WSF, 4)}, {soff} offen {extra}{t}")
        self(f"{op} {data}, {vaddr}, {s(OS if out else WSS, 4)}, {soff} offen {extra} sc1{t}")

    def xflag(self, soff, off, vt, use):
        self(f"; use:{use}")
        self(f"buffer_store_dword {v(vt)}, off, {s(WSF, 4)}, {soff} offset:{off}")
        self(f"buffer_store_dword {v(vt)}, off, {s(WSS, 4)}, {soff} offset:{off} sc1")

    def spin(self, loads, check, sleep=0):
        L, E = self.lab("spin"), self.lab("spun")
        self("s_mov_b32 s3, 0")
        self(f"{L}:")
        for x in loads:
            self(x)
        for x in check:
            self(x)
        self(f"s_cbranch_vccz {E}")
        if sleep:
            self(f"s_sleep {sleep}")
        self("s_add_u32 s3, s3, 1")
        self(f"s_cmp_lt_u32 s3, {SPIN_MAX}")
        self(f"s_cbranch_scc1 {L}")
        self(f"{E}:")

    def check_or_spin(self, loads, check):
        L, E, S = self.lab("late"), self.lab("ok"), self.lab("lspin")
        for x in check:
            self(x)
        self(f"s_cbranch_vccnz {L}")
        self(f"{E}:")
        st = [f"{L}:", "s_mov_b32 s3, 0", f"{S}:"] + list(loads) + list(check) + [
            f"s_cbranch_vccz {E}", "s_add_u32 s3, s3, 1", f"s_cmp_lt_u32 s3, {SPIN_MAX}", f"s_cbranch_scc1 {S}",
            f"s_branch {E}"]
        self.stubs += st


SD = 32


def mod_loads(SD=SD):
    setup = ["v_lshrrev_b32 v89, 2, v0", "v_and_b32 v90, 3, v0", "v_lshlrev_b32 v91, 2, v89",
             "v_lshl_add_u32 v91, v90, 8, v91", "v_mul_u32_u24 v89, 12288, v89", "v_lshl_add_u32 v89, v90, 4, v89",
             "s_lshl_b32 s42, s41, 6"]
    loads = [[f"buffer_load_dword v88, v91, {s(T2, 4)}, 0 offen"]]
    for i in range(8):
        pre = [f"s_add_u32 s42, s42, {6144 if i & 1 else 127 * 6144}"] if i else []
        loads.append(pre + [f"buffer_load_dwordx4 {v(SD + 4 * i, 4)}, v89, {s(T1, 4)}, s42 offen"])
    return setup, loads


def mod_partial(A, T, SD=SD):
    c0, c1, acc, pm = T, T + 1, T + 4, T + 12
    A(f"v_lshlrev_b32 {v(c0)}, 16, v88")
    A(f"v_and_b32 {v(c1)}, 0xffff0000, v88")
    for x in (c0, c1):
        A(f"v_mul_f32 {v(x + 2)}, {f2u(-1.4426950408889634)}, {v(x)}")
    for x in (c0, c1):
        A(f"v_exp_f32 {v(x + 2)}, {v(x + 2)}")
    for e in range(8):
        A(f"v_mov_b32 {v(acc + e)}, 0")
    for x in (c0, c1):
        A(f"v_add_f32 {v(x + 2)}, 1.0, {v(x + 2)}")
    for x in (c0, c1):
        A(f"v_rcp_f32 {v(x + 2)}, {v(x + 2)}")
    A("s_mov_b32 s38, 0x05040100")
    A("s_mov_b32 s39, 0x07060302")
    for x in (c0, c1):
        A(f"v_mul_f32 {v(x)}, {v(x)}, {v(x + 2)}")
    A(f"v_cvt_pk_bf16_f32 {v(c0)}, {v(c0)}, {v(c1)}")
    for p in range(4):
        for d in range(4):
            w0, w1 = SD + 8 * p + d, SD + 4 + 8 * p + d
            A(f"v_perm_b32 {v(pm + 2 * d)}, {v(w1)}, {v(w0)}, s38")
            A(f"v_perm_b32 {v(pm + 1 + 2 * d)}, {v(w1)}, {v(w0)}, s39")
        for e in range(8):
            A(f"v_dot2c_f32_bf16_dpp {v(acc + e)}, {v(c0)}, {v(pm + e)} quad_perm:[{p},{p},{p},{p}] {DPPF}")
    for e in range(4):
        A(f"v_permlane32_swap_b32 {v(acc + e)}, {v(acc + 4 + e)}")
    for e in range(4):
        A(f"v_add_f32 {v(acc + e)}, {v(acc + e)}, {v(acc + 4 + e)}")
    A(f"v_lshrrev_b32 {v(c0)}, 4, v1")
    for e in range(2):
        A(f"v_permlane16_swap_b32 {v(acc + e)}, {v(acc + 2 + e)}")
    for e in range(2):
        A(f"v_add_f32 {v(acc + e)}, {v(acc + e)}, {v(acc + 2 + e)}")
    A(f"v_and_b32 {v(c1)}, 3, v1")
    A(f"v_lshl_add_u32 {v(c0)}, {v(c1)}, 2, {v(c0)}")
    for e in range(2):
        A(f"v_add_f32_dpp {v(acc + e)}, {v(acc + e)}, {v(acc + e)} row_ror:8 {DPPF}")
    A(f"s_lshl_b32 s38, {s(sW)}, 7")
    A(f"v_lshl_add_u32 {v(c0)}, {v(c0)}, 3, s38")
    for e in range(2):
        A(f"v_add_f32_dpp {v(acc + e)}, {v(acc + e)}, {v(acc + e)} row_ror:4 {DPPF}")
    A(f"v_add_u32 {v(c0)}, {L_MPART}, {v(c0)}")
    A(f"ds_write_b64 {v(c0)}, {v(acc, 2)}")


def mod_publish(A, T):
    A(f"v_and_b32 {v(T)}, 15, v1")
    A(f"v_lshlrev_b32 {v(T)}, 3, {v(T)}")
    A(f"v_add_u32 {v(T + 1)}, {L_MPART}, {v(T)}")
    P = T + 2
    for i in range(4):
        A(f"ds_read_b64 {v(P + 2 * i, 2)}, {v(T + 1)} offset:{128 * i}")
    A("s_lshr_b32 s38, s41, 4")
    A("s_cmp_eq_u32 s38, 1")
    A("s_cselect_b32 s39, 1.0, 0")
    A("s_cmp_eq_u32 s38, 4")
    A("s_cselect_b32 s39, 1.0, s39")
    A("s_lshl_b32 s38, s41, 7")
    A(f"s_add_u32 s38, s38, {WS_MODG}")
    A(f"v_pk_add_f32 {v(P, 2)}, {v(P, 2)}, {v(P + 2, 2)}")
    A(f"v_pk_add_f32 {v(P + 4, 2)}, {v(P + 4, 2)}, {v(P + 6, 2)}")
    A(f"v_pk_add_f32 {v(P, 2)}, {v(P, 2)}, {v(P + 4, 2)}")
    A(f"v_cvt_pk_bf16_f32 {v(P)}, {v(P)}, {v(P + 1)}")
    A(f"v_mov_b32 {v(P + 3)}, {s(sTAG)}")
    A(f"v_and_b32 {v(P + 1)}, 0xffff0000, {v(P)}")
    A(f"v_lshlrev_b32 {v(P)}, 16, {v(P)}")
    A(f"v_add_f32 {v(P + 1)}, s39, {v(P + 1)}")
    A(f"v_add_f32 {v(P)}, s39, {v(P)}")
    A(f"v_cvt_pk_bf16_f32 {v(P + 2)}, {v(P)}, {v(P + 1)}")
    A("s_mov_b64 exec, 0xffff")
    A(f"buffer_store_dwordx2 {v(P + 2, 2)}, {v(T)}, {s(WS, 4)}, s38 offen sc1")
    A("s_mov_b64 exec, -1")


def relayout_setup(A):
    A(f"s_sub_u32 s38, {s(sJ)}, 5")
    A("s_lshl_b32 s38, s38, 5")
    A(f"s_add_u32 s38, s38, {s(sG)}")
    A("s_lshl_b32 s38, s38, 2")
    A(f"s_add_u32 s38, s38, {s(sW)}")
    A("s_cmp_lt_u32 s38, 352")
    A(f"s_cselect_b32 s40, {512 * 2752}, 0")
    A.srd(T1, 56, "s40")
    A.srd(T2, 58, "s40")
    A("s_lshr_b32 s3, s38, 5")
    A("s_and_b32 s38, s38, 31")
    A(f"s_mul_i32 s41, s38, {16 * 2752}")
    A("s_lshl_b32 s39, s3, 8")
    A("s_add_u32 s41, s41, s39")
    A("s_lshl_b32 s42, s3, 18")
    A("s_lshl_b32 s38, s38, 10")
    A("s_add_u32 s42, s42, s38")
    A(f"s_add_u32 s42, s42, {WS_WGU}")


def relayout_loads(A):
    A("v_lshrrev_b32 v89, 4, v1")
    A("v_and_b32 v90, 15, v1")
    A("v_mul_u32_u24 v89, 2752, v89")
    A("v_lshl_add_u32 v89, v90, 4, v89")
    for q in range(8):
        A(f"buffer_load_dwordx4 {v(SD + 4 * q, 4)}, v89, {s(T2 if q & 1 else T1, 4)}, s41 offen")
        if q & 1 and q < 7:
            A(f"s_add_u32 s41, s41, {4 * 2752}")


def relayout_finish(A, T):
    A(f"s_mul_i32 s38, {s(sW)}, 9216")
    A(f"v_lshrrev_b32 {v(T)}, 4, v1")
    A(f"v_mul_u32_u24 {v(T)}, 576, {v(T)}")
    A(f"v_and_b32 {v(T + 1)}, 15, v1")
    A(f"v_lshlrev_b32 {v(T + 1)}, 4, {v(T + 1)}")
    A(f"v_add3_u32 {v(T)}, {v(T)}, {v(T + 1)}, s38")
    for q in range(8):
        A(f"ds_write_b128 {v(T)}, {v(SD + 4 * q, 4)} offset:{(q >> 1) * 4 * 576 + (q & 1) * 288}")
    A(f"v_lshl_add_u32 {v(T)}, v11, 2, v9")
    A(f"v_mul_u32_u24 {v(T)}, 576, {v(T)}")
    A(f"v_bfe_u32 {v(T + 1)}, v1, 4, 1")
    A(f"v_mul_u32_u24 {v(T + 1)}, 288, {v(T + 1)}")
    A(f"v_add3_u32 {v(T)}, {v(T)}, {v(T + 1)}, s38")
    A(f"v_add_u32 {v(T)}, {v(T)}, v8")
    A("s_waitcnt lgkmcnt(0)")
    for f in range(8):
        A(f"ds_read_b64_tr_b16 {v(SD + 4 * f, 2)}, {v(T)} offset:{32 * f}")
        A(f"ds_read_b64_tr_b16 {v(SD + 2 + 4 * f, 2)}, {v(T)} offset:{32 * f + 8 * 576}")
    for f in range(8):
        A(f"buffer_store_dwordx4 {v(SD + 4 * f, 4)}, v2, {s(WS, 4)}, s42 offen sc1 ; def:rl")
        if f < 7:
            A("s_add_u32 s42, s42, 32768")


def slice_voffset(A, d, t):
    A(f"v_lshrrev_b32 {v(d)}, 3, v1")
    A(f"v_lshrrev_b32 {v(t)}, 2, v1")
    A(f"v_and_b32 {v(t)}, 4, {v(t)}")
    A(f"v_xor_b32 {v(t)}, {v(t)}, v1")
    A(f"v_and_b32 {v(t)}, 7, {v(t)}")
    A(f"v_lshlrev_b32 {v(t)}, 4, {v(t)}")
    A(f"v_lshl_add_u32 {v(d)}, {v(d)}, 10, {v(t)}")


def slice_read_addr(A, d, t, hshift, base):
    A(f"v_lshrrev_b32 {v(d)}, 5, v1")
    A(f"v_bfe_u32 {v(t)}, v1, 2, 2")
    A(f"v_lshl_add_u32 {v(d)}, {v(d)}, {hshift}, {v(t)}")
    A(f"v_lshrrev_b32 {v(t)}, 1, {v(t)}")
    A(f"v_xor_b32 {v(t)}, {s(sHP)}, {v(t)}")
    A(f"v_lshl_add_u32 {v(d)}, {v(d)}, 1, {v(t)}")
    A(f"v_bfe_u32 {v(t)}, v1, 4, 1")
    A(f"v_lshl_add_u32 {v(d)}, {v(d)}, 1, {v(t)}")
    A(f"v_and_b32 {v(t)}, 3, v1")
    A(f"v_lshl_add_u32 {v(d)}, {v(d)}, 2, {v(t)}")
    A(f"v_lshlrev_b32 {v(d)}, 3, {v(d)}")
    A(f"v_add_u32 {v(d)}, {base}, {v(d)}")


def column_id(A, d):
    A(f"s_cmp_eq_u32 {s(sJ)}, 3")
    A(f"s_cselect_b32 {s(d)}, 5, {s(sJ)}")
    A(f"s_cmp_eq_u32 {s(sJ)}, 5")
    A(f"s_cselect_b32 {s(d)}, 3, {s(d)}")


def prologue(A):
    X, N = 64, 128
    XA = 192
    A("s_cmp_ge_u32 s2, 256")
    A("s_cbranch_scc1 L_end")
    A.stamp("start")
    A("s_load_dwordx16 s[44:59], s[0:1], 0")
    A("s_load_dwordx8 s[60:67], s[0:1], 64")
    A(f"s_load_dwordx2 {s(WS, 2)}, s[0:1], 104")
    A("v_lshrrev_b32 v3, 6, v0")
    A("v_and_b32 v1, 63, v0")
    A(f"v_readfirstlane_b32 {s(sW)}, v3")
    A("v_lshlrev_b32 v2, 4, v1")
    A(f"s_lshr_b32 {s(sJ)}, s2, 3")
    A(f"s_and_b32 {s(sJ)}, {s(sJ)}, 7")
    A(f"s_lshr_b32 {s(sG)}, s2, 6")
    A(f"s_cmp_lt_u32 {s(sJ)}, 5")
    A("s_cbranch_scc1 L_nocode")
    A("s_getpc_b64 s[38:39]")
    A("L_pc:")
    A(f"s_sub_u32 s3, {s(sJ)}, 5")
    A("s_lshl_b32 s3, s3, 2")
    A(f"s_add_u32 s3, s3, {s(sG)}")
    A("s_lshl_b32 s3, s3, 12")
    A("v_lshrrev_b32 v4, 3, v0")
    A("v_lshl_add_u32 v4, v4, 7, s3")
    A("v_min_u32 v4, L_end-L_pc, v4")
    A("global_load_dword v5, v4, s[38:39]")
    A("L_nocode:")
    A(f"s_lshl_b32 {s(sG)}, {s(sG)}, 3")
    A("s_and_b32 s3, s2, 7")
    A(f"s_add_u32 {s(sG)}, {s(sG)}, s3")
    A(f"s_and_b32 {s(sTT)}, {s(sW)}, 1")
    A(f"s_lshr_b32 {s(sHP)}, {s(sW)}, 1")
    A(f"s_mov_b32 {s(WS + 2)}, {WS_SIZE}")
    A(f"s_mov_b32 {s(WS + 3)}, 0x20000")
    A("s_bfe_u32 s38, s2, 0x10007")
    A("s_lshl_b32 s39, s38, 2")
    A("s_xor_b32 s3, s3, s39")
    A("s_lshl_b32 s38, s38, 3")
    A("s_add_u32 s3, s3, s38")
    A("s_lshl_b32 s3, s3, 1")
    A("s_bfe_u32 s38, s2, 0x10006")
    A("s_add_u32 s3, s3, s38")
    A(f"s_sub_u32 s41, {s(sJ)}, 2")
    A("s_lshl_b32 s41, s41, 5")
    A("s_add_u32 s41, s41, s3")
    msetup, mloads = mod_loads()
    for x in msetup:
        A(x)
    A(f"s_and_b32 s38, {s(sJ)}, 1")
    A("s_lshl_b32 s38, s38, 15")
    A(f"s_lshl_b32 s43, {s(sG)}, 16")
    A(f"s_lshl_b32 s40, {s(sW)}, 13")
    A("s_add_u32 s43, s43, s40")
    A("s_add_u32 s43, s43, s38")
    nonce = f"buffer_load_dword v7, off, {s(WS, 4)}, 0 offset:{WS_NONCE} sc1"

    def x_loads():
        for i in range(16):
            A(f"buffer_load_dwordx4 {v(XA + 4 * i, 4)}, v2, {s(SX, 4)}, s43 offen offset:{(i & 3) * 1024}")
            if i in (3, 11):
                A("s_add_u32 s43, s43, 4096")
            if i == 7:
                A("s_xor_b32 s43, s43, 0x9000")

    def get_tag():
        A(f"v_readfirstlane_b32 {s(sTAG)}, v7")
        A(f"s_mul_i32 {s(sTAG)}, {s(sTAG)}, 1664525")
        A(f"s_add_u32 {s(sTAG)}, {s(sTAG)}, 1013904223")

    A.srd(T1, 64, 512 * 6144)
    A.stamp("karg")
    A.srd(T2, 62, 1024)
    A.srd(SX, 44, 2048 * 1024)
    A(f"s_cmp_lg_u32 {s(sJ)}, 2")
    A("s_cbranch_scc1 L_not_crit")
    for g in mloads:
        for x in g:
            A(x)
    A(nonce)
    A.stamp("modiss")
    if "modarr" in STAMPS:
        A("s_waitcnt vmcnt(9)")
        A.stamp("carr")
        A("s_waitcnt vmcnt(8)")
        A.stamp("mod1st")
        A("s_waitcnt vmcnt(1)")
        A.stamp("modarr")
        A("s_waitcnt vmcnt(0)")
        A.stamp("nonce")
    mod_partial(A, 8)
    get_tag()
    A("s_waitcnt lgkmcnt(0)")
    A("s_barrier")
    A(f"s_cmp_lg_u32 {s(sW)}, 0")
    A("s_cbranch_scc1 L_crit_done")
    mod_publish(A, 8)
    A("L_crit_done:")
    A.stamp("modpub")
    x_loads()
    A("s_branch L_ln")
    A("L_not_crit:")
    x_loads()
    A(nonce)
    A(f"s_cmp_gt_u32 {s(sJ)}, 2")
    A("s_cbranch_scc1 L_role_rl")
    A(f"s_cmp_eq_u32 {s(sHP)}, 0")
    A(f"s_cselect_b32 {s(WSF)}, s48, s50")
    A(f"s_cselect_b32 {s(WSF + 1)}, s49, s51")
    A(f"s_mov_b32 {s(WSF + 2)}, 16384")
    A(f"s_mov_b32 {s(WSF + 3)}, 0x20000")
    A(f"s_lshl_b32 m0, {s(sW)}, 13")
    A(f"s_lshl_b32 s38, {s(sTT)}, 13")
    for i in range(8):
        A(f"buffer_load_dwordx4 v2, {s(WSF, 4)}, s38 offen offset:{(i & 3) * 1024} lds ; def:kvw")
        if i == 3:
            A("s_add_u32 m0, m0, 4096")
            A("s_add_u32 s38, s38, 4096")
    A("s_branch L_ln")
    A("L_role_rl:")
    A(f"s_cmp_gt_u32 {s(sJ)}, 4")
    A("s_cbranch_scc1 L_nomod2")
    for x in sum(mloads, []):
        A(x)
    A("s_branch L_ln")
    A("L_nomod2:")
    relayout_setup(A)

    A("L_ln:")
    A.stamp("ln0")
    A.srd(SOUT, 66, 2048 * 1024)
    A.srd(WSF, 46, 512 * 1024)
    slice_voffset(A, 6, 4)
    A(f"s_lshl_b32 s38, {s(sW)}, 17")
    column_id(A, 39)
    A("s_lshl_b32 s39, s39, 7")
    A("s_add_u32 s38, s38, s39")
    A(f"s_lshl_b32 s39, {s(sW)}, 14")
    A(f"s_add_u32 m0, s39, {L_WQ}")
    wq = []
    for i in range(16):
        wq.append([f"buffer_load_dwordx4 v6, {s(WSF, 4)}, s38 offen lds ; def:wq"]
                  + (["s_add_u32 m0, m0, 1024", "s_add_u32 s38, s38, 8192"] if i < 15 else []))
    cnt = [0]

    def V(x, every=20):
        A(x)
        cnt[0] += 1
        if cnt[0] >= every and wq:
            cnt[0] = 0
            for y in wq.pop(0):
                A(y)

    S1, S2 = 96, 112
    A("v_mov_b32 v3, 0x3f803f80")
    for i in range(16):
        E = A if i < 15 else V
        E(f"v_dot2_f32_bf16 {v(S1 + i)}, {v(XA + 4 * i)}, v3, 0")
        E(f"v_dot2_f32_bf16 {v(S2 + i)}, {v(XA + 4 * i)}, {v(XA + 4 * i)}, 0")
        if i:
            for d in range(1, 4):
                E(f"v_dot2c_f32_bf16 {v(S1 + i - 1)}, {v(XA + 4 * i - 4 + d)}, v3")
                E(f"v_dot2c_f32_bf16 {v(S2 + i - 1)}, {v(XA + 4 * i - 4 + d)}, {v(XA + 4 * i - 4 + d)}")
            if i <= 8:
                for d in range(4):
                    E(f"v_lshlrev_b32 {v(N + 8 * (i - 1) + 2 * d)}, 16, {v(XA + 4 * (i - 1) + d)}")
                    E(f"v_and_b32 {v(N + 8 * (i - 1) + 2 * d + 1)}, 0xffff0000, {v(XA + 4 * (i - 1) + d)}")
    cnt[0] = 100
    for d in range(1, 4):
        V(f"v_dot2c_f32_bf16 {v(S1 + 15)}, {v(XA + 60 + d)}, v3")
        V(f"v_dot2c_f32_bf16 {v(S2 + 15)}, {v(XA + 60 + d)}, {v(XA + 60 + d)}")
    EV = 14
    for op, n in (("v_permlane32_swap_b32", 8), ("v_permlane16_swap_b32", 4)):
        for b in (S1, S2):
            for i in range(n):
                V(f"{op} {v(b + i)}, {v(b + i + n)}", EV)
        for b in (S1, S2):
            for i in range(n):
                V(f"v_add_f32 {v(b + i)}, {v(b + i)}, {v(b + i + n)}", EV)
    for b in (S1, S2):
        for i in range(2):
            V(f"v_add_f32_dpp {v(b + i)}, {v(b + i)}, {v(b + i)} row_ror:8 row_mask:0xf bank_mask:0x3", EV)
    for b in (S1, S2):
        for i in range(2):
            V(f"v_add_f32_dpp {v(b + i)}, {v(b + i + 2)}, {v(b + i + 2)} row_ror:8 row_mask:0xf bank_mask:0xc", EV)
    unp = []
    for i in range(8, 16):
        for d in range(4):
            src, dst = XA + 4 * i + d, N + 8 * i + 2 * d
            assert dst + 1 <= src
            unp.append(f"v_lshlrev_b32 {v(dst)}, 16, {v(src)}")
            unp.append(f"v_and_b32 {v(dst + 1)}, 0xffff0000, {v(src)}")

    def fill(n):
        for _ in range(n):
            V(unp.pop(0), EV)

    for b in (S1, S2):
        A(f"v_add_f32_dpp {v(b)}, {v(b)}, {v(b)} row_half_mirror row_mask:0xf bank_mask:0x5")
    fill(1)
    for b in (S1, S2):
        A(f"v_add_f32_dpp {v(b)}, {v(b + 1)}, {v(b + 1)} row_half_mirror row_mask:0xf bank_mask:0xa")
    for qp in ("[1,0,3,2]", "[2,3,0,1]"):
        fill(1)
        for b in (S1, S2):
            A(f"v_add_f32_dpp {v(b)}, {v(b)}, {v(b)} quad_perm:{qp} {DPPF}")
    A(f"v_mul_f32 v3, {f2u(1 / 512)}, {v(S1)}")
    A(f"v_mul_f32 v4, {f2u(1 / 512)}, {v(S2)}")
    A("v_fma_f32 v4, -v3, v3, v4")
    A("v_max_f32 v4, 0, v4")
    A(f"v_add_f32 v4, {f2u(1e-5)}, v4")
    A("v_rsq_f32 v4, v4")
    fill(1)
    A("v_mul_f32 v3, -v3, v4")
    for i in range(16):
        V(f"v_readlane_b32 {s(44 + 2 * i)}, v4, {4 * i}", EV)
        V(f"v_readlane_b32 {s(45 + 2 * i)}, v3, {4 * i}", EV)
    fill(len(unp))
    for i in range(16):
        for d in range(4):
            n = v(N + 8 * i + 2 * d, 2)
            V(f"v_pk_fma_f32 {n}, {n}, {s(44 + 2 * i, 2)}, {s(44 + 2 * i, 2)} op_sel:[0,0,1] op_sel_hi:[1,0,1]", EV)
    while wq:
        for y in wq.pop(0):
            A(y)
    A.stamp("ln1")
    A.srd(WSF, WS, 0)
    A.srd(WSS, WS, WS_SIZE)
    A("v_and_b32 v8, 3, v1")
    A("v_lshlrev_b32 v8, 3, v8")
    A("v_bfe_u32 v9, v1, 2, 2")
    A("v_lshrrev_b32 v11, 5, v1")
    A(f"s_cmp_eq_u32 {s(sJ)}, 2")
    A("s_cbranch_scc1 L_hop1")
    get_tag()
    A(f"s_cmp_lt_u32 {s(sJ)}, 2")
    A("s_cbranch_scc1 L_kvw")
    A(f"s_cmp_gt_u32 {s(sJ)}, 4")
    A("s_cbranch_scc1 L_rl_loads")
    mod_partial(A, 64)
    A("s_branch L_hop1")
    A("L_rl_loads:")
    relayout_loads(A)
    A("s_branch L_hop1")
    A("L_kvw:")
    A("v_lshrrev_b32 v3, 4, v1")
    A("v_lshl_add_u32 v3, v3, 3, v9")
    A("v_lshl_add_u32 v3, v3, 5, v8")
    A(f"s_lshl_b32 s38, {s(sHP)}, 14")
    A("v_add_u32 v3, s38, v3")
    A("s_barrier ; use:kvw")
    for ks in range(16):
        A(f"ds_read_b64_tr_b16 {a(128 + 4 * ks, 2)}, v3 offset:{ks * 1024}")
        A(f"ds_read_b64_tr_b16 {a(130 + 4 * ks, 2)}, v3 offset:{ks * 1024 + 128}")
    A("L_hop1:")
    A.stamp("hop1")
    A("v_lshlrev_b32 v3, 4, v0")
    A(f"s_mov_b32 s38, {WS_MODG}")
    A("v_lshlrev_b32 v4, 3, v0")
    A(f"v_add_u32 v4, {L_MODL}, v4")
    A(f"s_and_b32 s39, {s(sJ)}, 1")
    A(f"s_mul_i32 s44, s39, {HT}")
    A("s_xor_b32 s39, s39, 1")
    A(f"s_mul_i32 s39, s39, {HT}")
    A(f"s_lshl_b32 s45, {s(sW)}, 7")
    A("v_mul_u32_u24 v5, 528, v1")
    A("v_add_u32 v5, s45, v5")
    A("v_add_u32 v6, s39, v5")
    A("v_add_u32 v5, s44, v5")
    A(f"v_add_u32 v7, {L_MODL}, v2")
    A.spin([f"buffer_load_dwordx4 v[12:15], v3, {s(WS, 4)}, s38 offen sc1"],
           [f"v_xor_b32 v13, {s(sTAG)}, v13", f"v_xor_b32 v15, {s(sTAG)}, v15", "v_or_b32 v15, v13, v15",
            "v_cmp_ne_u32 vcc, 0, v15"])
    A(f"s_cmp_le_u32 {s(sJ)}, 4")
    A("s_cbranch_scc1 L_no_rl")
    relayout_finish(A, 64)
    A("L_no_rl:")
    A("v_mov_b32 v13, v14")
    A("v_xor_b32 v16, 0x80008000, v12")
    A("v_xor_b32 v17, 0x80008000, v14")
    A("ds_write_b64 v4, v[12:13]")
    A("ds_write_b64 v4, v[16:17] offset:2048")
    A("s_waitcnt lgkmcnt(0)")
    A("s_barrier")
    A.stamp("hop1done")
    SH, SC = 16, 24
    A("ds_read_b128 v[12:15], v7")
    A("ds_read_b128 v[64:67], v7 offset:1024")
    A(f"s_sub_u32 s40, {s(sJ)}, 3")
    A(f"s_lshl_b32 s3, {s(sW)}, 1")
    A("s_or_b32 s3, s3, s40")
    A("s_cmp_gt_u32 s3, 1")
    A("s_cbranch_scc1 L_nopub2")
    mod_publish(A, 70)
    A("L_nopub2:")
    for d in range(4):
        A(f"v_lshlrev_b32 {v(SH + 2 * d)}, 16, {v(12 + d)}")
        A(f"v_and_b32 {v(SH + 2 * d + 1)}, 0xffff0000, {v(12 + d)}")
    for d in range(4):
        A(f"v_lshlrev_b32 {v(SC + 2 * d)}, 16, {v(64 + d)}")
        A(f"v_and_b32 {v(SC + 2 * d + 1)}, 0xffff0000, {v(64 + d)}")

    def modrow(i):
        t = 64 + 4 * (i & 3)
        for d in range(4):
            n = v(N + 8 * i + 2 * d, 2)
            A(f"v_pk_fma_f32 {n}, {n}, {v(SC + 2 * d, 2)}, {v(SH + 2 * d, 2)}")
        for d in range(4):
            A(f"v_cvt_pk_bf16_f32 {v(t + d)}, {v(N + 8 * i + 2 * d)}, {v(N + 8 * i + 2 * d + 1)}")
        A(f"ds_write_b128 {v(5 + (i >> 3))}, {v(t, 4)} offset:{16 * (i & 7)}")

    for i in range(8):
        modrow(i)
    A(f"s_cmp_ge_u32 {s(sJ)}, 2")
    A("s_cbranch_scc1 L_rows2")
    KA = "v[80:83]"
    A("v_lshrrev_b32 v3, 4, v1")
    A("v_and_b32 v4, 15, v1")
    A("v_mul_u32_u24 v12, 528, v3")
    A("v_lshl_add_u32 v12, v4, 4, v12")
    A(f"s_lshl_b32 s38, {s(sTT)}, 8")
    A("s_add_u32 s38, s38, s44")
    A("v_add_u32 v12, s38, v12")
    A(f"s_lshl_b32 s38, {s(sG)}, 1")
    A(f"s_add_u32 s38, s38, {s(sJ)}")
    A("s_lshl_b32 s38, s38, 11")
    A(f"s_add_u32 s38, s38, {WS_KV}")
    A(f"s_cmp_lg_u32 {s(sHP)}, 0")
    A("s_cbranch_scc1 L_vjob")
    A("v_lshlrev_b32 v13, 4, v3")
    A(f"v_add_u32 v13, {L_MODL + 2048}, v13")
    for ks in range(16):
        A(f"ds_read_b128 {a(64 + 4 * ks, 4)}, v13 offset:{ks * 64}")
        if ks == 11:
            A("s_waitcnt lgkmcnt(12)")
            A("s_barrier")
    A("v_and_b32 v3, 1, v3")
    A("v_lshl_add_u32 v4, v3, 5, v4")
    A(f"s_lshl_b32 s39, {s(sTT)}, 4")
    A("v_add_lshl_u32 v4, v4, s39, 4")
    for ks in range(16):
        A(f"{MF16} {KA}, {a(128 + 4 * ks, 4)}, {a(64 + 4 * ks, 4)}, {'0' if ks == 0 else KA}")
        A(f"ds_read_b128 {a(4 * ks, 4)}, v12 offset:{ks * 2112}")
    for ks in range(16):
        A(f"{MF16} {KA}, {a(128 + 4 * ks, 4)}, {a(4 * ks, 4)}, {KA}")
    A("v_cvt_pk_bf16_f32 v84, v80, v81")
    A("v_cvt_pk_bf16_f32 v86, v80, v81")
    A("v_cvt_pk_bf16_f32 v85, v82, v83")
    A("v_cvt_pk_bf16_f32 v87, v82, v83")
    A("v_permlane32_swap_b32 v84, v86")
    A("v_permlane32_swap_b32 v85, v87")
    A("s_mov_b32 exec_hi, 0")
    A(f"buffer_store_dwordx4 v[84:87], v4, {s(WS, 4)}, s38 offen sc1 ; def:pub1")
    A("s_mov_b32 exec_hi, -1")
    A("s_branch L_rows2")
    A("L_vjob:")
    A("s_waitcnt lgkmcnt(0)")
    A("s_barrier")
    for ks in range(16):
        A(f"ds_read_b128 {a(4 * ks, 4)}, v12 offset:{ks * 2112}")
    A("v_lshrrev_b32 v3, 1, v3")
    A("v_lshl_add_u32 v4, v3, 4, v4")
    A(f"s_lshl_b32 s39, {s(sTT)}, 5")
    A("v_add_lshl_u32 v4, v4, s39, 4")
    for ks in range(16):
        A(f"{MF16} {KA}, {a(4 * ks, 4)}, {a(128 + 4 * ks, 4)}, {'0' if ks == 0 else KA}")
    A("v_cvt_pk_bf16_f32 v84, v80, v81")
    A("v_cvt_pk_bf16_f32 v86, v80, v81")
    A("v_cvt_pk_bf16_f32 v85, v82, v83")
    A("v_cvt_pk_bf16_f32 v87, v82, v83")
    A("v_permlane16_swap_b32 v84, v86")
    A("v_permlane16_swap_b32 v85, v87")
    A("s_mov_b32 exec_lo, 0xffff")
    A("s_mov_b32 exec_hi, 0xffff")
    A(f"buffer_store_dwordx4 v[84:87], v4, {s(WS, 4)}, s38 offen offset:1024 sc1 ; def:pub1")
    A("s_mov_b64 exec, -1")
    A("L_rows2:")
    A.stamp("kvst")
    for i in range(8, 16):
        modrow(i)
    A("v_mul_u32_u24 v3, 528, v11")
    A("v_and_b32 v4, 31, v1")
    A("v_lshl_add_u32 v3, v4, 4, v3")
    A(f"s_mul_i32 s38, {s(sTT)}, {HT}")
    A("v_add_u32 v3, s38, v3")
    slice_read_addr(A, 4, 9, 3, L_WQ)
    A(f"s_cmp_ge_u32 {s(sJ)}, 2")
    A("s_cbranch_scc1 L_nokvflag")
    A(f"v_mov_b32 v8, {s(sTAG)}")
    A(f"s_lshl_b32 s38, {s(sG)}, 1")
    A(f"s_add_u32 s38, s38, {s(sJ)}")
    A("s_lshl_b32 s38, s38, 7")
    A(f"s_add_u32 s38, s38, {WS_FKV}")
    A(f"s_cmp_eq_u32 {s(sW)}, 0")
    A(f"s_cselect_b32 {s(WSF + 2)}, {s(WS + 2)}, 0")
    A("s_waitcnt lgkmcnt(0) ; use:pub1")
    A("s_barrier")
    A(f"buffer_store_dword v8, off, {s(WSF, 4)}, s38 sc1")
    A("s_branch L_qgemm")
    A("L_nokvflag:")
    A("s_waitcnt lgkmcnt(0) ; use:wq")
    A("s_barrier")
    A("L_qgemm:")
    A.stamp("rows")
    NB, D = 8, 4
    for ks in range(32 + D):
        k = ks - D
        if k >= 0:
            A(f"{MF} v[16:31], {a(32 + 4 * (k % NB), 4)}, {a(4 * (k % NB), 4)}, {'0' if k == 0 else 'v[16:31]'}")
        if ks < 32:
            A(f"ds_read_b128 {a(4 * (ks % NB), 4)}, v3 offset:{ks * 1056}")
            A(f"ds_read_b64_tr_b16 {a(32 + 4 * (ks % NB), 2)}, v4 offset:{ks * 2048}")
            A(f"ds_read_b64_tr_b16 {a(34 + 4 * (ks % NB), 2)}, v4 offset:{ks * 2048 + 512}")
    column_id(A, 3)
    A(f"s_mov_b32 {s(sJ)}, s3")
    A("s_barrier")
    A.stamp("qdone")


Q, S, O, KF, VF, XR = 8, [16, 32], [48, 64], [80, 84], [88, 96], 112
vK, vV0, vV1, IDX = 4, 5, 6, 7
U = [128, 256, 384]


def attention(A):
    NPRE = 4
    A("v_and_b32 v3, 15, v1")
    A("v_lshlrev_b32 v105, 9, v3")
    A(f"s_lshl_b32 s48, {s(sW)}, 7")
    A(f"s_add_u32 s48, s48, {WS_FKV}")
    kv_ld = [f"buffer_load_dword v104, v105, {s(WS, 4)}, s48 offen sc1"]
    A(kv_ld[0])
    A("v_and_b32 v0, 31, v1")
    A("v_lshlrev_b32 v0, 10, v0")
    A("v_lshrrev_b32 v106, 5, v1")
    A("v_lshl_add_u32 v0, v106, 3, v0")
    A(f"s_lshl_b32 s52, {s(sG)}, 16")
    A(f"s_lshl_b32 s3, {s(sTT)}, 15")
    A("s_add_u32 s52, s52, s3")
    A(f"s_lshl_b32 s3, {s(sJ)}, 7")
    A("s_add_u32 s52, s52, s3")
    A(f"s_lshl_b32 s3, {s(sHP)}, 6")
    A("s_add_u32 s52, s52, s3")
    A(f"s_load_dwordx2 {s(T1, 2)}, s[0:1], 32")
    A(f"s_load_dwordx2 {s(T2, 2)}, s[0:1], 64")
    A(f"s_mov_b32 {s(T1 + 2)}, {512 * 1024}")
    A(f"s_mov_b32 {s(T2 + 2)}, {1376 * 1024}")
    A(f"s_mov_b32 s46, {f2u(QSCALE)}")
    A(f"s_lshl_b32 s44, {s(sW)}, 11")
    A(f"s_add_u32 s44, s44, {WS_KV}")
    A(f"s_mul_i32 m0, {s(sW)}, {KVB}")
    for d in range(8):
        A(f"v_pk_mul_f32 {v(16 + 2 * d, 2)}, {v(16 + 2 * d, 2)}, s[46:47] op_sel_hi:[1,0]")
    for d in range(8):
        A(f"v_cvt_pk_bf16_f32 {v(Q + d)}, {v(16 + 2 * d)}, {v(17 + 2 * d)}")
    A(f"v_mul_u32_u24 v3, {KVB}, v1")
    for d in range(4):
        A(f"v_mov_b32 {v(120 + d)}, 0x3f803f80")
        A(f"v_mov_b32 {v(124 + d)}, 0")
    A("ds_write_b128 v3, v[120:123] offset:2048")
    A("ds_write_b128 v3, v[124:127] offset:2064")
    A(f"v_mov_b32 {v(vK)}, v2")
    A("v_lshrrev_b32 v106, 5, v1")
    A("v_lshlrev_b32 v106, 4, v106")
    A("v_and_b32 v107, 15, v1")
    A("v_add_lshl_u32 v106, v106, v107, 4")
    A(f"v_add_u32 {v(vV0)}, 1024, v106")
    A(f"v_add_u32 {v(vV1)}, 1536, v106")
    A("v_and_b32 v108, 27, v1")
    A("v_cmp_eq_u32 vcc, 16, v108")
    A("v_mov_b32 v106, 2048")
    A("v_mov_b32 v107, 2064")
    A(f"v_cndmask_b32 {v(vV0)}, {v(vV0)}, v106, vcc")
    A(f"v_cndmask_b32 {v(vV1)}, {v(vV1)}, v106, vcc")
    A("v_cmp_lt_u32 vcc, 16, v108")
    A(f"v_mov_b32 {v(IDX)}, 0xdddddddd")
    A("s_nop 0")
    A(f"v_cndmask_b32 {v(vV0)}, {v(vV0)}, v107, vcc")
    A(f"v_cndmask_b32 {v(vV1)}, {v(vV1)}, v107, vcc")
    for i in range(32):
        A(f"v_mov_b32 {v(O[0] + i)}, 0")
    A.check_or_spin(kv_ld, [f"v_cmp_ne_u32 vcc, {s(sTAG)}, v104"])
    A.stamp("hop2")

    def kv_dma(n):
        tok = "kv0" if n < 2 else ("kv1" if n <= 5 else "kv2")
        pre = [] if n == 0 else [f"s_add_u32 m0, m0, {4 * KVB}", "s_add_u32 s44, s44, 8192"]
        return [(pre, f"buffer_load_dwordx4 v2, {s(WS, 4)}, s44 offen sc1 lds ; def:{tok}"),
                ([], f"buffer_load_dwordx4 v2, {s(WS, 4)}, s44 offen offset:1024 sc1 lds ; def:{tok}")]

    for n in range(NPRE):
        for pre, x in kv_dma(n):
            for y in pre:
                A(y)
            A(x)
    A(f"s_lshl_b32 s45, {s(sW)}, 3")
    A(f"s_add_u32 s45, s45, {s(sJ)}")
    A("s_lshl_b32 s47, s45, 15")
    A(f"s_add_u32 s47, s47, {WS_WGU + 64 * 32768}")
    A("s_cmp_lt_u32 s45, 22")
    A(f"s_cselect_b32 s47, s47, {WS_SIZE}")
    A("s_lshl_b32 s46, s45, 15")
    A(f"s_add_u32 s46, s46, {WS_WGU}")
    A(f"s_lshl_b32 s48, {s(sJ)}, 7")
    A(f"s_lshl_b32 s49, {s(sW)}, 17")
    A("s_add_u32 s48, s48, s49")
    A(f"s_lshl_b32 s49, {s(sW)}, 14")
    slice_voffset(A, 124, 125)
    A("v_add_u32 v126, 7168, v124")
    A(f"s_mov_b32 s50, {WS_FRL}")
    A(f"s_lshl_b32 s51, {s(sG)}, 5")
    A(f"s_add_u32 s51, s51, {WS_FRL}")
    A(f"s_lshl_b32 s53, {s(sJ)}, 2")
    A("s_add_u32 s53, s53, s51")
    A(f"s_lshl_b32 s54, {s(sJ)}, 8")
    A(f"s_add_u32 s54, s54, {WS_MODG + 4096}")
    A("s_getreg_b32 s55, hwreg(HW_REG_XCC_ID, 0, 3)")
    A(f"s_add_u32 s56, s55, {s(sTAG)}")
    A(f"s_cmp_eq_u32 {s(sW)}, 0")
    A(f"s_cselect_b32 {s(WSF + 2)}, {s(WS + 2)}, 0")
    A("v_and_b32 v3, 7, v1")
    A("v_lshlrev_b32 v3, 2, v3")
    A(f"s_lshl_b32 {s(sGA)}, {s(sG)}, 16")
    A("s_lshl_b32 s57, s45, 11")
    A(f"s_add_u32 s57, s57, {s(sGA)}")
    A.srd(OF, SOUT, 0)
    A.srd(OS, SOUT, 0)
    A("v_lshrrev_b32 v110, 4, v1")
    A("v_and_b32 v111, 15, v1")
    A("v_lshlrev_b32 v111, 4, v111")
    A("v_lshl_add_u32 v110, v110, 11, v111")
    A("v_mov_b32 v109, s56")
    A("v_lshlrev_b32 v111, 3, v111")
    if "pad" in OPT:
        A("s_mov_b64 exec, 0")
        for w in range(3):
            A(f"s_cmp_eq_u32 {s(sW)}, {w}")
            A(f"s_cbranch_scc1 L_page{w} ; warm")
        A("s_branch L_page3 ; warm")
        A("L_warmed:")
        A("s_mov_b64 exec, -1")
    A("s_branch L_aligned")
    A("L_gap:")
    A(".p2align 12")
    A("L_aligned:")
    A("s_waitcnt lgkmcnt(0) ; use:kv0")
    A("s_barrier")
    A.stamp("attn0")
    A(f"ds_read_b128 {v(KF[0], 4)}, {v(vK)}")
    A(f"ds_read_b128 {v(VF[0], 4)}, {v(vV0)}")
    A(f"ds_read_b128 {v(VF[0] + 4, 4)}, {v(vV1)}")
    A(f"ds_read_b128 {v(KF[1], 4)}, {v(vK)} offset:{KVB}")
    A(f"buffer_store_dword v109, off, {s(WSF, 4)}, s53 sc1")
    for q in range(2):
        A(f"{MF} {v(S[q], 16)}, {v(KF[0], 4)}, {v(Q + 4 * q, 4)}, 0")
    A("s_nop 7")

    KT_CHECK = 11
    grp = {}
    for n in range(NPRE, 16):
        (pre, x), (_, y) = kv_dma(n)
        grp[n - NPRE] = [pre, [x, y]]
    frl_ld = [f"buffer_load_dwordx4 v[104:107], v2, {s(WS, 4)}, s50 offen sc1",
              f"buffer_load_dword v108, v3, {s(WS, 4)}, s51 offen sc1",
              f"buffer_load_dwordx4 v[120:123], v110, {s(WS, 4)}, s54 offen sc1"]
    for q in range(4):
        grp[2 + (q >> 1)][1].append(f"buffer_load_dwordx2 {v(XR + 2 * q, 2)}, v0, {s(SX, 4)}, s52 offen offset:{16 * q}")
    grp[7][1].append(frl_ld[2])
    grp[8][1] += frl_ld[:2]

    def unit_loads(p, first, n):
        sreg = 47 if p == 2 else 46
        pre = []
        if first & 3 == 0 and not (first == 0 and p != 1):
            pre = [f"s_add_u32 {s(sreg)}, {s(sreg)}, {4096 if first else (32 * 32768 - 7 * 4096)}"]
        return [pre, [f"buffer_load_dwordx4 {r(U[p] + 4 * ks, 4)}, v2, {s(WS, 4)}, {s(sreg)} offen offset:{(ks & 3) * 1024} sc1"
                      for ks in range(first, first + n)]]

    later = [unit_loads(p, 4 * i, 4) for p in range(2) for i in range(8)]
    for i in range(8):
        pre, x = unit_loads(2, 2 * i, 2)
        pre = pre + ([f"s_add_u32 m0, s49, {L_WO}"] if i == 0 else ["s_add_u32 m0, m0, 2048", "s_add_u32 s48, s48, 16384"])
        later.append([pre, x + [f"buffer_load_dwordx4 v124, {s(T1, 4)}, s48 offen lds ; def:wo",
                                f"buffer_load_dwordx4 v126, {s(T1, 4)}, s48 offen offset:1024 lds ; def:wo"]])
    later += [unit_loads(2, 16 + 4 * i, 4) for i in range(4)]
    if "notouch" not in OPT:
        later[14][1].append("global_load_dword v109, v111, s[58:59]")
        later[24][1].append("global_load_dword v125, v111, s[60:61]")
        later[25][1].append("global_load_dword v110, v111, s[60:61] offset:2048")
        later.append([[f"s_add_u32 s63, s57, {WS_B}", f"s_lshl_b32 s65, {s(sG)}, 10", f"s_add_u32 s65, s65, {WS_FG}"],
                      [f"buffer_load_dword v104, v111, {s(WS, 4)}, s65 offen sc1",
                       f"buffer_load_dword v105, v111, {s(SOUT, 4)}, s57 offen sc1",
                       f"buffer_load_dword v106, v111, {s(WS, 4)}, s63 offen sc1"]])
        NA = P("wda", 2)
        if NA:
            A(f"s_lshr_b32 s3, {s(sG)}, 3")
            A("s_lshl_b32 s3, s3, 2")
            A(f"s_add_u32 s3, s3, {s(sW)}")
            A("s_lshl_b32 s3, s3, 14")
            A(f"s_lshl_b32 s64, {s(sJ)}, 7")
            A("s_add_u32 s64, s64, s3")
            A("v_lshlrev_b32 v127, 3, v111")
            for i in range(NA):
                g = later[-2 - P("wdg", 1) * (NA - 1 - i)]
                if i:
                    g[0].append("s_add_u32 s64, s64, 0x40000")
                g[1].append(f"buffer_load_dword {v(120 + i)}, v127, {s(T2, 4)}, s64 offen")
        A("s_getpc_b64 s[60:61]")
        A("L_pc2:")
        A(f"s_lshl_b32 s3, {s(sW)}, 11")
        A("s_add_u32 s3, s3, L_post-L_pc2-8192")
        A("s_add_u32 s58, s60, s3")
        A("s_addc_u32 s59, s61, 0")
        A(f"s_lshl_b32 s3, {s(sW)}, 12")
        A("s_min_u32 s3, s3, L_end-L_post-4096")
        A("s_add_u32 s3, s3, L_post-L_pc2")
        A("s_add_u32 s60, s60, s3")
        A("s_addc_u32 s61, s61, 0")
    SPAN = P("span", 38)
    for i, g in enumerate(later):
        kt = 12 + (i * SPAN) // (len(later) - 1)
        assert kt not in grp and (kt >= 32 or not any("def:wo" in x for x in g[1]))
        grp[kt] = g

    base = [0]

    def off(kt):
        o = kt * KVB - base[0]
        assert 0 <= o < 65536 - 2096
        return o

    def salu(kt, n):
        while n and kt in grp and grp[kt][0]:
            A(grp[kt][0].pop(0))
            n -= 1

    rest = []
    for kt in range(64):
        kb = kt & 1
        A.stamp(f"kt{kt}")
        if kt in (28, 56):
            base[0] += 28 * KVB
            for x in (vK, vV0, vV1):
                A(f"v_add_u32 {v(x)}, {28 * KVB}, {v(x)}")
        for q in range(2):
            p = 1 - q
            pv = kb if q == 1 else 1 - kb
            pk = 1 - kb if q == 1 else kb
            first = kt == 0 and q == 0
            for i in range(16):
                A(f"v_exp_f32 {v(S[q] + i)}, {v(S[q] + i)}")
                if i == 1:
                    if not first:
                        A(f"{SM} {v(O[p], 16)}, {v(VF[pv] + 4, 4)}, {v(S[p] + 8, 8)}, {v(IDX)}")
                    if q == 0:
                        A("s_waitcnt lgkmcnt(0)")
                        if kt == 6:
                            A("s_barrier ; use:kv1")
                        elif kt == 22:
                            A("s_barrier ; use:kv2")
                        elif kt == 32:
                            A("s_barrier")
                        elif kt == 58:
                            A("s_barrier ; use:wo")
                        elif kt == KT_CHECK:
                            chk = []
                            for d in range(5):
                                chk.append(f"v_subrev_u32 {v(104 + d)}, {s(sTAG)}, {v(104 + d)}")
                            chk += ["v_or3_b32 v104, v104, v105, v106", "v_or3_b32 v104, v104, v107, v108",
                                    f"v_xor_b32 v121, {s(sTAG)}, v121", f"v_xor_b32 v123, {s(sTAG)}, v123",
                                    "v_or3_b32 v104, v104, v121, v123", "v_cmp_lt_u32 vcc, 7, v104"]
                            A.check_or_spin(frl_ld, chk)
                            A("v_and_b32 v121, 0xffff0000, v120")
                            A("v_lshlrev_b32 v120, 16, v120")
                            A("v_and_b32 v123, 0xffff0000, v122")
                            A("v_lshlrev_b32 v122, 16, v122")
                            A(f"v_add_u32 v110, {L_OWN}, v2")
                            A("ds_write_b128 v110, v[120:123]")
                            A(f"v_mov_b32 v109, {s(sTAG)}")
                            A("v_cmp_ne_u32 vcc, s55, v108")
                            A("s_cmp_eq_u32 s2, 0")
                            A(f"s_cselect_b32 {s(WSF + 2)}, 4, 0")
                            A(f"buffer_store_dword v109, off, {s(WSF, 4)}, 0 offset:{WS_NONCE} sc1")
                            if "slow" in OPT:
                                A("s_cmp_eq_u32 s2, 999")
                            else:
                                A("s_cmp_eq_u64 vcc, 0")
                            A(f"s_cselect_b32 {s(WSF + 2)}, {s(WS + 2)}, 0")
                            A(f"s_cselect_b32 {s(WSS + 2)}, 0, {s(WS + 2)}")
                            A(f"s_cselect_b32 {s(OF + 2)}, {s(SOUT + 2)}, 0")
                            A(f"s_cselect_b32 {s(OS + 2)}, 0, {s(SOUT + 2)}")
                        for x in rest:
                            A(x)
                        rest = []
                    elif kt in grp:
                        assert not grp[kt][0]
                        rest = grp.pop(kt)[1]
                        nsplit = P("split", 2)
                        for _ in range((len(rest) + nsplit - 1) // nsplit if len(rest) > P("mins", 1) else len(rest)):
                            A(rest.pop(0))
                if i == 4:
                    if not first and not (q == 1 and kt == 63):
                        A(f"{MF} {v(S[p], 16)}, {v(KF[pk], 4)}, {v(Q + 4 * p, 4)}, 0")
                    if q == 0 and kt < 63:
                        salu(kt, 1)
                        A(f"ds_read_b128 {v(VF[1 - kb], 4)}, {v(vV0)} offset:{off(kt + 1)}")
                    if q == 1 and kt < 62:
                        A(f"ds_read_b128 {v(KF[kb], 4)}, {v(vK)} offset:{off(kt + 2)}")
                if i == 9:
                    A(f"{SM} {v(O[q], 16)}, {v(VF[kb], 4)}, {v(S[q], 8)}, {v(IDX)}")
                    if q == 0:
                        salu(kt, 2)
                        if kt < 63:
                            A(f"ds_read_b128 {v(VF[1 - kb] + 4, 4)}, {v(vV1)} offset:{off(kt + 1)}")
                    elif P("split", 2) == 3:
                        for _ in range((len(rest) + 1) // 2):
                            A(rest.pop(0))
    assert not grp
    A(f"s_lshl_b32 s46, {s(sG)}, 10")
    A(f"s_lshl_b32 s47, {s(sJ)}, 2")
    A(f"{SM} {v(O[1], 16)}, {v(VF[1] + 4, 4)}, {v(S[1] + 8, 8)}, {v(IDX)}")
    A.stamp("attn1")


def attn_epilogue(A):
    A("L_post:")
    A(f"s_add_u32 s46, s46, {WS_FG}")
    A(f"s_add_u32 s47, s47, {s(sW)}")
    A("s_lshl_b32 s47, s47, 2")
    A("s_add_u32 s47, s47, s46")
    A(f"s_lshl_b32 s48, {s(sTT)}, 5")
    A(f"s_lshl_b32 s49, {s(sJ)}, 2")
    A("s_add_u32 s48, s48, s49")
    A(f"s_lshl_b32 s49, {s(sHP)}, 1")
    A("s_add_u32 s48, s48, s49")
    A("s_lshl_b32 s48, s48, 10")
    A(f"s_add_u32 s49, s48, {s(sGA)}")
    A("s_mov_b32 s40, 0")
    A("L_attn_ok:")
    for q in range(2):
        A(f"v_rcp_f32 {v(O[q] + 10)}, {v(O[q] + 8)}")
        if q == 0:
            A(f"s_mov_b32 s50, {f2u(2.0 ** 120)}")
        else:
            A(f"s_mov_b32 s51, {f2u(2.0 ** -90)}")
        for d in range(4):
            o = v(O[q] + 2 * d, 2)
            A(f"v_pk_mul_f32 {o}, {o}, {v(O[q] + 10, 2)} op_sel_hi:[1,0]")
        for d in range(4):
            A(f"v_cvt_pk_bf16_f32 {v(120 + 4 * q + d)}, {v(O[q] + 2 * d)}, {v(O[q] + 2 * d + 1)}")
        A.xstore("buffer_store_dwordx4", v(120 + 4 * q, 4), "v2", "s49", f"offset:{1024 * q}", "o", True)
    for q in range(2):
        t = 104 + q
        A(f"v_add_f32 {v(t)}, abs({v(O[q])}), {v(O[q] + 8)}")
        for i in range(1, 8):
            A(f"v_add_f32 {v(t)}, abs({v(O[q] + i)}), {v(t)}")
    A("v_add_f32 v104, v104, v105")
    A(f"v_min_f32 v105, {v(O[0] + 8)}, {v(O[1] + 8)}")
    A("v_cmp_nge_f32 vcc, s50, v104")
    A("v_cmp_nle_f32 s[38:39], s51, v105")
    A("s_or_b64 vcc, vcc, s[38:39]")
    A("s_cbranch_vccnz L_fallback")
    A("L_attn_done:")
    A(f"v_mov_b32 v7, {s(sTAG)}")


def fallback(A):
    A("L_fallback:")
    A("s_cmp_lg_u32 s40, 0")
    A("s_cbranch_scc1 L_attn_done")
    A("s_mov_b32 s40, 1")
    M = [104, 105]
    for q in range(2):
        A(f"v_mov_b32 {v(M[q])}, 0xff800000")
    A(f"s_mov_b32 s38, {WS_KV}")
    A("L_fb_max:")
    A(f"buffer_load_dwordx4 {v(KF[0], 4)}, v2, {s(WS, 4)}, s38 offen sc1")
    for q in range(2):
        A(f"{MF} {v(S[q], 16)}, {v(KF[0], 4)}, {v(Q + 4 * q, 4)}, 0")
    for q in range(2):
        for i in range(0, 16, 2):
            A(f"v_max3_f32 {v(M[q])}, {v(M[q])}, {v(S[q] + i)}, {v(S[q] + i + 1)}")
    A("s_add_u32 s38, s38, 2048")
    A(f"s_cmp_lt_u32 s38, {WS_KV + 64 * 2048}")
    A("s_cbranch_scc1 L_fb_max")
    for q in range(2):
        A(f"v_mov_b32 v106, {v(M[q])}")
        A(f"v_permlane32_swap_b32 v106, {v(M[q])}")
        A(f"v_max_f32 {v(M[q])}, {v(M[q])}, v106")
    for i in range(32):
        A(f"v_mov_b32 {v(O[0] + i)}, 0")
    for i in range(8):
        A(f"v_mov_b32 {v(VF[0] + i)}, 0x3f803f80")
    A("v_lshrrev_b32 v106, 5, v1")
    A("v_lshlrev_b32 v106, 4, v106")
    A("v_and_b32 v107, 15, v1")
    A("v_add_lshl_u32 v106, v106, v107, 4")
    A(f"s_mov_b32 s38, {WS_KV}")
    A("L_fb_sum:")
    A(f"buffer_load_dwordx4 {v(KF[0], 4)}, v2, {s(WS, 4)}, s38 offen sc1")
    A("s_mov_b32 exec_lo, 0xffff")
    A("s_mov_b32 exec_hi, 0xffff")
    A(f"buffer_load_dwordx4 {v(VF[0], 4)}, v106, {s(WS, 4)}, s38 offen offset:1024 sc1")
    A(f"buffer_load_dwordx4 {v(VF[0] + 4, 4)}, v106, {s(WS, 4)}, s38 offen offset:1536 sc1")
    A("s_mov_b64 exec, -1")
    for q in range(2):
        A(f"{MF} {v(S[q], 16)}, {v(KF[0], 4)}, {v(Q + 4 * q, 4)}, 0")
    for q in range(2):
        for i in range(16):
            A(f"v_sub_f32 {v(S[q] + i)}, {v(S[q] + i)}, {v(M[q])}")
        for i in range(16):
            A(f"v_exp_f32 {v(S[q] + i)}, {v(S[q] + i)}")
        for h in range(2):
            A(f"{SM} {v(O[q], 16)}, {v(VF[0] + 4 * h, 4)}, {v(S[q] + 8 * h, 8)}, {v(IDX)}")
    A("s_add_u32 s38, s38, 2048")
    A(f"s_cmp_lt_u32 s38, {WS_KV + 64 * 2048}")
    A("s_cbranch_scc1 L_fb_sum")
    A("s_nop 11")
    A("s_branch L_attn_ok")


X1 = 80


def own_vec(A, dst, vec):
    for q in range(4):
        A(f"ds_read_b128 {v(dst + 4 * q, 4)}, v6 offset:{vec * 256 + q * 32}")


def outproj(A):
    B, ACC, AR = 16, [80, 96], [8, 12, 120, 124]
    A(f"s_lshl_b32 s38, {s(sHP)}, 15")
    slice_read_addr(A, 4, 5, 2, "s38")
    A("v_xor_b32 v5, 64, v4")

    seq = [(k, t) for k in range(12) for t in range(2)] + [(k, t) for t in (1, 0) for k in range(12, 16)]

    def aread(m):
        k, t = seq[m]
        A(f"ds_read_b64_tr_b16 {v(AR[m & 3], 2)}, {v(4 + t)} offset:{k * 2048}")
        A(f"ds_read_b64_tr_b16 {v(AR[m & 3] + 2, 2)}, {v(4 + t)} offset:{k * 2048 + 1024}")

    A("v_lshrrev_b32 v6, 5, v1")
    A("v_lshlrev_b32 v6, 4, v6")
    A(f"s_lshl_b32 s38, {s(sHP)}, 7")
    A(f"s_add_u32 s38, s38, {L_OWN}")
    A("v_add_u32 v6, s38, v6")
    A("v_lshlrev_b32 v104, 1, v3")
    A(f"s_lshl_b32 s38, {s(sHP)}, 4")
    A(f"s_add_u32 s38, s38, {s(sTT)}")
    A("s_lshl_b32 s38, s38, 2")
    A("s_add_u32 s38, s38, s46")
    A(f"s_lshl_b32 s39, {s(sTT)}, 15")
    A(f"s_lshl_b32 s40, {s(sHP)}, 14")
    A("s_add_u32 s39, s39, s40")
    A(f"s_add_u32 s39, s39, {s(sGA)}")
    for i in range(4):
        aread(i)
    A.xflag("s47", 0, 7, "o")
    A.spin([f"buffer_load_dword v105, v104, {s(WS, 4)}, s38 offen sc1"], ["v_cmp_ne_u32 vcc, v7, v105"])
    A.stamp("e1")
    def oload(k):
        A(f"buffer_load_dwordx4 {v(B + 4 * k, 4)}, v2, {s(SOUT, 4)}, s39 offen offset:{(k & 3) * 1024} sc1")
        if k & 3 == 3 and k < 15:
            A("s_add_u32 s39, s39, 4096")

    NO = P("no", 8)
    for k in range(NO):
        oload(k)
    GA, SH, SC, T = 16, 32, 48, 64
    wr = []
    for m, (k, t) in enumerate(seq):
        A(f"{MF} {v(ACC[t], 16)}, {v(AR[m & 3], 4)}, {v(B + 4 * k, 4)}, {'0' if k == 0 else v(ACC[t], 16)}")
        if m & 1 == 0 and NO + (m >> 1) < 16:
            oload(NO + (m >> 1))
        if m + 4 < 32:
            aread(m + 4)
        if "wd1" in OPT:
            NR, M = P("wdrows", 16), P("wdat", 21)
            if m == M - 3:
                A(f"s_lshr_b32 s38, {s(sG)}, 3")
                A("s_lshl_b32 s38, s38, 2")
                A(f"s_add_u32 s38, s38, {s(sW)}")
            if m == M - 2:
                A(f"s_mul_i32 s38, s38, {NR * 1024}")
                A(f"s_lshl_b32 s40, {s(sJ)}, 7")
                A("s_add_u32 s38, s38, s40")
            if m == M - 1:
                A(f"s_add_u32 s38, s38, {P('wda', 2) * 0x40000}")
                A(f"v_min_u32 v7, {NR - 1}, v1")
                A("v_lshlrev_b32 v7, 10, v7")
            if m == M:
                A(f"buffer_load_dword v7, v7, {s(T2, 4)}, s38 offen")
        if m == 27:
            A(f"s_xor_b32 s38, {s(sW)}, 2")
            A("s_lshl_b32 s38, s38, 12")
            A(f"s_add_u32 s38, s38, {L_RED}")
            A("v_add_u32 v4, s38, v2")
        if m == 28:
            own_vec(A, GA, 0)
            wr = [f"ds_write_b128 v4, {v(ACC[1] + 4 * q, 4)} offset:{q * 1024}" for q in range(4)]
        if m >= 29:
            A(wr.pop(0))
    A(wr.pop(0))
    A.stamp("oproj")
    A(f"s_lshl_b32 s38, {s(sW)}, 12")
    A(f"s_add_u32 s38, s38, {L_RED}")
    A("v_add_u32 v5, s38, v2")
    for d in range(8):
        A(f"v_lshlrev_b32 {v(T + 2 * d)}, 16, {v(XR + d)}")
        A(f"v_and_b32 {v(T + 2 * d + 1)}, 0xffff0000, {v(XR + d)}")
    A("s_waitcnt lgkmcnt(0)")
    A("s_barrier")
    for q in range(4):
        A(f"ds_read_b128 {v(ACC[1] + 4 * q, 4)}, v5 offset:{q * 1024}")
    for d in range(8):
        A(f"v_pk_fma_f32 {v(T + 2 * d, 2)}, {v(X1 + 2 * d, 2)}, {v(GA + 2 * d, 2)}, {v(T + 2 * d, 2)}")
    A(f"s_lshl_b32 s38, {s(sTT)}, 15")
    A(f"s_add_u32 s38, s38, {s(sGA)}")
    A(f"s_add_u32 s38, s38, {WS_B}")
    A(f"s_lshl_b32 s39, {s(sJ)}, 10")
    A(f"s_lshl_b32 s40, {s(sHP)}, 3")
    A("s_add_u32 s39, s39, s40")
    A("s_add_u32 s39, s39, s38")
    A("s_add_u32 s40, s38, 4096")
    for d in range(8):
        A(f"v_pk_fma_f32 {v(X1 + 2 * d, 2)}, {v(ACC[1] + 2 * d, 2)}, {v(GA + 2 * d, 2)}, {v(T + 2 * d, 2)}")
        if d == 0:
            A(f"v_pk_mul_f32 v[10:11], {v(X1, 2)}, {v(X1, 2)}")
        elif d == 1:
            A(f"v_pk_add_f32 v[8:9], {v(X1, 2)}, {v(X1 + 2, 2)}")
        else:
            A(f"v_pk_add_f32 v[8:9], v[8:9], {v(X1 + 2 * d, 2)}")
        if d:
            A(f"v_pk_fma_f32 v[10:11], {v(X1 + 2 * d, 2)}, {v(X1 + 2 * d, 2)}, v[10:11]")
    A("v_add_f32 v8, v8, v9")
    A("v_add_f32 v10, v10, v11")
    A(f"v_mov_b32 v9, {s(sTAG)}")
    A("v_permlane32_swap_b32 v8, v10")
    A("v_add_f32 v8, v8, v10")
    A.xstore("buffer_store_dwordx2", "v[8:9]", "v2", "s39")
    A.stamp("stat")
    A(f"v_mov_b32 v7, {s(sTAG)}")
    own_vec(A, SH, 1)
    own_vec(A, SC, 2)
    ffn_setup(A)
    G = 96
    lds = [f"buffer_load_dwordx4 {v(G + 4 * i, 4)}, v2, {s(WS, 4)}, {'s38' if i < 4 else 's40'} offen offset:{(i & 3) * 1024} sc1"
           for i in range(8)]
    chk = []
    for i in range(8):
        g = G + 4 * i
        if i == 0:
            chk += [f"v_min_u32 v10, {v(g + 1)}, {v(g + 3)}", f"v_max_u32 v11, {v(g + 1)}, {v(g + 3)}",
                    f"v_add_f32 v12, {v(g)}, {v(g + 2)}"]
        else:
            chk += [f"v_min3_u32 v10, v10, {v(g + 1)}, {v(g + 3)}", f"v_max3_u32 v11, v11, {v(g + 1)}, {v(g + 3)}",
                    f"v_add_f32 v12, v12, {v(g)}", f"v_add_f32 v12, v12, {v(g + 2)}"]
    chk += ["v_xor_b32 v10, v7, v10", "v_xor_b32 v11, v7, v11", "v_or_b32 v10, v10, v11", "v_cmp_ne_u32 vcc, 0, v10"]
    A.spin(lds, chk)
    A.stamp("e2a")
    A(f"v_mul_f32 v12, {f2u(1 / 512)}, v12")
    A("v_mov_b32 v13, v12")
    A(f"s_lshl_b32 s38, {s(sW)}, 5")
    A("v_permlane32_swap_b32 v12, v13")
    A("v_fma_f32 v13, -v12, v12, v13")
    A("v_max_f32 v13, 0, v13")
    A(f"v_add_f32 v13, {f2u(1e-5)}, v13")
    A("v_rsq_f32 v14, v13")
    A("s_add_u32 s38, s38, s46")
    A("v_mul_f32 v15, -v12, v14")
    for hh in range(2):
        for d in range(4 * hh, 4 * hh + 4):
            A(f"v_pk_fma_f32 {v(T + 2 * d, 2)}, {v(X1 + 2 * d, 2)}, v[14:15], v[14:15] op_sel:[0,0,1] op_sel_hi:[1,0,1]")
        for d in range(4 * hh, 4 * hh + 4):
            A(f"v_pk_fma_f32 {v(T + 2 * d, 2)}, {v(T + 2 * d, 2)}, {v(SC + 2 * d, 2)}, {v(SH + 2 * d, 2)}")
        for d in range(4 * hh, 4 * hh + 4):
            A(f"v_cvt_pk_bf16_f32 {v(16 + d)}, {v(T + 2 * d)}, {v(T + 2 * d + 1)}")
        A.xstore("buffer_store_dwordx4", v(16 + 4 * hh, 4), "v2", "s49", f"offset:{1024 * hh}", "h", True)
    A(f"s_lshl_b32 s40, {s(sW)}, 13")
    A(f"s_add_u32 s39, s40, {s(sGA)}")
    A(f"s_add_u32 m0, s40, {L_H}")
    A(f"v_add_u32 v4, {L_H}, v2")
    A.xflag("s47", 128, 7, "h")
    A.spin([f"buffer_load_dword v8, v3, {s(WS, 4)}, s38 offen offset:128 sc1"], ["v_cmp_ne_u32 vcc, v7, v8"])
    A.hcopy = []
    for c in range(4):
        for i in range(4):
            A.hcopy.append(f"buffer_load_dwordx4 v2, {s(SOUT, 4)}, s39 offen offset:{i * 1024} sc1 lds")
        if c < 3:
            x = 0x1000 if c == 1 else 0x8000
            A.hcopy += [f"s_xor_b32 m0, m0, {x}", f"s_xor_b32 s39, s39, {x}"]
    for _ in range(P("nh", 14)):
        A(A.hcopy.pop(0))
    A.stamp("e2b")


ORD = [8 * (i >> 2) + (i & 3) for i in range(16)] + [8 * (i >> 2) + 4 + (i & 3) for i in range(16)]


def ffn_setup(A):
    A(f"s_lshl_b32 s55, {s(sW)}, 14")
    A(f"s_lshl_b32 s54, {s(sJ)}, 7")
    A("s_add_u32 s54, s54, s55")
    A(f"s_add_u32 s41, {s(sGA)}, {WS_B}")
    A(f"s_lshl_b32 s56, {s(sTT)}, 5")
    A(f"s_add_u32 s56, s56, {s(sW)}")
    A("s_lshl_b32 s56, s56, 10")
    A("s_add_u32 s56, s56, s41")
    A("s_xor_b32 s57, s56, 32768")
    A("s_lshl_b32 s58, s45, 10")
    A("s_add_u32 s58, s58, s41")
    A("s_add_u32 s59, s58, 32768")
    A(f"s_sub_u32 s63, s58, {WS_B}")
    A(f"s_sub_u32 s64, s59, {WS_B}")
    A("s_lshl_b32 s60, s45, 2")
    A("s_add_u32 s60, s60, s46")
    A(f"s_lshl_b32 s61, {s(sW)}, 2")
    A("s_add_u32 s61, s61, s46")


def ffn(A):
    ACC = [16, 48]
    BR = 96
    PK, vWD, vA = 8, 12, 13
    D = 16
    BORD = [(st, i) for st in list(range(16)) + [21] for i in range(2)] + [(st, i) for i in (1, 0) for st in range(16, 21)]

    def areg(ai):
        return U[0] + 4 * ORD[ai] if ai < 32 else U[1] + 4 * ORD[ai - 32]

    def breg(bi):
        return U[1] + 4 * ORD[12 + bi] if bi < 20 else U[2] + 4 * ORD[bi - 20]

    A("v_lshlrev_b32 v3, 2, v3")
    slice_voffset(A, vWD, vA)
    slice_read_addr(A, vA, vA + 1, 2, "s55")
    A(f"v_xor_b32 {v(vA + 1)}, 64, {v(vA)}")
    A("v_and_b32 v15, 31, v1")
    A("v_lshlrev_b32 v15, 2, v15")
    A("v_lshrrev_b32 v1, 5, v1")
    A("v_lshl_add_u32 v0, v1, 3, v0")
    A(f"v_add_u32 v1, 7168, {v(vWD)}")

    def flag_ld(p):
        if p == 2:
            return [f"buffer_load_dword v5, v3, {s(WS, 4)}, s61 offen offset:{256 + 128 * p} sc1"]
        return [f"buffer_load_dword v5, v15, {s(WS, 4)}, s46 offen offset:{256 + 128 * p} sc1"]

    def bread(n, t):
        return f"ds_read_b128 {v(BR + 8 * (n & 3) + 4 * t, 4)}, v4 offset:{t * 32768 + ORD[n % 32] * 1024}"

    mf = []
    for n in range(96):
        p, kk = n >> 5, n & 31
        for t in range(2):
            acc = v(ACC[p & 1] + 16 * t, 16)
            mf.append(f"{MF} {acc}, {r(U[p] + 4 * ORD[kk], 4)}, {v(BR + 8 * (n & 3) + 4 * t, 4)}, {'0' if kk == 0 else acc}")
    HEAD = 7
    seq = [(st, t) for st in range(HEAD) for t in (2, 3)] + [(st, t) for st in range(HEAD) for t in (0, 1)]
    seq += [(st, t) for st in list(range(HEAD, 16)) + [21] for t in range(4)]
    seq += [(st, t) for t in (3, 2, 1, 0) for st in range(16, 21)]
    for st, t in seq:
        acc = v(D + 16 * t, 16)
        mf.append(f"{MF} {acc}, {r(areg(2 * st + (t >> 1)), 4)}, {r(breg(2 * st + (t & 1)), 4)}, {'0' if st == 0 else acc}")
    M21 = 192 + 64

    at = {}
    F = [P("f0", 16), P("f1", 16), P("f2", 13)]
    PL = [P("p0", 16), P("p1", 10), P("p2", 9), P("p3", 26)]
    C = [P("c0", 12), P("c1", 11), P("c2", 10)]
    LAG = P("lag", 24)
    qepi, qsync, qmem, qrd = [], [], [], []
    for p in range(3):
        e0 = 64 * (p + 1) + (3 if p < 2 else 1)
        for t in range(2):
            b = ACC[p & 1] + 16 * t
            for i in range(8):
                qepi.append([e0, 1, [f"v_max_f32 {v(b + i)}, 0, {v(b + i)}"], None, 0])
            for i in range(8):
                qepi.append([e0, 1, [f"v_mul_f32 {v(b + i)}, {v(b + i)}, {v(b + 8 + i)}"], None, 0])
            for d in range(4):
                qepi.append([e0, 1, [f"v_cvt_pk_bf16_f32 {v(PK + d)}, {v(b + 2 * d)}, {v(b + 2 * d + 1)}"], None, 0])
            e = (f"chk{p - 1}", 0) if p else e0
            sf, ss, so = (OF, OS, 63 + t) if p == 1 else (WSF, WSS, 58 + t)
            qepi.append([e, 3, [f"buffer_store_dwordx4 {v(PK, 4)}, v2, {s(sf, 4)}, {s(so)} offen ; def:h2_{p}"], None, 0])
            qepi.append([e, 3, [f"buffer_store_dwordx4 {v(PK, 4)}, v2, {s(ss, 4)}, {s(so)} offen sc1 ; def:h2_{p}"],
                         f"st{p}" if t else None, 0])
    for p in range(4):
        o = 256 + 128 * p
        if p < 3:
            qsync.append([(f"st{p}", F[p]), 0, [], None, 0])
        if p & 1:
            qsync.append([(f"b{8 * p + 7}", P("fb", 11)), 0, [], None, 0])
        qsync.append([0, 3, [f"buffer_store_dword v7, off, {s(WSF, 4)}, s60 offset:{o}"], None, 0])
        qsync.append([0, 2, [f"buffer_store_dword v7, off, {s(WSS, 4)}, s60 offset:{o} sc1"], f"fl{p}", 0])
        qsync.append([(f"fl{p}", PL[p]), 2, flag_ld(p), f"pl{p}", 0])
        if p < 3:
            qsync.append([(f"pl{p}", C[p]), 4, lambda E, p=p: E.check_or_spin(flag_ld(p), ["v_cmp_ne_u32 vcc, v7, v5"]),
                          f"chk{p}", 0])
    for x in A.hcopy:
        qmem.append([0, 2, [x], None, 2] if "lds" in x else [0, 1, [x], None, 0])
    for d in range(44):
        st, hf = d >> 1, d & 1
        e = 4 if st < 8 else (f"rd{st - 8}", 8)
        if not hf:
            qmem.append([0, 1, [f"s_add_u32 m0, s55, {(st & 7) * 2048}"], None, 0])
            if st:
                qmem.append([0, 1, ["s_add_u32 s54, s54, 65536"], None, 0])
        qmem.append([e, 2, [f"buffer_load_dwordx4 {'v1' if hf else v(vWD)}, {s(T2, 4)}, s54 offen offset:{hf * 1024} lds ; def:wd{st}"],
                     f"dma{d}", 1])
        o = (st & 7) * 2048
        qrd.append([max(0, 2 * d + 2), 0, [], None, 0])
        qrd.append([(f"dma{d | 1}", LAG), 3 - hf, [f"ds_read_b64_tr_b16 {r(areg(d), 2)}, {v(vA + hf)} offset:{o} ; use:wd{st}",
                                              f"ds_read_b64_tr_b16 {r(areg(d) + 2, 2)}, {v(vA + hf)} offset:{o + 1024}"],
                    f"rd{st}" if hf else None, 0])
    pos = lambda x: (0 if x >> 3 == 1 else WS_B) + (x & 7) * 4096
    cur = [0, 0]
    for st, i in BORD:
        bi = 2 * st + i
        if st:
            qmem.append([0, 1, [f"s_add_u32 {s(56 + i)}, {s(56 + i)}, {(pos(st) - pos(cur[i])) & 0xffffffff}"], None, 0])
            cur[i] = st
        qmem.append([2 * (44 + bi) + 2, 0, [], None, 0])
        qmem.append([(f"chk{st >> 3}", 0), 2,
                     [f"buffer_load_dwordx4 {r(breg(bi), 4)}, v2, {s(SOUT if st >> 3 == 1 else WS, 4)}, {s(56 + i)} offen sc1"
                      + (f" ; def:rd_{1 + 2 * (st >> 3)}" if st < 16 else "")], f"b{bi}", 2])
    qtail = [[M21 - 12, 1, ["v_add_u32 v8, s55, v2"], None, 0]]
    for i in range(1, 4):
        qtail.append([0, 3, [f"s_xor_b32 s38, {s(sW)}, {i}", "s_lshl_b32 s38, s38, 14", f"v_add_u32 {v(8 + i)}, s38, v2"], None, 0])
    for q in range(4):
        qtail.append([0, 2, [f"ds_read_b128 {v(96 + 4 * q, 4)}, v6 offset:{3 * 256 + q * 32}"], None, 0])
    for t in (3, 2, 1):
        e = M21 + 4 + 5 * (4 - t)
        qtail.append([e - 1, 5, ["s_nop 4"], None, 0])
        qtail.append([e, 5, ["s_nop 4"], None, 0])
        for q in range(4):
            qtail.append([0, 3, [f"ds_write_b128 v8, {v(D + 16 * t + 4 * q, 4)} offset:{(t - 1) * 4096 + q * 1024}"], None, 0])
    queues = [qmem, qsync, qepi, qrd, qtail]

    A("s_barrier ; use:hs0")
    A.stamp("up0")
    for n in range(3):
        for t in range(2):
            A(bread(n, t))
    E = K()
    E.nlab = 1000
    E("L_no_unit2:")
    last_bulk = [-9, -9, -9]
    for m, x in enumerate(mf):
        if m == 64:
            A.stamp("r1")
        if m == 128:
            A.stamp("r2")
            A("s_cmp_ge_u32 s45, 22")
            A("s_cbranch_scc1 L_no_unit2")
        if m == 192:
            A("L_up_done:")
            A.stamp("up1")
        if m == M21:
            A(f"s_cmp_ge_u32 {s(sW)}, 2")
            A("s_cbranch_scc1 L_down_tail")
        if m == M21 + 4:
            A("L_down_tail:")
        if m >= 192:
            st, t = seq[m - 192]
            assert at[f"b{2 * st + (t & 1)}"] + 10 <= m, (m, st, t, at[f"b{2 * st + (t & 1)}"])
            assert t >= 2 or not qepi, (m, len(qepi), at)
        A.stamp(f"m{m}")
        A(x)
        budget = 5
        if m == 26:
            A("s_barrier ; use:hs1")
            budget -= 2
        if m + 6 < 192:
            A(bread((m >> 1) + 3, m & 1))
            budget -= 1
        if m + 1 in (128, M21):
            budget -= 2
        if M21 <= m < M21 + 4:
            continue
        first = budget
        for q in queues:
            while q:
                e, cost, ins, name, bulk = q[0]
                if isinstance(e, tuple):
                    if e[0] not in at or at[e[0]] + e[1] > m:
                        break
                elif e > m:
                    break
                if cost > budget or (bulk and (budget < first or (m - last_bulk[-2] < 3 if "chk2" in at else m - last_bulk[-1] < 2)
                                               or (bulk == 1 and m < 180 and m - last_bulk[0] < P("rate", 7)))):
                    break
                if q is qmem and 192 <= m and qepi and True:
                    break
                q.pop(0)
                budget -= cost
                for X in ([A, E] if 128 <= m < 192 else [A]):
                    if callable(ins):
                        ins(X)
                    else:
                        for y in ins:
                            X(y)
                if name:
                    at[name] = m
                if bulk:
                    last_bulk = last_bulk[1:] + [m]
    for e, cost, ins, name, bulk in qtail:
        for y in ins:
            A(y)
    assert not (qsync or qepi or qrd or qmem)
    if "v" in OPT:
        print({k: x for k, x in at.items() if k[:2] in ("st", "fl", "pl", "ch") or k in ("dma43", "rd21", "b0", "b15", "b16", "b31", "b42", "b40")}, len(qtail))
    E(f"s_mov_b32 s58, {WS_SIZE}")
    E(f"s_mov_b32 s59, {WS_SIZE}")
    E("s_branch L_up_done")
    A.stubs += [x.text for x in E.ins] + E.stubs
    A.stamp("down1")
    A("s_waitcnt lgkmcnt(0)")
    A("s_barrier")
    R = 128
    for q in range(4):
        for t in range(3):
            A(f"ds_read_b128 {v(R + 16 * t + 4 * q, 4)}, {v(9 + t)} offset:{t * 4096 + q * 1024}")
    A.check_or_spin(flag_ld(3), ["v_cmp_ne_u32 vcc, v7, v5"])
    for q in range(4):
        for d in range(2 * q, 2 * q + 2):
            A(f"v_pk_add_f32 {v(D + 2 * d, 2)}, {v(D + 2 * d, 2)}, {v(R + 2 * d, 2)}")
            A(f"v_pk_add_f32 {v(R + 16 + 2 * d, 2)}, {v(R + 16 + 2 * d, 2)}, {v(R + 32 + 2 * d, 2)}")
            A(f"v_pk_add_f32 {v(D + 2 * d, 2)}, {v(D + 2 * d, 2)}, {v(R + 16 + 2 * d, 2)}")
            A(f"v_pk_fma_f32 {v(D + 2 * d, 2)}, {v(D + 2 * d, 2)}, {v(96 + 2 * d, 2)}, {v(X1 + 2 * d, 2)}")
            A(f"v_cvt_pk_bf16_f32 {v(32 + d)}, {v(D + 2 * d)}, {v(D + 2 * d + 1)}")
        if q & 1:
            b = 32 + 2 * (q - 1)
            A(f"v_permlane32_swap_b32 {v(b)}, {v(b + 2)}")
            A(f"v_permlane32_swap_b32 {v(b + 1)}, {v(b + 3)}")
            A(f"buffer_store_dwordx4 {v(b, 4)}, v0, {s(SOUT, 4)}, s52 offen offset:{16 * (q - 1)} {'sc1' if 'osc1' in OPT else ('nt' if 'ont' in OPT else '')}")


def build():
    A = K()
    prologue(A)
    attention(A)
    early, A.stubs = A.stubs, []
    attn_epilogue(A)
    outproj(A)
    ffn(A)
    if STAMPS:
        if len(STAMPS) > 2:
            A("s_waitcnt vmcnt(0)")
        A.stamp("end")
        A("s_lshl_b32 s38, s2, 2")
        A(f"s_add_u32 s38, s38, {s(sW)}")
        A("s_lshl_b32 s38, s38, 7")
        A(f"s_add_u32 s38, s38, {WS_STAMP}")
        for i in range(len(STAMPS)):
            A(f"v_mov_b32 v4, {s(76 + 2 * i)}")
            A(f"buffer_store_dword v4, off, {s(WS, 4)}, s38 offset:{8 * i}")
    if any(o.startswith("pad=") for o in OPT):
        A("L_pad:")
        A("s_sleep 1")
        A("s_memrealtime s[96:97]")
        A("s_sub_u32 s96, s96, s98")
        A("s_cmp_lt_u32 s96, 6000")
        A("s_cbranch_scc1 L_pad")
    A("s_endpgm")
    for x in A.stubs:
        A(x)
    A("L_end:")
    A("s_endpgm")
    B = K()
    for x in early:
        B(x)
    fallback(B)
    g = [x.label for x in A.ins].index("L_gap")
    A.ins[g:g + 1] = B.ins
    return A


def add_pads(A):
    if "pad" not in OPT:
        return
    sz = ins_sizes(A)
    i0 = [x.label for x in A.ins].index("L_aligned") + 1
    pos, addr, page = [], 0, 0
    i = i0
    while i < len(A.ins):
        if addr >= page * 4096 and A.ins[i].ws:
            k, ad = i, addr
            best = i
            while ad + 4 <= page * 4096 + 64 and k < len(A.ins):
                if k > i0 and A.ins[k - 1].kind == "mfma" and A.ins[k].kind == "valu":
                    best = k
                    break
                ad += sz[k]
                k += 1
            pos.append(best)
            addr += 4
            page += 1
        addr += sz[i]
        i += 1
    n = len(pos)
    assert n >= 4
    for p in reversed(range(n)):
        tgt = f"L_page{p + 4}" if p + 4 < n else "L_warmed"
        A.ins[pos[p]:pos[p]] = [Ins(f"L_page{p}:"), Ins(f"s_cbranch_execz {tgt} ; warm")]


HEAD = """; adaLN block: multi-query attention + ReGLU feed-forward, one launch of 256 workgroups (one per CU).
; Generated by gen/fused.py (hand-written generator).
; @launch grid=(256,1,1) block=(256,1,1) lds=%d
.amdgcn_target "amdgcn-amd-amdhsa--gfx950"
""" % LDS_BYTES


def main(out, opt=""):
    OPT.clear()
    OPT.update(x for x in opt.split(",") if x)
    STAMPS.clear()
    for k, names in STAMP_SETS.items():
        if k in OPT:
            STAMPS.extend(names)
    for o in OPT:
        if o.startswith("st="):
            STAMPS.extend(o[3:].split(":"))
    A = build()
    text = ("; stamps: " + ",".join(STAMPS) + "\n" if STAMPS else "") + HEAD + kernel_text(NAME + "_kernel", A, verbose="v" in OPT, post=add_pads)
    open(out, "w").write(text)


if __name__ == "__main__":
    main(sys.argv[1], sys.argv[2] if len(sys.argv) > 2 else "")
```

```python
import struct
import sys

from asmlib import Asm, Ins, a, ins_sizes, kernel_text, r, s, v

NAME = "adaLN_cond__grouped_kv_mqa__glu_gated_reglu__prompt"
WS_NONCE = 0x0
WS_MODG = 0x1000
WS_FKV = 0x4000
WS_FRL = 0x6000
WS_FG = 0x8000
WS_KV = 0x20000
WS_WGU = 0x100000
WS_B = 0x400000
WS_STAMP = 0x1C00000
WS_SIZE = 0x2000000
QSCALE = 0.25 * 1.4426950408889634
HT = 32 * 1056
L_H1 = 0
L_WQ = 2 * HT
KVB = 2080
L_SP = 64 * KVB
L_MODL = L_SP
L_OWN = L_SP + 4096
L_MPART = L_SP + 5120
L_RED = L_SP + 6144
L_WO = 0
L_H = 65536
LDS_BYTES = 163840
assert L_WQ + 65536 == L_SP and L_RED + 16384 <= LDS_BYTES

MF = "v_mfma_f32_32x32x16_bf16"
MF16 = "v_mfma_f32_16x16x32_bf16"
SM = "v_smfmac_f32_32x32x32_bf16"
DPPF = "row_mask:0xf bank_mask:0xf"
SPIN_MAX = 1 << 18

WS, WSF, WSS, SX, SOUT, T1, T2, OF, OS = 8, 12, 16, 20, 24, 28, 4, 68, 72
sW, sG, sJ, sTAG, sTT, sHP = 32, 33, 34, 35, 36, 37
sGA = 62
OPT = set()
STAMPS = []
STAMP_SETS = {
    "stA": ["start", "modpub", "ln0", "ln1", "hop1", "hop1done", "kvst", "rows", "qdone", "hop2", "attn0", "attn1", "end"],
    "stC": ["start", "attn0", "kt4", "kt8", "kt12", "kt16", "kt24", "kt32", "kt40", "kt48", "kt56", "attn1", "end"],
    "stB": ["start", "attn0", "attn1", "e1", "oproj", "stat", "e2a", "e2b", "up0", "up1", "down1", "end"],
}


def P(name, default):
    for o in OPT:
        if o.startswith(name + "="):
            return int(o.split("=")[1])
    return default


def f2u(x):
    return hex(struct.unpack("<I", struct.pack("<f", x))[0])


class K(Asm):
    def __init__(self):
        super().__init__()
        self.stubs = []
        self.nlab = 0

    def lab(self, p):
        self.nlab += 1
        return f"L_{p}_{self.nlab}"

    def stamp(self, name):
        if "pad=" + name in OPT or (name == "start" and any(o.startswith("pad=") for o in OPT)):
            pj = [o for o in OPT if o.startswith("padj=")]
            if pj and name != "start":
                lo, hi = pj[0][5:].split(":")
                L = self.lab("pj")
                self("s_bfe_u32 s97, s2, 0x30003")
                self(f"s_sub_u32 s97, s97, {lo}")
                self(f"s_cmp_gt_u32 s97, {int(hi) - int(lo)}")
                self(f"s_cbranch_scc1 {L}")
                self("s_memrealtime s[98:99]")
                self(f"{L}:")
            else:
                self("s_memrealtime s[98:99]")
        if name in STAMPS:
            self(f"{'s_memtime' if 'cyc' in OPT else 's_memrealtime'} {s(76 + 2 * STAMPS.index(name), 2)}")

    def srd(self, d, src, size):
        self(f"s_mov_b32 {s(d)}, {s(src)}")
        self(f"s_mov_b32 {s(d + 1)}, {s(src + 1)}")
        self(f"s_mov_b32 {s(d + 2)}, {size}")
        self(f"s_mov_b32 {s(d + 3)}, 0x20000")

    def xstore(self, op, data, vaddr, soff, extra="", tok=None, out=False):
        t = f" ; def:{tok}" if tok else ""
        self(f"{op} {data}, {vaddr}, {s(OF if out else WSF, 4)}, {soff} offen {extra}{t}")
        self(f"{op} {data}, {vaddr}, {s(OS if out else WSS, 4)}, {soff} offen {extra} sc1{t}")

    def xflag(self, soff, off, vt, use):
        self(f"; use:{use}")
        self(f"buffer_store_dword {v(vt)}, off, {s(WSF, 4)}, {soff} offset:{off}")
        self(f"buffer_store_dword {v(vt)}, off, {s(WSS, 4)}, {soff} offset:{off} sc1")

    def spin(self, loads, check, sleep=0):
        L, E = self.lab("spin"), self.lab("spun")
        self("s_mov_b32 s3, 0")
        self(f"{L}:")
        for x in loads:
            self(x)
        for x in check:
            self(x)
        self(f"s_cbranch_vccz {E}")
        if sleep:
            self(f"s_sleep {sleep}")
        self("s_add_u32 s3, s3, 1")
        self(f"s_cmp_lt_u32 s3, {SPIN_MAX}")
        self(f"s_cbranch_scc1 {L}")
        self(f"{E}:")

    def check_or_spin(self, loads, check):
        L, E, S = self.lab("late"), self.lab("ok"), self.lab("lspin")
        for x in check:
            self(x)
        self(f"s_cbranch_vccnz {L}")
        self(f"{E}:")
        st = [f"{L}:", "s_mov_b32 s3, 0", f"{S}:"] + list(loads) + list(check) + [
            f"s_cbranch_vccz {E}", "s_add_u32 s3, s3, 1", f"s_cmp_lt_u32 s3, {SPIN_MAX}", f"s_cbranch_scc1 {S}",
            f"s_branch {E}"]
        self.stubs += st


SD = 32


def mod_loads(SD=SD):
    setup = ["v_lshrrev_b32 v89, 2, v0", "v_and_b32 v90, 3, v0", "v_lshlrev_b32 v91, 2, v89",
             "v_lshl_add_u32 v91, v90, 8, v91", "v_mul_u32_u24 v89, 12288, v89", "v_lshl_add_u32 v89, v90, 4, v89",
             "s_lshl_b32 s42, s41, 6"]
    loads = [[f"buffer_load_dword v88, v91, {s(T2, 4)}, 0 offen"]]
    for i in range(8):
        pre = [f"s_add_u32 s42, s42, {6144 if i & 1 else 127 * 6144}"] if i else []
        loads.append(pre + [f"buffer_load_dwordx4 {v(SD + 4 * i, 4)}, v89, {s(T1, 4)}, s42 offen"])
    return setup, loads


def mod_partial(A, T, SD=SD):
    c0, c1, acc, pm = T, T + 1, T + 4, T + 12
    A(f"v_lshlrev_b32 {v(c0)}, 16, v88")
    A(f"v_and_b32 {v(c1)}, 0xffff0000, v88")
    for x in (c0, c1):
        A(f"v_mul_f32 {v(x + 2)}, {f2u(-1.4426950408889634)}, {v(x)}")
    for x in (c0, c1):
        A(f"v_exp_f32 {v(x + 2)}, {v(x + 2)}")
    for e in range(8):
        A(f"v_mov_b32 {v(acc + e)}, 0")
    for x in (c0, c1):
        A(f"v_add_f32 {v(x + 2)}, 1.0, {v(x + 2)}")
    for x in (c0, c1):
        A(f"v_rcp_f32 {v(x + 2)}, {v(x + 2)}")
    A("s_mov_b32 s38, 0x05040100")
    A("s_mov_b32 s39, 0x07060302")
    for x in (c0, c1):
        A(f"v_mul_f32 {v(x)}, {v(x)}, {v(x + 2)}")
    A(f"v_cvt_pk_bf16_f32 {v(c0)}, {v(c0)}, {v(c1)}")
    for p in range(4):
        for d in range(4):
            w0, w1 = SD + 8 * p + d, SD + 4 + 8 * p + d
            A(f"v_perm_b32 {v(pm + 2 * d)}, {v(w1)}, {v(w0)}, s38")
            A(f"v_perm_b32 {v(pm + 1 + 2 * d)}, {v(w1)}, {v(w0)}, s39")
        for e in range(8):
            A(f"v_dot2c_f32_bf16_dpp {v(acc + e)}, {v(c0)}, {v(pm + e)} quad_perm:[{p},{p},{p},{p}] {DPPF}")
    for e in range(4):
        A(f"v_permlane32_swap_b32 {v(acc + e)}, {v(acc + 4 + e)}")
    for e in range(4):
        A(f"v_add_f32 {v(acc + e)}, {v(acc + e)}, {v(acc + 4 + e)}")
    A(f"v_lshrrev_b32 {v(c0)}, 4, v1")
    for e in range(2):
        A(f"v_permlane16_swap_b32 {v(acc + e)}, {v(acc + 2 + e)}")
    for e in range(2):
        A(f"v_add_f32 {v(acc + e)}, {v(acc + e)}, {v(acc + 2 + e)}")
    A(f"v_and_b32 {v(c1)}, 3, v1")
    A(f"v_lshl_add_u32 {v(c0)}, {v(c1)}, 2, {v(c0)}")
    for e in range(2):
        A(f"v_add_f32_dpp {v(acc + e)}, {v(acc + e)}, {v(acc + e)} row_ror:8 {DPPF}")
    A(f"s_lshl_b32 s38, {s(sW)}, 7")
    A(f"v_lshl_add_u32 {v(c0)}, {v(c0)}, 3, s38")
    for e in range(2):
        A(f"v_add_f32_dpp {v(acc + e)}, {v(acc + e)}, {v(acc + e)} row_ror:4 {DPPF}")
    A(f"v_add_u32 {v(c0)}, {L_MPART}, {v(c0)}")
    A(f"ds_write_b64 {v(c0)}, {v(acc, 2)}")


def mod_publish(A, T):
    A(f"v_and_b32 {v(T)}, 15, v1")
    A(f"v_lshlrev_b32 {v(T)}, 3, {v(T)}")
    A(f"v_add_u32 {v(T + 1)}, {L_MPART}, {v(T)}")
    P = T + 2
    for i in range(4):
        A(f"ds_read_b64 {v(P + 2 * i, 2)}, {v(T + 1)} offset:{128 * i}")
    A("s_lshr_b32 s38, s41, 4")
    A("s_cmp_eq_u32 s38, 1")
    A("s_cselect_b32 s39, 1.0, 0")
    A("s_cmp_eq_u32 s38, 4")
    A("s_cselect_b32 s39, 1.0, s39")
    A("s_lshl_b32 s38, s41, 7")
    A(f"s_add_u32 s38, s38, {WS_MODG}")
    A(f"v_pk_add_f32 {v(P, 2)}, {v(P, 2)}, {v(P + 2, 2)}")
    A(f"v_pk_add_f32 {v(P + 4, 2)}, {v(P + 4, 2)}, {v(P + 6, 2)}")
    A(f"v_pk_add_f32 {v(P, 2)}, {v(P, 2)}, {v(P + 4, 2)}")
    A(f"v_cvt_pk_bf16_f32 {v(P)}, {v(P)}, {v(P + 1)}")
    A(f"v_mov_b32 {v(P + 3)}, {s(sTAG)}")
    A(f"v_and_b32 {v(P + 1)}, 0xffff0000, {v(P)}")
    A(f"v_lshlrev_b32 {v(P)}, 16, {v(P)}")
    A(f"v_add_f32 {v(P + 1)}, s39, {v(P + 1)}")
    A(f"v_add_f32 {v(P)}, s39, {v(P)}")
    A(f"v_cvt_pk_bf16_f32 {v(P + 2)}, {v(P)}, {v(P + 1)}")
    A("s_mov_b64 exec, 0xffff")
    A(f"buffer_store_dwordx2 {v(P + 2, 2)}, {v(T)}, {s(WS, 4)}, s38 offen sc1")
    A("s_mov_b64 exec, -1")


def relayout_setup(A):
    A(f"s_sub_u32 s38, {s(sJ)}, 5")
    A("s_lshl_b32 s38, s38, 5")
    A(f"s_add_u32 s38, s38, {s(sG)}")
    A("s_lshl_b32 s38, s38, 2")
    A(f"s_add_u32 s38, s38, {s(sW)}")
    A("s_cmp_lt_u32 s38, 352")
    A(f"s_cselect_b32 s40, {512 * 2752}, 0")
    A.srd(T1, 56, "s40")
    A.srd(T2, 58, "s40")
    A("s_lshr_b32 s3, s38, 5")
    A("s_and_b32 s38, s38, 31")
    A(f"s_mul_i32 s41, s38, {16 * 2752}")
    A("s_lshl_b32 s39, s3, 8")
    A("s_add_u32 s41, s41, s39")
    A("s_lshl_b32 s42, s3, 18")
    A("s_lshl_b32 s38, s38, 10")
    A("s_add_u32 s42, s42, s38")
    A(f"s_add_u32 s42, s42, {WS_WGU}")


def relayout_loads(A):
    A("v_lshrrev_b32 v89, 4, v1")
    A("v_and_b32 v90, 15, v1")
    A("v_mul_u32_u24 v89, 2752, v89")
    A("v_lshl_add_u32 v89, v90, 4, v89")
    for q in range(8):
        A(f"buffer_load_dwordx4 {v(SD + 4 * q, 4)}, v89, {s(T2 if q & 1 else T1, 4)}, s41 offen")
        if q & 1 and q < 7:
            A(f"s_add_u32 s41, s41, {4 * 2752}")


def relayout_finish(A, T):
    A(f"s_mul_i32 s38, {s(sW)}, 9216")
    A(f"v_lshrrev_b32 {v(T)}, 4, v1")
    A(f"v_mul_u32_u24 {v(T)}, 576, {v(T)}")
    A(f"v_and_b32 {v(T + 1)}, 15, v1")
    A(f"v_lshlrev_b32 {v(T + 1)}, 4, {v(T + 1)}")
    A(f"v_add3_u32 {v(T)}, {v(T)}, {v(T + 1)}, s38")
    for q in range(8):
        A(f"ds_write_b128 {v(T)}, {v(SD + 4 * q, 4)} offset:{(q >> 1) * 4 * 576 + (q & 1) * 288}")
    A(f"v_lshl_add_u32 {v(T)}, v11, 2, v9")
    A(f"v_mul_u32_u24 {v(T)}, 576, {v(T)}")
    A(f"v_bfe_u32 {v(T + 1)}, v1, 4, 1")
    A(f"v_mul_u32_u24 {v(T + 1)}, 288, {v(T + 1)}")
    A(f"v_add3_u32 {v(T)}, {v(T)}, {v(T + 1)}, s38")
    A(f"v_add_u32 {v(T)}, {v(T)}, v8")
    A("s_waitcnt lgkmcnt(0)")
    for f in range(8):
        A(f"ds_read_b64_tr_b16 {v(SD + 4 * f, 2)}, {v(T)} offset:{32 * f}")
        A(f"ds_read_b64_tr_b16 {v(SD + 2 + 4 * f, 2)}, {v(T)} offset:{32 * f + 8 * 576}")
    for f in range(8):
        A(f"buffer_store_dwordx4 {v(SD + 4 * f, 4)}, v2, {s(WS, 4)}, s42 offen sc1 ; def:rl")
        if f < 7:
            A("s_add_u32 s42, s42, 32768")


def slice_voffset(A, d, t):
    A(f"v_lshrrev_b32 {v(d)}, 3, v1")
    A(f"v_lshrrev_b32 {v(t)}, 2, v1")
    A(f"v_and_b32 {v(t)}, 4, {v(t)}")
    A(f"v_xor_b32 {v(t)}, {v(t)}, v1")
    A(f"v_and_b32 {v(t)}, 7, {v(t)}")
    A(f"v_lshlrev_b32 {v(t)}, 4, {v(t)}")
    A(f"v_lshl_add_u32 {v(d)}, {v(d)}, 10, {v(t)}")


def slice_read_addr(A, d, t, hshift, base):
    A(f"v_lshrrev_b32 {v(d)}, 5, v1")
    A(f"v_bfe_u32 {v(t)}, v1, 2, 2")
    A(f"v_lshl_add_u32 {v(d)}, {v(d)}, {hshift}, {v(t)}")
    A(f"v_lshrrev_b32 {v(t)}, 1, {v(t)}")
    A(f"v_xor_b32 {v(t)}, {s(sHP)}, {v(t)}")
    A(f"v_lshl_add_u32 {v(d)}, {v(d)}, 1, {v(t)}")
    A(f"v_bfe_u32 {v(t)}, v1, 4, 1")
    A(f"v_lshl_add_u32 {v(d)}, {v(d)}, 1, {v(t)}")
    A(f"v_and_b32 {v(t)}, 3, v1")
    A(f"v_lshl_add_u32 {v(d)}, {v(d)}, 2, {v(t)}")
    A(f"v_lshlrev_b32 {v(d)}, 3, {v(d)}")
    A(f"v_add_u32 {v(d)}, {base}, {v(d)}")


def column_id(A, d):
    A(f"s_cmp_eq_u32 {s(sJ)}, 3")
    A(f"s_cselect_b32 {s(d)}, 5, {s(sJ)}")
    A(f"s_cmp_eq_u32 {s(sJ)}, 5")
    A(f"s_cselect_b32 {s(d)}, 3, {s(d)}")


def prologue(A):
    X, N = 64, 128
    XA = 192
    A("s_cmp_ge_u32 s2, 256")
    A("s_cbranch_scc1 L_end")
    A.stamp("start")
    A("s_load_dwordx16 s[44:59], s[0:1], 0")
    A("s_load_dwordx8 s[60:67], s[0:1], 64")
    A(f"s_load_dwordx2 {s(WS, 2)}, s[0:1], 104")
    A("v_lshrrev_b32 v3, 6, v0")
    A("v_and_b32 v1, 63, v0")
    A(f"v_readfirstlane_b32 {s(sW)}, v3")
    A("v_lshlrev_b32 v2, 4, v1")
    A(f"s_lshr_b32 {s(sJ)}, s2, 3")
    A(f"s_and_b32 {s(sJ)}, {s(sJ)}, 7")
    A(f"s_lshr_b32 {s(sG)}, s2, 6")
    A(f"s_cmp_lt_u32 {s(sJ)}, 5")
    A("s_cbranch_scc1 L_nocode")
    A("s_getpc_b64 s[38:39]")
    A("L_pc:")
    A(f"s_sub_u32 s3, {s(sJ)}, 5")
    A("s_lshl_b32 s3, s3, 2")
    A(f"s_add_u32 s3, s3, {s(sG)}")
    A("s_lshl_b32 s3, s3, 12")
    A("v_lshrrev_b32 v4, 3, v0")
    A("v_lshl_add_u32 v4, v4, 7, s3")
    A("v_min_u32 v4, L_end-L_pc, v4")
    A("global_load_dword v5, v4, s[38:39]")
    A("L_nocode:")
    A(f"s_lshl_b32 {s(sG)}, {s(sG)}, 3")
    A("s_and_b32 s3, s2, 7")
    A(f"s_add_u32 {s(sG)}, {s(sG)}, s3")
    A(f"s_and_b32 {s(sTT)}, {s(sW)}, 1")
    A(f"s_lshr_b32 {s(sHP)}, {s(sW)}, 1")
    A(f"s_mov_b32 {s(WS + 2)}, {WS_SIZE}")
    A(f"s_mov_b32 {s(WS + 3)}, 0x20000")
    A("s_bfe_u32 s38, s2, 0x10007")
    A("s_lshl_b32 s39, s38, 2")
    A("s_xor_b32 s3, s3, s39")
    A("s_lshl_b32 s38, s38, 3")
    A("s_add_u32 s3, s3, s38")
    A("s_lshl_b32 s3, s3, 1")
    A("s_bfe_u32 s38, s2, 0x10006")
    A("s_add_u32 s3, s3, s38")
    A(f"s_sub_u32 s41, {s(sJ)}, 2")
    A("s_lshl_b32 s41, s41, 5")
    A("s_add_u32 s41, s41, s3")
    msetup, mloads = mod_loads()
    for x in msetup:
        A(x)
    A(f"s_and_b32 s38, {s(sJ)}, 1")
    A("s_lshl_b32 s38, s38, 15")
    A(f"s_lshl_b32 s43, {s(sG)}, 16")
    A(f"s_lshl_b32 s40, {s(sW)}, 13")
    A("s_add_u32 s43, s43, s40")
    A("s_add_u32 s43, s43, s38")
    nonce = f"buffer_load_dword v7, off, {s(WS, 4)}, 0 offset:{WS_NONCE} sc1"

    def x_loads():
        for i in range(16):
            A(f"buffer_load_dwordx4 {v(XA + 4 * i, 4)}, v2, {s(SX, 4)}, s43 offen offset:{(i & 3) * 1024}")
            if i in (3, 11):
                A("s_add_u32 s43, s43, 4096")
            if i == 7:
                A("s_xor_b32 s43, s43, 0x9000")

    def get_tag():
        A(f"v_readfirstlane_b32 {s(sTAG)}, v7")
        A(f"s_mul_i32 {s(sTAG)}, {s(sTAG)}, 1664525")
        A(f"s_add_u32 {s(sTAG)}, {s(sTAG)}, 1013904223")

    A.srd(T1, 64, 512 * 6144)
    A.stamp("karg")
    A.srd(T2, 62, 1024)
    A.srd(SX, 44, 2048 * 1024)
    A(f"s_cmp_lg_u32 {s(sJ)}, 2")
    A("s_cbranch_scc1 L_not_crit")
    for g in mloads:
        for x in g:
            A(x)
    A(nonce)
    A.stamp("modiss")
    if "modarr" in STAMPS:
        A("s_waitcnt vmcnt(9)")
        A.stamp("carr")
        A("s_waitcnt vmcnt(8)")
        A.stamp("mod1st")
        A("s_waitcnt vmcnt(1)")
        A.stamp("modarr")
        A("s_waitcnt vmcnt(0)")
        A.stamp("nonce")
    mod_partial(A, 8)
    get_tag()
    A("s_waitcnt lgkmcnt(0)")
    A("s_barrier")
    A(f"s_cmp_lg_u32 {s(sW)}, 0")
    A("s_cbranch_scc1 L_crit_done")
    mod_publish(A, 8)
    A("L_crit_done:")
    A.stamp("modpub")
    x_loads()
    A("s_branch L_ln")
    A("L_not_crit:")
    x_loads()
    A(nonce)
    A(f"s_cmp_gt_u32 {s(sJ)}, 2")
    A("s_cbranch_scc1 L_role_rl")
    A(f"s_cmp_eq_u32 {s(sHP)}, 0")
    A(f"s_cselect_b32 {s(WSF)}, s48, s50")
    A(f"s_cselect_b32 {s(WSF + 1)}, s49, s51")
    A(f"s_mov_b32 {s(WSF + 2)}, 16384")
    A(f"s_mov_b32 {s(WSF + 3)}, 0x20000")
    A(f"s_lshl_b32 m0, {s(sW)}, 13")
    A(f"s_lshl_b32 s38, {s(sTT)}, 13")
    for i in range(8):
        A(f"buffer_load_dwordx4 v2, {s(WSF, 4)}, s38 offen offset:{(i & 3) * 1024} lds ; def:kvw")
        if i == 3:
            A("s_add_u32 m0, m0, 4096")
            A("s_add_u32 s38, s38, 4096")
    A("s_branch L_ln")
    A("L_role_rl:")
    A(f"s_cmp_gt_u32 {s(sJ)}, 4")
    A("s_cbranch_scc1 L_nomod2")
    for x in sum(mloads, []):
        A(x)
    A("s_branch L_ln")
    A("L_nomod2:")
    relayout_setup(A)

    A("L_ln:")
    A.stamp("ln0")
    A.srd(SOUT, 66, 2048 * 1024)
    A.srd(WSF, 46, 512 * 1024)
    slice_voffset(A, 6, 4)
    A(f"s_lshl_b32 s38, {s(sW)}, 17")
    column_id(A, 39)
    A("s_lshl_b32 s39, s39, 7")
    A("s_add_u32 s38, s38, s39")
    A(f"s_lshl_b32 s39, {s(sW)}, 14")
    A(f"s_add_u32 m0, s39, {L_WQ}")
    wq = []
    for i in range(16):
        wq.append([f"buffer_load_dwordx4 v6, {s(WSF, 4)}, s38 offen lds ; def:wq"]
                  + (["s_add_u32 m0, m0, 1024", "s_add_u32 s38, s38, 8192"] if i < 15 else []))
    cnt = [0]

    def V(x, every=20):
        A(x)
        cnt[0] += 1
        if cnt[0] >= every and wq:
            cnt[0] = 0
            for y in wq.pop(0):
                A(y)

    S1, S2 = 96, 112
    A("v_mov_b32 v3, 0x3f803f80")
    for i in range(16):
        E = A if i < 15 else V
        E(f"v_dot2_f32_bf16 {v(S1 + i)}, {v(XA + 4 * i)}, v3, 0")
        E(f"v_dot2_f32_bf16 {v(S2 + i)}, {v(XA + 4 * i)}, {v(XA + 4 * i)}, 0")
        if i:
            for d in range(1, 4):
                E(f"v_dot2c_f32_bf16 {v(S1 + i - 1)}, {v(XA + 4 * i - 4 + d)}, v3")
                E(f"v_dot2c_f32_bf16 {v(S2 + i - 1)}, {v(XA + 4 * i - 4 + d)}, {v(XA + 4 * i - 4 + d)}")
            if i <= 8:
                for d in range(4):
                    E(f"v_lshlrev_b32 {v(N + 8 * (i - 1) + 2 * d)}, 16, {v(XA + 4 * (i - 1) + d)}")
                    E(f"v_and_b32 {v(N + 8 * (i - 1) + 2 * d + 1)}, 0xffff0000, {v(XA + 4 * (i - 1) + d)}")
    cnt[0] = 100
    for d in range(1, 4):
        V(f"v_dot2c_f32_bf16 {v(S1 + 15)}, {v(XA + 60 + d)}, v3")
        V(f"v_dot2c_f32_bf16 {v(S2 + 15)}, {v(XA + 60 + d)}, {v(XA + 60 + d)}")
    EV = 14
    for op, n in (("v_permlane32_swap_b32", 8), ("v_permlane16_swap_b32", 4)):
        for b in (S1, S2):
            for i in range(n):
                V(f"{op} {v(b + i)}, {v(b + i + n)}", EV)
        for b in (S1, S2):
            for i in range(n):
                V(f"v_add_f32 {v(b + i)}, {v(b + i)}, {v(b + i + n)}", EV)
    for b in (S1, S2):
        for i in range(2):
            V(f"v_add_f32_dpp {v(b + i)}, {v(b + i)}, {v(b + i)} row_ror:8 row_mask:0xf bank_mask:0x3", EV)
    for b in (S1, S2):
        for i in range(2):
            V(f"v_add_f32_dpp {v(b + i)}, {v(b + i + 2)}, {v(b + i + 2)} row_ror:8 row_mask:0xf bank_mask:0xc", EV)
    unp = []
    for i in range(8, 16):
        for d in range(4):
            src, dst = XA + 4 * i + d, N + 8 * i + 2 * d
            assert dst + 1 <= src
            unp.append(f"v_lshlrev_b32 {v(dst)}, 16, {v(src)}")
            unp.append(f"v_and_b32 {v(dst + 1)}, 0xffff0000, {v(src)}")

    def fill(n):
        for _ in range(n):
            V(unp.pop(0), EV)

    for b in (S1, S2):
        A(f"v_add_f32_dpp {v(b)}, {v(b)}, {v(b)} row_half_mirror row_mask:0xf bank_mask:0x5")
    fill(1)
    for b in (S1, S2):
        A(f"v_add_f32_dpp {v(b)}, {v(b + 1)}, {v(b + 1)} row_half_mirror row_mask:0xf bank_mask:0xa")
    for qp in ("[1,0,3,2]", "[2,3,0,1]"):
        fill(1)
        for b in (S1, S2):
            A(f"v_add_f32_dpp {v(b)}, {v(b)}, {v(b)} quad_perm:{qp} {DPPF}")
    A(f"v_mul_f32 v3, {f2u(1 / 512)}, {v(S1)}")
    A(f"v_mul_f32 v4, {f2u(1 / 512)}, {v(S2)}")
    A("v_fma_f32 v4, -v3, v3, v4")
    A("v_max_f32 v4, 0, v4")
    A(f"v_add_f32 v4, {f2u(1e-5)}, v4")
    A("v_rsq_f32 v4, v4")
    fill(1)
    A("v_mul_f32 v3, -v3, v4")
    for i in range(16):
        V(f"v_readlane_b32 {s(44 + 2 * i)}, v4, {4 * i}", EV)
        V(f"v_readlane_b32 {s(45 + 2 * i)}, v3, {4 * i}", EV)
    fill(len(unp))
    for i in range(16):
        for d in range(4):
            n = v(N + 8 * i + 2 * d, 2)
            V(f"v_pk_fma_f32 {n}, {n}, {s(44 + 2 * i, 2)}, {s(44 + 2 * i, 2)} op_sel:[0,0,1] op_sel_hi:[1,0,1]", EV)
    while wq:
        for y in wq.pop(0):
            A(y)
    A.stamp("ln1")
    A.srd(WSF, WS, 0)
    A.srd(WSS, WS, WS_SIZE)
    A("v_and_b32 v8, 3, v1")
    A("v_lshlrev_b32 v8, 3, v8")
    A("v_bfe_u32 v9, v1, 2, 2")
    A("v_lshrrev_b32 v11, 5, v1")
    A(f"s_cmp_eq_u32 {s(sJ)}, 2")
    A("s_cbranch_scc1 L_hop1")
    get_tag()
    A(f"s_cmp_lt_u32 {s(sJ)}, 2")
    A("s_cbranch_scc1 L_kvw")
    A(f"s_cmp_gt_u32 {s(sJ)}, 4")
    A("s_cbranch_scc1 L_rl_loads")
    mod_partial(A, 64)
    A("s_branch L_hop1")
    A("L_rl_loads:")
    relayout_loads(A)
    A("s_branch L_hop1")
    A("L_kvw:")
    A("v_lshrrev_b32 v3, 4, v1")
    A("v_lshl_add_u32 v3, v3, 3, v9")
    A("v_lshl_add_u32 v3, v3, 5, v8")
    A(f"s_lshl_b32 s38, {s(sHP)}, 14")
    A("v_add_u32 v3, s38, v3")
    A("s_barrier ; use:kvw")
    for ks in range(16):
        A(f"ds_read_b64_tr_b16 {a(128 + 4 * ks, 2)}, v3 offset:{ks * 1024}")
        A(f"ds_read_b64_tr_b16 {a(130 + 4 * ks, 2)}, v3 offset:{ks * 1024 + 128}")
    A("L_hop1:")
    A.stamp("hop1")
    A("v_lshlrev_b32 v3, 4, v0")
    A(f"s_mov_b32 s38, {WS_MODG}")
    A("v_lshlrev_b32 v4, 3, v0")
    A(f"v_add_u32 v4, {L_MODL}, v4")
    A(f"s_and_b32 s39, {s(sJ)}, 1")
    A(f"s_mul_i32 s44, s39, {HT}")
    A("s_xor_b32 s39, s39, 1")
    A(f"s_mul_i32 s39, s39, {HT}")
    A(f"s_lshl_b32 s45, {s(sW)}, 7")
    A("v_mul_u32_u24 v5, 528, v1")
    A("v_add_u32 v5, s45, v5")
    A("v_add_u32 v6, s39, v5")
    A("v_add_u32 v5, s44, v5")
    A(f"v_add_u32 v7, {L_MODL}, v2")
    A.spin([f"buffer_load_dwordx4 v[12:15], v3, {s(WS, 4)}, s38 offen sc1"],
           [f"v_xor_b32 v13, {s(sTAG)}, v13", f"v_xor_b32 v15, {s(sTAG)}, v15", "v_or_b32 v15, v13, v15",
            "v_cmp_ne_u32 vcc, 0, v15"])
    A(f"s_cmp_le_u32 {s(sJ)}, 4")
    A("s_cbranch_scc1 L_no_rl")
    relayout_finish(A, 64)
    A("L_no_rl:")
    A("v_mov_b32 v13, v14")
    A("v_xor_b32 v16, 0x80008000, v12")
    A("v_xor_b32 v17, 0x80008000, v14")
    A("ds_write_b64 v4, v[12:13]")
    A("ds_write_b64 v4, v[16:17] offset:2048")
    A("s_waitcnt lgkmcnt(0)")
    A("s_barrier")
    A.stamp("hop1done")
    SH, SC = 16, 24
    A("ds_read_b128 v[12:15], v7")
    A("ds_read_b128 v[64:67], v7 offset:1024")
    A(f"s_sub_u32 s40, {s(sJ)}, 3")
    A(f"s_lshl_b32 s3, {s(sW)}, 1")
    A("s_or_b32 s3, s3, s40")
    A("s_cmp_gt_u32 s3, 1")
    A("s_cbranch_scc1 L_nopub2")
    mod_publish(A, 70)
    A("L_nopub2:")
    for d in range(4):
        A(f"v_lshlrev_b32 {v(SH + 2 * d)}, 16, {v(12 + d)}")
        A(f"v_and_b32 {v(SH + 2 * d + 1)}, 0xffff0000, {v(12 + d)}")
    for d in range(4):
        A(f"v_lshlrev_b32 {v(SC + 2 * d)}, 16, {v(64 + d)}")
        A(f"v_and_b32 {v(SC + 2 * d + 1)}, 0xffff0000, {v(64 + d)}")

    def modrow(i):
        t = 64 + 4 * (i & 3)
        for d in range(4):
            n = v(N + 8 * i + 2 * d, 2)
            A(f"v_pk_fma_f32 {n}, {n}, {v(SC + 2 * d, 2)}, {v(SH + 2 * d, 2)}")
        for d in range(4):
            A(f"v_cvt_pk_bf16_f32 {v(t + d)}, {v(N + 8 * i + 2 * d)}, {v(N + 8 * i + 2 * d + 1)}")
        A(f"ds_write_b128 {v(5 + (i >> 3))}, {v(t, 4)} offset:{16 * (i & 7)}")

    for i in range(8):
        modrow(i)
    A(f"s_cmp_ge_u32 {s(sJ)}, 2")
    A("s_cbranch_scc1 L_rows2")
    KA = "v[80:83]"
    A("v_lshrrev_b32 v3, 4, v1")
    A("v_and_b32 v4, 15, v1")
    A("v_mul_u32_u24 v12, 528, v3")
    A("v_lshl_add_u32 v12, v4, 4, v12")
    A(f"s_lshl_b32 s38, {s(sTT)}, 8")
    A("s_add_u32 s38, s38, s44")
    A("v_add_u32 v12, s38, v12")
    A(f"s_lshl_b32 s38, {s(sG)}, 1")
    A(f"s_add_u32 s38, s38, {s(sJ)}")
    A("s_lshl_b32 s38, s38, 11")
    A(f"s_add_u32 s38, s38, {WS_KV}")
    A(f"s_cmp_lg_u32 {s(sHP)}, 0")
    A("s_cbranch_scc1 L_vjob")
    A("v_lshlrev_b32 v13, 4, v3")
    A(f"v_add_u32 v13, {L_MODL + 2048}, v13")
    for ks in range(16):
        A(f"ds_read_b128 {a(64 + 4 * ks, 4)}, v13 offset:{ks * 64}")
        if ks == 11:
            A("s_waitcnt lgkmcnt(12)")
            A("s_barrier")
    A("v_and_b32 v3, 1, v3")
    A("v_lshl_add_u32 v4, v3, 5, v4")
    A(f"s_lshl_b32 s39, {s(sTT)}, 4")
    A("v_add_lshl_u32 v4, v4, s39, 4")
    for ks in range(16):
        A(f"{MF16} {KA}, {a(128 + 4 * ks, 4)}, {a(64 + 4 * ks, 4)}, {'0' if ks == 0 else KA}")
        A(f"ds_read_b128 {a(4 * ks, 4)}, v12 offset:{ks * 2112}")
    for ks in range(16):
        A(f"{MF16} {KA}, {a(128 + 4 * ks, 4)}, {a(4 * ks, 4)}, {KA}")
    A("v_cvt_pk_bf16_f32 v84, v80, v81")
    A("v_cvt_pk_bf16_f32 v86, v80, v81")
    A("v_cvt_pk_bf16_f32 v85, v82, v83")
    A("v_cvt_pk_bf16_f32 v87, v82, v83")
    A("v_permlane32_swap_b32 v84, v86")
    A("v_permlane32_swap_b32 v85, v87")
    A("s_mov_b32 exec_hi, 0")
    A(f"buffer_store_dwordx4 v[84:87], v4, {s(WS, 4)}, s38 offen sc1 ; def:pub1")
    A("s_mov_b32 exec_hi, -1")
    A("s_branch L_rows2")
    A("L_vjob:")
    A("s_waitcnt lgkmcnt(0)")
    A("s_barrier")
    for ks in range(16):
        A(f"ds_read_b128 {a(4 * ks, 4)}, v12 offset:{ks * 2112}")
    A("v_lshrrev_b32 v3, 1, v3")
    A("v_lshl_add_u32 v4, v3, 4, v4")
    A(f"s_lshl_b32 s39, {s(sTT)}, 5")
    A("v_add_lshl_u32 v4, v4, s39, 4")
    for ks in range(16):
        A(f"{MF16} {KA}, {a(4 * ks, 4)}, {a(128 + 4 * ks, 4)}, {'0' if ks == 0 else KA}")
    A("v_cvt_pk_bf16_f32 v84, v80, v81")
    A("v_cvt_pk_bf16_f32 v86, v80, v81")
    A("v_cvt_pk_bf16_f32 v85, v82, v83")
    A("v_cvt_pk_bf16_f32 v87, v82, v83")
    A("v_permlane16_swap_b32 v84, v86")
    A("v_permlane16_swap_b32 v85, v87")
    A("s_mov_b32 exec_lo, 0xffff")
    A("s_mov_b32 exec_hi, 0xffff")
    A(f"buffer_store_dwordx4 v[84:87], v4, {s(WS, 4)}, s38 offen offset:1024 sc1 ; def:pub1")
    A("s_mov_b64 exec, -1")
    A("L_rows2:")
    A.stamp("kvst")
    for i in range(8, 16):
        modrow(i)
    A("v_mul_u32_u24 v3, 528, v11")
    A("v_and_b32 v4, 31, v1")
    A("v_lshl_add_u32 v3, v4, 4, v3")
    A(f"s_mul_i32 s38, {s(sTT)}, {HT}")
    A("v_add_u32 v3, s38, v3")
    slice_read_addr(A, 4, 9, 3, L_WQ)
    A(f"s_cmp_ge_u32 {s(sJ)}, 2")
    A("s_cbranch_scc1 L_nokvflag")
    A(f"v_mov_b32 v8, {s(sTAG)}")
    A(f"s_lshl_b32 s38, {s(sG)}, 1")
    A(f"s_add_u32 s38, s38, {s(sJ)}")
    A("s_lshl_b32 s38, s38, 7")
    A(f"s_add_u32 s38, s38, {WS_FKV}")
    A(f"s_cmp_eq_u32 {s(sW)}, 0")
    A(f"s_cselect_b32 {s(WSF + 2)}, {s(WS + 2)}, 0")
    A("s_waitcnt lgkmcnt(0) ; use:pub1")
    A("s_barrier")
    A(f"buffer_store_dword v8, off, {s(WSF, 4)}, s38 sc1")
    A("s_branch L_qgemm")
    A("L_nokvflag:")
    A("s_waitcnt lgkmcnt(0) ; use:wq")
    A("s_barrier")
    A("L_qgemm:")
    A.stamp("rows")
    NB, D = 8, 4
    for ks in range(32 + D):
        k = ks - D
        if k >= 0:
            A(f"{MF} v[16:31], {a(32 + 4 * (k % NB), 4)}, {a(4 * (k % NB), 4)}, {'0' if k == 0 else 'v[16:31]'}")
        if ks < 32:
            A(f"ds_read_b128 {a(4 * (ks % NB), 4)}, v3 offset:{ks * 1056}")
            A(f"ds_read_b64_tr_b16 {a(32 + 4 * (ks % NB), 2)}, v4 offset:{ks * 2048}")
            A(f"ds_read_b64_tr_b16 {a(34 + 4 * (ks % NB), 2)}, v4 offset:{ks * 2048 + 512}")
    column_id(A, 3)
    A(f"s_mov_b32 {s(sJ)}, s3")
    A("s_barrier")
    A.stamp("qdone")


Q, S, O, KF, VF, XR = 8, [16, 32], [48, 64], [80, 84], [88, 96], 112
vK, vV0, vV1, IDX = 4, 5, 6, 7
U = [128, 256, 384]


def attention(A):
    NPRE = 4
    A("v_and_b32 v3, 15, v1")
    A("v_lshlrev_b32 v105, 9, v3")
    A(f"s_lshl_b32 s48, {s(sW)}, 7")
    A(f"s_add_u32 s48, s48, {WS_FKV}")
    kv_ld = [f"buffer_load_dword v104, v105, {s(WS, 4)}, s48 offen sc1"]
    A(kv_ld[0])
    A("v_and_b32 v0, 31, v1")
    A("v_lshlrev_b32 v0, 10, v0")
    A("v_lshrrev_b32 v106, 5, v1")
    A("v_lshl_add_u32 v0, v106, 3, v0")
    A(f"s_lshl_b32 s52, {s(sG)}, 16")
    A(f"s_lshl_b32 s3, {s(sTT)}, 15")
    A("s_add_u32 s52, s52, s3")
    A(f"s_lshl_b32 s3, {s(sJ)}, 7")
    A("s_add_u32 s52, s52, s3")
    A(f"s_lshl_b32 s3, {s(sHP)}, 6")
    A("s_add_u32 s52, s52, s3")
    A(f"s_load_dwordx2 {s(T1, 2)}, s[0:1], 32")
    A(f"s_load_dwordx2 {s(T2, 2)}, s[0:1], 64")
    A(f"s_mov_b32 {s(T1 + 2)}, {512 * 1024}")
    A(f"s_mov_b32 {s(T2 + 2)}, {1376 * 1024}")
    A(f"s_mov_b32 s46, {f2u(QSCALE)}")
    A(f"s_lshl_b32 s44, {s(sW)}, 11")
    A(f"s_add_u32 s44, s44, {WS_KV}")
    A(f"s_mul_i32 m0, {s(sW)}, {KVB}")
    for d in range(8):
        A(f"v_pk_mul_f32 {v(16 + 2 * d, 2)}, {v(16 + 2 * d, 2)}, s[46:47] op_sel_hi:[1,0]")
    for d in range(8):
        A(f"v_cvt_pk_bf16_f32 {v(Q + d)}, {v(16 + 2 * d)}, {v(17 + 2 * d)}")
    A(f"v_mul_u32_u24 v3, {KVB}, v1")
    for d in range(4):
        A(f"v_mov_b32 {v(120 + d)}, 0x3f803f80")
        A(f"v_mov_b32 {v(124 + d)}, 0")
    A("ds_write_b128 v3, v[120:123] offset:2048")
    A("ds_write_b128 v3, v[124:127] offset:2064")
    A(f"v_mov_b32 {v(vK)}, v2")
    A("v_lshrrev_b32 v106, 5, v1")
    A("v_lshlrev_b32 v106, 4, v106")
    A("v_and_b32 v107, 15, v1")
    A("v_add_lshl_u32 v106, v106, v107, 4")
    A(f"v_add_u32 {v(vV0)}, 1024, v106")
    A(f"v_add_u32 {v(vV1)}, 1536, v106")
    A("v_and_b32 v108, 27, v1")
    A("v_cmp_eq_u32 vcc, 16, v108")
    A("v_mov_b32 v106, 2048")
    A("v_mov_b32 v107, 2064")
    A(f"v_cndmask_b32 {v(vV0)}, {v(vV0)}, v106, vcc")
    A(f"v_cndmask_b32 {v(vV1)}, {v(vV1)}, v106, vcc")
    A("v_cmp_lt_u32 vcc, 16, v108")
    A(f"v_mov_b32 {v(IDX)}, 0xdddddddd")
    A("s_nop 0")
    A(f"v_cndmask_b32 {v(vV0)}, {v(vV0)}, v107, vcc")
    A(f"v_cndmask_b32 {v(vV1)}, {v(vV1)}, v107, vcc")
    for i in range(32):
        A(f"v_mov_b32 {v(O[0] + i)}, 0")
    A.check_or_spin(kv_ld, [f"v_cmp_ne_u32 vcc, {s(sTAG)}, v104"])
    A.stamp("hop2")

    def kv_dma(n):
        tok = "kv0" if n < 2 else ("kv1" if n <= 5 else "kv2")
        pre = [] if n == 0 else [f"s_add_u32 m0, m0, {4 * KVB}", "s_add_u32 s44, s44, 8192"]
        return [(pre, f"buffer_load_dwordx4 v2, {s(WS, 4)}, s44 offen sc1 lds ; def:{tok}"),
                ([], f"buffer_load_dwordx4 v2, {s(WS, 4)}, s44 offen offset:1024 sc1 lds ; def:{tok}")]

    for n in range(NPRE):
        for pre, x in kv_dma(n):
            for y in pre:
                A(y)
            A(x)
    A(f"s_lshl_b32 s45, {s(sW)}, 3")
    A(f"s_add_u32 s45, s45, {s(sJ)}")
    A("s_lshl_b32 s47, s45, 15")
    A(f"s_add_u32 s47, s47, {WS_WGU + 64 * 32768}")
    A("s_cmp_lt_u32 s45, 22")
    A(f"s_cselect_b32 s47, s47, {WS_SIZE}")
    A("s_lshl_b32 s46, s45, 15")
    A(f"s_add_u32 s46, s46, {WS_WGU}")
    A(f"s_lshl_b32 s48, {s(sJ)}, 7")
    A(f"s_lshl_b32 s49, {s(sW)}, 17")
    A("s_add_u32 s48, s48, s49")
    A(f"s_lshl_b32 s49, {s(sW)}, 14")
    slice_voffset(A, 124, 125)
    A("v_add_u32 v126, 7168, v124")
    A(f"s_mov_b32 s50, {WS_FRL}")
    A(f"s_lshl_b32 s51, {s(sG)}, 5")
    A(f"s_add_u32 s51, s51, {WS_FRL}")
    A(f"s_lshl_b32 s53, {s(sJ)}, 2")
    A("s_add_u32 s53, s53, s51")
    A(f"s_lshl_b32 s54, {s(sJ)}, 8")
    A(f"s_add_u32 s54, s54, {WS_MODG + 4096}")
    A("s_getreg_b32 s55, hwreg(HW_REG_XCC_ID, 0, 3)")
    A(f"s_add_u32 s56, s55, {s(sTAG)}")
    A(f"s_cmp_eq_u32 {s(sW)}, 0")
    A(f"s_cselect_b32 {s(WSF + 2)}, {s(WS + 2)}, 0")
    A("v_and_b32 v3, 7, v1")
    A("v_lshlrev_b32 v3, 2, v3")
    A(f"s_lshl_b32 {s(sGA)}, {s(sG)}, 16")
    A("s_lshl_b32 s57, s45, 11")
    A(f"s_add_u32 s57, s57, {s(sGA)}")
    A.srd(OF, SOUT, 0)
    A.srd(OS, SOUT, 0)
    A("v_lshrrev_b32 v110, 4, v1")
    A("v_and_b32 v111, 15, v1")
    A("v_lshlrev_b32 v111, 4, v111")
    A("v_lshl_add_u32 v110, v110, 11, v111")
    A("v_mov_b32 v109, s56")
    A("v_lshlrev_b32 v111, 3, v111")
    if "pad" in OPT:
        A("s_mov_b64 exec, 0")
        for w in range(3):
            A(f"s_cmp_eq_u32 {s(sW)}, {w}")
            A(f"s_cbranch_scc1 L_page{w} ; warm")
        A("s_branch L_page3 ; warm")
        A("L_warmed:")
        A("s_mov_b64 exec, -1")
    A("s_branch L_aligned")
    A("L_gap:")
    A(".p2align 12")
    A("L_aligned:")
    A("s_waitcnt lgkmcnt(0) ; use:kv0")
    A("s_barrier")
    A.stamp("attn0")
    A(f"ds_read_b128 {v(KF[0], 4)}, {v(vK)}")
    A(f"ds_read_b128 {v(VF[0], 4)}, {v(vV0)}")
    A(f"ds_read_b128 {v(VF[0] + 4, 4)}, {v(vV1)}")
    A(f"ds_read_b128 {v(KF[1], 4)}, {v(vK)} offset:{KVB}")
    A(f"buffer_store_dword v109, off, {s(WSF, 4)}, s53 sc1")
    for q in range(2):
        A(f"{MF} {v(S[q], 16)}, {v(KF[0], 4)}, {v(Q + 4 * q, 4)}, 0")
    A("s_nop 7")

    KT_CHECK = 11
    grp = {}
    for n in range(NPRE, 16):
        (pre, x), (_, y) = kv_dma(n)
        grp[n - NPRE] = [pre, [x, y]]
    frl_ld = [f"buffer_load_dwordx4 v[104:107], v2, {s(WS, 4)}, s50 offen sc1",
              f"buffer_load_dword v108, v3, {s(WS, 4)}, s51 offen sc1",
              f"buffer_load_dwordx4 v[120:123], v110, {s(WS, 4)}, s54 offen sc1"]
    for q in range(4):
        grp[2 + (q >> 1)][1].append(f"buffer_load_dwordx2 {v(XR + 2 * q, 2)}, v0, {s(SX, 4)}, s52 offen offset:{16 * q}")
    grp[7][1].append(frl_ld[2])
    grp[8][1] += frl_ld[:2]

    def unit_loads(p, first, n):
        sreg = 47 if p == 2 else 46
        pre = []
        if first & 3 == 0 and not (first == 0 and p != 1):
            pre = [f"s_add_u32 {s(sreg)}, {s(sreg)}, {4096 if first else (32 * 32768 - 7 * 4096)}"]
        return [pre, [f"buffer_load_dwordx4 {r(U[p] + 4 * ks, 4)}, v2, {s(WS, 4)}, {s(sreg)} offen offset:{(ks & 3) * 1024} sc1"
                      for ks in range(first, first + n)]]

    later = [unit_loads(p, 4 * i, 4) for p in range(2) for i in range(8)]
    for i in range(8):
        pre, x = unit_loads(2, 2 * i, 2)
        pre = pre + ([f"s_add_u32 m0, s49, {L_WO}"] if i == 0 else ["s_add_u32 m0, m0, 2048", "s_add_u32 s48, s48, 16384"])
        later.append([pre, x + [f"buffer_load_dwordx4 v124, {s(T1, 4)}, s48 offen lds ; def:wo",
                                f"buffer_load_dwordx4 v126, {s(T1, 4)}, s48 offen offset:1024 lds ; def:wo"]])
    later += [unit_loads(2, 16 + 4 * i, 4) for i in range(4)]
    if "notouch" not in OPT:
        later[14][1].append("global_load_dword v109, v111, s[58:59]")
        later[24][1].append("global_load_dword v125, v111, s[60:61]")
        later[25][1].append("global_load_dword v110, v111, s[60:61] offset:2048")
        later.append([[f"s_add_u32 s63, s57, {WS_B}", f"s_lshl_b32 s65, {s(sG)}, 10", f"s_add_u32 s65, s65, {WS_FG}"],
                      [f"buffer_load_dword v104, v111, {s(WS, 4)}, s65 offen sc1",
                       f"buffer_load_dword v105, v111, {s(SOUT, 4)}, s57 offen sc1",
                       f"buffer_load_dword v106, v111, {s(WS, 4)}, s63 offen sc1"]])
        NA = P("wda", 2)
        if NA:
            A(f"s_lshr_b32 s3, {s(sG)}, 3")
            A("s_lshl_b32 s3, s3, 2")
            A(f"s_add_u32 s3, s3, {s(sW)}")
            A("s_lshl_b32 s3, s3, 14")
            A(f"s_lshl_b32 s64, {s(sJ)}, 7")
            A("s_add_u32 s64, s64, s3")
            A("v_lshlrev_b32 v127, 3, v111")
            for i in range(NA):
                g = later[-2 - P("wdg", 1) * (NA - 1 - i)]
                if i:
                    g[0].append("s_add_u32 s64, s64, 0x40000")
                g[1].append(f"buffer_load_dword {v(120 + i)}, v127, {s(T2, 4)}, s64 offen")
        A("s_getpc_b64 s[60:61]")
        A("L_pc2:")
        A(f"s_lshl_b32 s3, {s(sW)}, 11")
        A("s_add_u32 s3, s3, L_post-L_pc2-8192")
        A("s_add_u32 s58, s60, s3")
        A("s_addc_u32 s59, s61, 0")
        A(f"s_lshl_b32 s3, {s(sW)}, 12")
        A("s_min_u32 s3, s3, L_end-L_post-4096")
        A("s_add_u32 s3, s3, L_post-L_pc2")
        A("s_add_u32 s60, s60, s3")
        A("s_addc_u32 s61, s61, 0")
    SPAN = P("span", 38)
    for i, g in enumerate(later):
        kt = 12 + (i * SPAN) // (len(later) - 1)
        assert kt not in grp and (kt >= 32 or not any("def:wo" in x for x in g[1]))
        grp[kt] = g

    base = [0]

    def off(kt):
        o = kt * KVB - base[0]
        assert 0 <= o < 65536 - 2096
        return o

    def salu(kt, n):
        while n and kt in grp and grp[kt][0]:
            A(grp[kt][0].pop(0))
            n -= 1

    rest = []
    for kt in range(64):
        kb = kt & 1
        A.stamp(f"kt{kt}")
        if kt in (28, 56):
            base[0] += 28 * KVB
            for x in (vK, vV0, vV1):
                A(f"v_add_u32 {v(x)}, {28 * KVB}, {v(x)}")
        for q in range(2):
            p = 1 - q
            pv = kb if q == 1 else 1 - kb
            pk = 1 - kb if q == 1 else kb
            first = kt == 0 and q == 0
            for i in range(16):
                A(f"v_exp_f32 {v(S[q] + i)}, {v(S[q] + i)}")
                if i == 1:
                    if not first:
                        A(f"{SM} {v(O[p], 16)}, {v(VF[pv] + 4, 4)}, {v(S[p] + 8, 8)}, {v(IDX)}")
                    if q == 0:
                        A("s_waitcnt lgkmcnt(0)")
                        if kt == 6:
                            A("s_barrier ; use:kv1")
                        elif kt == 22:
                            A("s_barrier ; use:kv2")
                        elif kt == 32:
                            A("s_barrier")
                        elif kt == 58:
                            A("s_barrier ; use:wo")
                        elif kt == KT_CHECK:
                            chk = []
                            for d in range(5):
                                chk.append(f"v_subrev_u32 {v(104 + d)}, {s(sTAG)}, {v(104 + d)}")
                            chk += ["v_or3_b32 v104, v104, v105, v106", "v_or3_b32 v104, v104, v107, v108",
                                    f"v_xor_b32 v121, {s(sTAG)}, v121", f"v_xor_b32 v123, {s(sTAG)}, v123",
                                    "v_or3_b32 v104, v104, v121, v123", "v_cmp_lt_u32 vcc, 7, v104"]
                            A.check_or_spin(frl_ld, chk)
                            A("v_and_b32 v121, 0xffff0000, v120")
                            A("v_lshlrev_b32 v120, 16, v120")
                            A("v_and_b32 v123, 0xffff0000, v122")
                            A("v_lshlrev_b32 v122, 16, v122")
                            A(f"v_add_u32 v110, {L_OWN}, v2")
                            A("ds_write_b128 v110, v[120:123]")
                            A(f"v_mov_b32 v109, {s(sTAG)}")
                            A("v_cmp_ne_u32 vcc, s55, v108")
                            A("s_cmp_eq_u32 s2, 0")
                            A(f"s_cselect_b32 {s(WSF + 2)}, 4, 0")
                            A(f"buffer_store_dword v109, off, {s(WSF, 4)}, 0 offset:{WS_NONCE} sc1")
                            if "slow" in OPT:
                                A("s_cmp_eq_u32 s2, 999")
                            else:
                                A("s_cmp_eq_u64 vcc, 0")
                            A(f"s_cselect_b32 {s(WSF + 2)}, {s(WS + 2)}, 0")
                            A(f"s_cselect_b32 {s(WSS + 2)}, 0, {s(WS + 2)}")
                            A(f"s_cselect_b32 {s(OF + 2)}, {s(SOUT + 2)}, 0")
                            A(f"s_cselect_b32 {s(OS + 2)}, 0, {s(SOUT + 2)}")
                        for x in rest:
                            A(x)
                        rest = []
                    elif kt in grp:
                        assert not grp[kt][0]
                        rest = grp.pop(kt)[1]
                        nsplit = P("split", 2)
                        for _ in range((len(rest) + nsplit - 1) // nsplit if len(rest) > P("mins", 1) else len(rest)):
                            A(rest.pop(0))
                if i == 4:
                    if not first and not (q == 1 and kt == 63):
                        A(f"{MF} {v(S[p], 16)}, {v(KF[pk], 4)}, {v(Q + 4 * p, 4)}, 0")
                    if q == 0 and kt < 63:
                        salu(kt, 1)
                        A(f"ds_read_b128 {v(VF[1 - kb], 4)}, {v(vV0)} offset:{off(kt + 1)}")
                    if q == 1 and kt < 62:
                        A(f"ds_read_b128 {v(KF[kb], 4)}, {v(vK)} offset:{off(kt + 2)}")
                if i == 9:
                    A(f"{SM} {v(O[q], 16)}, {v(VF[kb], 4)}, {v(S[q], 8)}, {v(IDX)}")
                    if q == 0:
                        salu(kt, 2)
                        if kt < 63:
                            A(f"ds_read_b128 {v(VF[1 - kb] + 4, 4)}, {v(vV1)} offset:{off(kt + 1)}")
                    elif P("split", 2) == 3:
                        for _ in range((len(rest) + 1) // 2):
                            A(rest.pop(0))
    assert not grp
    A(f"s_lshl_b32 s46, {s(sG)}, 10")
    A(f"s_lshl_b32 s47, {s(sJ)}, 2")
    A(f"{SM} {v(O[1], 16)}, {v(VF[1] + 4, 4)}, {v(S[1] + 8, 8)}, {v(IDX)}")
    A.stamp("attn1")


def attn_epilogue(A):
    A("L_post:")
    A(f"s_add_u32 s46, s46, {WS_FG}")
    A(f"s_add_u32 s47, s47, {s(sW)}")
    A("s_lshl_b32 s47, s47, 2")
    A("s_add_u32 s47, s47, s46")
    A(f"s_lshl_b32 s48, {s(sTT)}, 5")
    A(f"s_lshl_b32 s49, {s(sJ)}, 2")
    A("s_add_u32 s48, s48, s49")
    A(f"s_lshl_b32 s49, {s(sHP)}, 1")
    A("s_add_u32 s48, s48, s49")
    A("s_lshl_b32 s48, s48, 10")
    A(f"s_add_u32 s49, s48, {s(sGA)}")
    A("s_mov_b32 s40, 0")
    A("L_attn_ok:")
    for q in range(2):
        A(f"v_rcp_f32 {v(O[q] + 10)}, {v(O[q] + 8)}")
        if q == 0:
            A(f"s_mov_b32 s50, {f2u(2.0 ** 120)}")
        else:
            A(f"s_mov_b32 s51, {f2u(2.0 ** -90)}")
        for d in range(4):
            o = v(O[q] + 2 * d, 2)
            A(f"v_pk_mul_f32 {o}, {o}, {v(O[q] + 10, 2)} op_sel_hi:[1,0]")
        for d in range(4):
            A(f"v_cvt_pk_bf16_f32 {v(120 + 4 * q + d)}, {v(O[q] + 2 * d)}, {v(O[q] + 2 * d + 1)}")
        A.xstore("buffer_store_dwordx4", v(120 + 4 * q, 4), "v2", "s49", f"offset:{1024 * q}", "o", True)
    for q in range(2):
        t = 104 + q
        A(f"v_add_f32 {v(t)}, abs({v(O[q])}), {v(O[q] + 8)}")
        for i in range(1, 8):
            A(f"v_add_f32 {v(t)}, abs({v(O[q] + i)}), {v(t)}")
    A("v_add_f32 v104, v104, v105")
    A(f"v_min_f32 v105, {v(O[0] + 8)}, {v(O[1] + 8)}")
    A("v_cmp_nge_f32 vcc, s50, v104")
    A("v_cmp_nle_f32 s[38:39], s51, v105")
    A("s_or_b64 vcc, vcc, s[38:39]")
    A("s_cbranch_vccnz L_fallback")
    A("L_attn_done:")
    A(f"v_mov_b32 v7, {s(sTAG)}")


def fallback(A):
    A("L_fallback:")
    A("s_cmp_lg_u32 s40, 0")
    A("s_cbranch_scc1 L_attn_done")
    A("s_mov_b32 s40, 1")
    M = [104, 105]
    for q in range(2):
        A(f"v_mov_b32 {v(M[q])}, 0xff800000")
    A(f"s_mov_b32 s38, {WS_KV}")
    A("L_fb_max:")
    A(f"buffer_load_dwordx4 {v(KF[0], 4)}, v2, {s(WS, 4)}, s38 offen sc1")
    for q in range(2):
        A(f"{MF} {v(S[q], 16)}, {v(KF[0], 4)}, {v(Q + 4 * q, 4)}, 0")
    for q in range(2):
        for i in range(0, 16, 2):
            A(f"v_max3_f32 {v(M[q])}, {v(M[q])}, {v(S[q] + i)}, {v(S[q] + i + 1)}")
    A("s_add_u32 s38, s38, 2048")
    A(f"s_cmp_lt_u32 s38, {WS_KV + 64 * 2048}")
    A("s_cbranch_scc1 L_fb_max")
    for q in range(2):
        A(f"v_mov_b32 v106, {v(M[q])}")
        A(f"v_permlane32_swap_b32 v106, {v(M[q])}")
        A(f"v_max_f32 {v(M[q])}, {v(M[q])}, v106")
    for i in range(32):
        A(f"v_mov_b32 {v(O[0] + i)}, 0")
    for i in range(8):
        A(f"v_mov_b32 {v(VF[0] + i)}, 0x3f803f80")
    A("v_lshrrev_b32 v106, 5, v1")
    A("v_lshlrev_b32 v106, 4, v106")
    A("v_and_b32 v107, 15, v1")
    A("v_add_lshl_u32 v106, v106, v107, 4")
    A(f"s_mov_b32 s38, {WS_KV}")
    A("L_fb_sum:")
    A(f"buffer_load_dwordx4 {v(KF[0], 4)}, v2, {s(WS, 4)}, s38 offen sc1")
    A("s_mov_b32 exec_lo, 0xffff")
    A("s_mov_b32 exec_hi, 0xffff")
    A(f"buffer_load_dwordx4 {v(VF[0], 4)}, v106, {s(WS, 4)}, s38 offen offset:1024 sc1")
    A(f"buffer_load_dwordx4 {v(VF[0] + 4, 4)}, v106, {s(WS, 4)}, s38 offen offset:1536 sc1")
    A("s_mov_b64 exec, -1")
    for q in range(2):
        A(f"{MF} {v(S[q], 16)}, {v(KF[0], 4)}, {v(Q + 4 * q, 4)}, 0")
    for q in range(2):
        for i in range(16):
            A(f"v_sub_f32 {v(S[q] + i)}, {v(S[q] + i)}, {v(M[q])}")
        for i in range(16):
            A(f"v_exp_f32 {v(S[q] + i)}, {v(S[q] + i)}")
        for h in range(2):
            A(f"{SM} {v(O[q], 16)}, {v(VF[0] + 4 * h, 4)}, {v(S[q] + 8 * h, 8)}, {v(IDX)}")
    A("s_add_u32 s38, s38, 2048")
    A(f"s_cmp_lt_u32 s38, {WS_KV + 64 * 2048}")
    A("s_cbranch_scc1 L_fb_sum")
    A("s_nop 11")
    A("s_branch L_attn_ok")


X1 = 80


def own_vec(A, dst, vec):
    for q in range(4):
        A(f"ds_read_b128 {v(dst + 4 * q, 4)}, v6 offset:{vec * 256 + q * 32}")


def outproj(A):
    B, ACC, AR = 16, [80, 96], [8, 12, 120, 124]
    A(f"s_lshl_b32 s38, {s(sHP)}, 15")
    slice_read_addr(A, 4, 5, 2, "s38")
    A("v_xor_b32 v5, 64, v4")

    seq = [(k, t) for k in range(12) for t in range(2)] + [(k, t) for t in (1, 0) for k in range(12, 16)]

    def aread(m):
        k, t = seq[m]
        A(f"ds_read_b64_tr_b16 {v(AR[m & 3], 2)}, {v(4 + t)} offset:{k * 2048}")
        A(f"ds_read_b64_tr_b16 {v(AR[m & 3] + 2, 2)}, {v(4 + t)} offset:{k * 2048 + 1024}")

    A("v_lshrrev_b32 v6, 5, v1")
    A("v_lshlrev_b32 v6, 4, v6")
    A(f"s_lshl_b32 s38, {s(sHP)}, 7")
    A(f"s_add_u32 s38, s38, {L_OWN}")
    A("v_add_u32 v6, s38, v6")
    A("v_lshlrev_b32 v104, 1, v3")
    A(f"s_lshl_b32 s38, {s(sHP)}, 4")
    A(f"s_add_u32 s38, s38, {s(sTT)}")
    A("s_lshl_b32 s38, s38, 2")
    A("s_add_u32 s38, s38, s46")
    A(f"s_lshl_b32 s39, {s(sTT)}, 15")
    A(f"s_lshl_b32 s40, {s(sHP)}, 14")
    A("s_add_u32 s39, s39, s40")
    A(f"s_add_u32 s39, s39, {s(sGA)}")
    for i in range(4):
        aread(i)
    A.xflag("s47", 0, 7, "o")
    A.spin([f"buffer_load_dword v105, v104, {s(WS, 4)}, s38 offen sc1"], ["v_cmp_ne_u32 vcc, v7, v105"])
    A.stamp("e1")
    def oload(k):
        A(f"buffer_load_dwordx4 {v(B + 4 * k, 4)}, v2, {s(SOUT, 4)}, s39 offen offset:{(k & 3) * 1024} sc1")
        if k & 3 == 3 and k < 15:
            A("s_add_u32 s39, s39, 4096")

    NO = P("no", 8)
    for k in range(NO):
        oload(k)
    GA, SH, SC, T = 16, 32, 48, 64
    wr = []
    for m, (k, t) in enumerate(seq):
        A(f"{MF} {v(ACC[t], 16)}, {v(AR[m & 3], 4)}, {v(B + 4 * k, 4)}, {'0' if k == 0 else v(ACC[t], 16)}")
        if m & 1 == 0 and NO + (m >> 1) < 16:
            oload(NO + (m >> 1))
        if m + 4 < 32:
            aread(m + 4)
        if "wd1" in OPT:
            NR, M = P("wdrows", 16), P("wdat", 21)
            if m == M - 3:
                A(f"s_lshr_b32 s38, {s(sG)}, 3")
                A("s_lshl_b32 s38, s38, 2")
                A(f"s_add_u32 s38, s38, {s(sW)}")
            if m == M - 2:
                A(f"s_mul_i32 s38, s38, {NR * 1024}")
                A(f"s_lshl_b32 s40, {s(sJ)}, 7")
                A("s_add_u32 s38, s38, s40")
            if m == M - 1:
                A(f"s_add_u32 s38, s38, {P('wda', 2) * 0x40000}")
                A(f"v_min_u32 v7, {NR - 1}, v1")
                A("v_lshlrev_b32 v7, 10, v7")
            if m == M:
                A(f"buffer_load_dword v7, v7, {s(T2, 4)}, s38 offen")
        if m == 27:
            A(f"s_xor_b32 s38, {s(sW)}, 2")
            A("s_lshl_b32 s38, s38, 12")
            A(f"s_add_u32 s38, s38, {L_RED}")
            A("v_add_u32 v4, s38, v2")
        if m == 28:
            own_vec(A, GA, 0)
            wr = [f"ds_write_b128 v4, {v(ACC[1] + 4 * q, 4)} offset:{q * 1024}" for q in range(4)]
        if m >= 29:
            A(wr.pop(0))
    A(wr.pop(0))
    A.stamp("oproj")
    A(f"s_lshl_b32 s38, {s(sW)}, 12")
    A(f"s_add_u32 s38, s38, {L_RED}")
    A("v_add_u32 v5, s38, v2")
    for d in range(8):
        A(f"v_lshlrev_b32 {v(T + 2 * d)}, 16, {v(XR + d)}")
        A(f"v_and_b32 {v(T + 2 * d + 1)}, 0xffff0000, {v(XR + d)}")
    A("s_waitcnt lgkmcnt(0)")
    A("s_barrier")
    for q in range(4):
        A(f"ds_read_b128 {v(ACC[1] + 4 * q, 4)}, v5 offset:{q * 1024}")
    for d in range(8):
        A(f"v_pk_fma_f32 {v(T + 2 * d, 2)}, {v(X1 + 2 * d, 2)}, {v(GA + 2 * d, 2)}, {v(T + 2 * d, 2)}")
    A(f"s_lshl_b32 s38, {s(sTT)}, 15")
    A(f"s_add_u32 s38, s38, {s(sGA)}")
    A(f"s_add_u32 s38, s38, {WS_B}")
    A(f"s_lshl_b32 s39, {s(sJ)}, 10")
    A(f"s_lshl_b32 s40, {s(sHP)}, 3")
    A("s_add_u32 s39, s39, s40")
    A("s_add_u32 s39, s39, s38")
    A("s_add_u32 s40, s38, 4096")
    for d in range(8):
        A(f"v_pk_fma_f32 {v(X1 + 2 * d, 2)}, {v(ACC[1] + 2 * d, 2)}, {v(GA + 2 * d, 2)}, {v(T + 2 * d, 2)}")
        if d == 0:
            A(f"v_pk_mul_f32 v[10:11], {v(X1, 2)}, {v(X1, 2)}")
        elif d == 1:
            A(f"v_pk_add_f32 v[8:9], {v(X1, 2)}, {v(X1 + 2, 2)}")
        else:
            A(f"v_pk_add_f32 v[8:9], v[8:9], {v(X1 + 2 * d, 2)}")
        if d:
            A(f"v_pk_fma_f32 v[10:11], {v(X1 + 2 * d, 2)}, {v(X1 + 2 * d, 2)}, v[10:11]")
    A("v_add_f32 v8, v8, v9")
    A("v_add_f32 v10, v10, v11")
    A(f"v_mov_b32 v9, {s(sTAG)}")
    A("v_permlane32_swap_b32 v8, v10")
    A("v_add_f32 v8, v8, v10")
    A.xstore("buffer_store_dwordx2", "v[8:9]", "v2", "s39")
    A.stamp("stat")
    A(f"v_mov_b32 v7, {s(sTAG)}")
    own_vec(A, SH, 1)
    own_vec(A, SC, 2)
    ffn_setup(A)
    G = 96
    lds = [f"buffer_load_dwordx4 {v(G + 4 * i, 4)}, v2, {s(WS, 4)}, {'s38' if i < 4 else 's40'} offen offset:{(i & 3) * 1024} sc1"
           for i in range(8)]
    chk = []
    for i in range(8):
        g = G + 4 * i
        if i == 0:
            chk += [f"v_min_u32 v10, {v(g + 1)}, {v(g + 3)}", f"v_max_u32 v11, {v(g + 1)}, {v(g + 3)}",
                    f"v_add_f32 v12, {v(g)}, {v(g + 2)}"]
        else:
            chk += [f"v_min3_u32 v10, v10, {v(g + 1)}, {v(g + 3)}", f"v_max3_u32 v11, v11, {v(g + 1)}, {v(g + 3)}",
                    f"v_add_f32 v12, v12, {v(g)}", f"v_add_f32 v12, v12, {v(g + 2)}"]
    chk += ["v_xor_b32 v10, v7, v10", "v_xor_b32 v11, v7, v11", "v_or_b32 v10, v10, v11", "v_cmp_ne_u32 vcc, 0, v10"]
    A.spin(lds, chk)
    A.stamp("e2a")
    A(f"v_mul_f32 v12, {f2u(1 / 512)}, v12")
    A("v_mov_b32 v13, v12")
    A(f"s_lshl_b32 s38, {s(sW)}, 5")
    A("v_permlane32_swap_b32 v12, v13")
    A("v_fma_f32 v13, -v12, v12, v13")
    A("v_max_f32 v13, 0, v13")
    A(f"v_add_f32 v13, {f2u(1e-5)}, v13")
    A("v_rsq_f32 v14, v13")
    A("s_add_u32 s38, s38, s46")
    A("v_mul_f32 v15, -v12, v14")
    for hh in range(2):
        for d in range(4 * hh, 4 * hh + 4):
            A(f"v_pk_fma_f32 {v(T + 2 * d, 2)}, {v(X1 + 2 * d, 2)}, v[14:15], v[14:15] op_sel:[0,0,1] op_sel_hi:[1,0,1]")
        for d in range(4 * hh, 4 * hh + 4):
            A(f"v_pk_fma_f32 {v(T + 2 * d, 2)}, {v(T + 2 * d, 2)}, {v(SC + 2 * d, 2)}, {v(SH + 2 * d, 2)}")
        for d in range(4 * hh, 4 * hh + 4):
            A(f"v_cvt_pk_bf16_f32 {v(16 + d)}, {v(T + 2 * d)}, {v(T + 2 * d + 1)}")
        A.xstore("buffer_store_dwordx4", v(16 + 4 * hh, 4), "v2", "s49", f"offset:{1024 * hh}", "h", True)
    A(f"s_lshl_b32 s40, {s(sW)}, 13")
    A(f"s_add_u32 s39, s40, {s(sGA)}")
    A(f"s_add_u32 m0, s40, {L_H}")
    A(f"v_add_u32 v4, {L_H}, v2")
    A.xflag("s47", 128, 7, "h")
    A.spin([f"buffer_load_dword v8, v3, {s(WS, 4)}, s38 offen offset:128 sc1"], ["v_cmp_ne_u32 vcc, v7, v8"])
    A.hcopy = []
    for c in range(4):
        for i in range(4):
            A.hcopy.append(f"buffer_load_dwordx4 v2, {s(SOUT, 4)}, s39 offen offset:{i * 1024} sc1 lds")
        if c < 3:
            x = 0x1000 if c == 1 else 0x8000
            A.hcopy += [f"s_xor_b32 m0, m0, {x}", f"s_xor_b32 s39, s39, {x}"]
    for _ in range(P("nh", 14)):
        A(A.hcopy.pop(0))
    A.stamp("e2b")


ORD = [8 * (i >> 2) + (i & 3) for i in range(16)] + [8 * (i >> 2) + 4 + (i & 3) for i in range(16)]


def ffn_setup(A):
    A(f"s_lshl_b32 s55, {s(sW)}, 14")
    A(f"s_lshl_b32 s54, {s(sJ)}, 7")
    A("s_add_u32 s54, s54, s55")
    A(f"s_add_u32 s41, {s(sGA)}, {WS_B}")
    A(f"s_lshl_b32 s56, {s(sTT)}, 5")
    A(f"s_add_u32 s56, s56, {s(sW)}")
    A("s_lshl_b32 s56, s56, 10")
    A("s_add_u32 s56, s56, s41")
    A("s_xor_b32 s57, s56, 32768")
    A("s_lshl_b32 s58, s45, 10")
    A("s_add_u32 s58, s58, s41")
    A("s_add_u32 s59, s58, 32768")
    A(f"s_sub_u32 s63, s58, {WS_B}")
    A(f"s_sub_u32 s64, s59, {WS_B}")
    A("s_lshl_b32 s60, s45, 2")
    A("s_add_u32 s60, s60, s46")
    A(f"s_lshl_b32 s61, {s(sW)}, 2")
    A("s_add_u32 s61, s61, s46")


def ffn(A):
    ACC = [16, 48]
    BR = 96
    PK, vWD, vA = 8, 12, 13
    D = 16
    BORD = [(st, i) for st in list(range(16)) + [21] for i in range(2)] + [(st, i) for i in (1, 0) for st in range(16, 21)]

    def areg(ai):
        return U[0] + 4 * ORD[ai] if ai < 32 else U[1] + 4 * ORD[ai - 32]

    def breg(bi):
        return U[1] + 4 * ORD[12 + bi] if bi < 20 else U[2] + 4 * ORD[bi - 20]

    A("v_lshlrev_b32 v3, 2, v3")
    slice_voffset(A, vWD, vA)
    slice_read_addr(A, vA, vA + 1, 2, "s55")
    A(f"v_xor_b32 {v(vA + 1)}, 64, {v(vA)}")
    A("v_and_b32 v15, 31, v1")
    A("v_lshlrev_b32 v15, 2, v15")
    A("v_lshrrev_b32 v1, 5, v1")
    A("v_lshl_add_u32 v0, v1, 3, v0")
    A(f"v_add_u32 v1, 7168, {v(vWD)}")

    def flag_ld(p):
        if p == 2:
            return [f"buffer_load_dword v5, v3, {s(WS, 4)}, s61 offen offset:{256 + 128 * p} sc1"]
        return [f"buffer_load_dword v5, v15, {s(WS, 4)}, s46 offen offset:{256 + 128 * p} sc1"]

    def bread(n, t):
        return f"ds_read_b128 {v(BR + 8 * (n & 3) + 4 * t, 4)}, v4 offset:{t * 32768 + ORD[n % 32] * 1024}"

    mf = []
    for n in range(96):
        p, kk = n >> 5, n & 31
        for t in range(2):
            acc = v(ACC[p & 1] + 16 * t, 16)
            mf.append(f"{MF} {acc}, {r(U[p] + 4 * ORD[kk], 4)}, {v(BR + 8 * (n & 3) + 4 * t, 4)}, {'0' if kk == 0 else acc}")
    HEAD = 7
    seq = [(st, t) for st in range(HEAD) for t in (2, 3)] + [(st, t) for st in range(HEAD) for t in (0, 1)]
    seq += [(st, t) for st in list(range(HEAD, 16)) + [21] for t in range(4)]
    seq += [(st, t) for t in (3, 2, 1, 0) for st in range(16, 21)]
    for st, t in seq:
        acc = v(D + 16 * t, 16)
        mf.append(f"{MF} {acc}, {r(areg(2 * st + (t >> 1)), 4)}, {r(breg(2 * st + (t & 1)), 4)}, {'0' if st == 0 else acc}")
    M21 = 192 + 64

    at = {}
    F = [P("f0", 16), P("f1", 16), P("f2", 13)]
    PL = [P("p0", 16), P("p1", 10), P("p2", 9), P("p3", 26)]
    C = [P("c0", 12), P("c1", 11), P("c2", 10)]
    LAG = P("lag", 24)
    qepi, qsync, qmem, qrd = [], [], [], []
    for p in range(3):
        e0 = 64 * (p + 1) + (3 if p < 2 else 1)
        for t in range(2):
            b = ACC[p & 1] + 16 * t
            for i in range(8):
                qepi.append([e0, 1, [f"v_max_f32 {v(b + i)}, 0, {v(b + i)}"], None, 0])
            for i in range(8):
                qepi.append([e0, 1, [f"v_mul_f32 {v(b + i)}, {v(b + i)}, {v(b + 8 + i)}"], None, 0])
            for d in range(4):
                qepi.append([e0, 1, [f"v_cvt_pk_bf16_f32 {v(PK + d)}, {v(b + 2 * d)}, {v(b + 2 * d + 1)}"], None, 0])
            e = (f"chk{p - 1}", 0) if p else e0
            sf, ss, so = (OF, OS, 63 + t) if p == 1 else (WSF, WSS, 58 + t)
            qepi.append([e, 3, [f"buffer_store_dwordx4 {v(PK, 4)}, v2, {s(sf, 4)}, {s(so)} offen ; def:h2_{p}"], None, 0])
            qepi.append([e, 3, [f"buffer_store_dwordx4 {v(PK, 4)}, v2, {s(ss, 4)}, {s(so)} offen sc1 ; def:h2_{p}"],
                         f"st{p}" if t else None, 0])
    for p in range(4):
        o = 256 + 128 * p
        if p < 3:
            qsync.append([(f"st{p}", F[p]), 0, [], None, 0])
        if p & 1:
            qsync.append([(f"b{8 * p + 7}", P("fb", 11)), 0, [], None, 0])
        qsync.append([0, 3, [f"buffer_store_dword v7, off, {s(WSF, 4)}, s60 offset:{o}"], None, 0])
        qsync.append([0, 2, [f"buffer_store_dword v7, off, {s(WSS, 4)}, s60 offset:{o} sc1"], f"fl{p}", 0])
        qsync.append([(f"fl{p}", PL[p]), 2, flag_ld(p), f"pl{p}", 0])
        if p < 3:
            qsync.append([(f"pl{p}", C[p]), 4, lambda E, p=p: E.check_or_spin(flag_ld(p), ["v_cmp_ne_u32 vcc, v7, v5"]),
                          f"chk{p}", 0])
    for x in A.hcopy:
        qmem.append([0, 2, [x], None, 2] if "lds" in x else [0, 1, [x], None, 0])
    for d in range(44):
        st, hf = d >> 1, d & 1
        e = 4 if st < 8 else (f"rd{st - 8}", 8)
        if not hf:
            qmem.append([0, 1, [f"s_add_u32 m0, s55, {(st & 7) * 2048}"], None, 0])
            if st:
                qmem.append([0, 1, ["s_add_u32 s54, s54, 65536"], None, 0])
        qmem.append([e, 2, [f"buffer_load_dwordx4 {'v1' if hf else v(vWD)}, {s(T2, 4)}, s54 offen offset:{hf * 1024} lds ; def:wd{st}"],
                     f"dma{d}", 1])
        o = (st & 7) * 2048
        qrd.append([max(0, 2 * d + 2), 0, [], None, 0])
        qrd.append([(f"dma{d | 1}", LAG), 3 - hf, [f"ds_read_b64_tr_b16 {r(areg(d), 2)}, {v(vA + hf)} offset:{o} ; use:wd{st}",
                                              f"ds_read_b64_tr_b16 {r(areg(d) + 2, 2)}, {v(vA + hf)} offset:{o + 1024}"],
                    f"rd{st}" if hf else None, 0])
    pos = lambda x: (0 if x >> 3 == 1 else WS_B) + (x & 7) * 4096
    cur = [0, 0]
    for st, i in BORD:
        bi = 2 * st + i
        if st:
            qmem.append([0, 1, [f"s_add_u32 {s(56 + i)}, {s(56 + i)}, {(pos(st) - pos(cur[i])) & 0xffffffff}"], None, 0])
            cur[i] = st
        qmem.append([2 * (44 + bi) + 2, 0, [], None, 0])
        qmem.append([(f"chk{st >> 3}", 0), 2,
                     [f"buffer_load_dwordx4 {r(breg(bi), 4)}, v2, {s(SOUT if st >> 3 == 1 else WS, 4)}, {s(56 + i)} offen sc1"
                      + (f" ; def:rd_{1 + 2 * (st >> 3)}" if st < 16 else "")], f"b{bi}", 2])
    qtail = [[M21 - 12, 1, ["v_add_u32 v8, s55, v2"], None, 0]]
    for i in range(1, 4):
        qtail.append([0, 3, [f"s_xor_b32 s38, {s(sW)}, {i}", "s_lshl_b32 s38, s38, 14", f"v_add_u32 {v(8 + i)}, s38, v2"], None, 0])
    for q in range(4):
        qtail.append([0, 2, [f"ds_read_b128 {v(96 + 4 * q, 4)}, v6 offset:{3 * 256 + q * 32}"], None, 0])
    for t in (3, 2, 1):
        e = M21 + 4 + 5 * (4 - t)
        qtail.append([e - 1, 5, ["s_nop 4"], None, 0])
        qtail.append([e, 5, ["s_nop 4"], None, 0])
        for q in range(4):
            qtail.append([0, 3, [f"ds_write_b128 v8, {v(D + 16 * t + 4 * q, 4)} offset:{(t - 1) * 4096 + q * 1024}"], None, 0])
    queues = [qmem, qsync, qepi, qrd, qtail]

    A("s_barrier ; use:hs0")
    A.stamp("up0")
    for n in range(3):
        for t in range(2):
            A(bread(n, t))
    E = K()
    E.nlab = 1000
    E("L_no_unit2:")
    last_bulk = [-9, -9, -9]
    for m, x in enumerate(mf):
        if m == 64:
            A.stamp("r1")
        if m == 128:
            A.stamp("r2")
            A("s_cmp_ge_u32 s45, 22")
            A("s_cbranch_scc1 L_no_unit2")
        if m == 192:
            A("L_up_done:")
            A.stamp("up1")
        if m == M21:
            A(f"s_cmp_ge_u32 {s(sW)}, 2")
            A("s_cbranch_scc1 L_down_tail")
        if m == M21 + 4:
            A("L_down_tail:")
        if m >= 192:
            st, t = seq[m - 192]
            assert at[f"b{2 * st + (t & 1)}"] + 10 <= m, (m, st, t, at[f"b{2 * st + (t & 1)}"])
            assert t >= 2 or not qepi, (m, len(qepi), at)
        A.stamp(f"m{m}")
        A(x)
        budget = 5
        if m == 26:
            A("s_barrier ; use:hs1")
            budget -= 2
        if m + 6 < 192:
            A(bread((m >> 1) + 3, m & 1))
            budget -= 1
        if m + 1 in (128, M21):
            budget -= 2
        if M21 <= m < M21 + 4:
            continue
        first = budget
        for q in queues:
            while q:
                e, cost, ins, name, bulk = q[0]
                if isinstance(e, tuple):
                    if e[0] not in at or at[e[0]] + e[1] > m:
                        break
                elif e > m:
                    break
                if cost > budget or (bulk and (budget < first or (m - last_bulk[-2] < 3 if "chk2" in at else m - last_bulk[-1] < 2)
                                               or (bulk == 1 and m < 180 and m - last_bulk[0] < P("rate", 7)))):
                    break
                if q is qmem and 192 <= m and qepi and True:
                    break
                q.pop(0)
                budget -= cost
                for X in ([A, E] if 128 <= m < 192 else [A]):
                    if callable(ins):
                        ins(X)
                    else:
                        for y in ins:
                            X(y)
                if name:
                    at[name] = m
                if bulk:
                    last_bulk = last_bulk[1:] + [m]
    for e, cost, ins, name, bulk in qtail:
        for y in ins:
            A(y)
    assert not (qsync or qepi or qrd or qmem)
    if "v" in OPT:
        print({k: x for k, x in at.items() if k[:2] in ("st", "fl", "pl", "ch") or k in ("dma43", "rd21", "b0", "b15", "b16", "b31", "b42", "b40")}, len(qtail))
    E(f"s_mov_b32 s58, {WS_SIZE}")
    E(f"s_mov_b32 s59, {WS_SIZE}")
    E("s_branch L_up_done")
    A.stubs += [x.text for x in E.ins] + E.stubs
    A.stamp("down1")
    A("s_waitcnt lgkmcnt(0)")
    A("s_barrier")
    R = 128
    for q in range(4):
        for t in range(3):
            A(f"ds_read_b128 {v(R + 16 * t + 4 * q, 4)}, {v(9 + t)} offset:{t * 4096 + q * 1024}")
    A.check_or_spin(flag_ld(3), ["v_cmp_ne_u32 vcc, v7, v5"])
    for q in range(4):
        for d in range(2 * q, 2 * q + 2):
            A(f"v_pk_add_f32 {v(D + 2 * d, 2)}, {v(D + 2 * d, 2)}, {v(R + 2 * d, 2)}")
            A(f"v_pk_add_f32 {v(R + 16 + 2 * d, 2)}, {v(R + 16 + 2 * d, 2)}, {v(R + 32 + 2 * d, 2)}")
            A(f"v_pk_add_f32 {v(D + 2 * d, 2)}, {v(D + 2 * d, 2)}, {v(R + 16 + 2 * d, 2)}")
            A(f"v_pk_fma_f32 {v(D + 2 * d, 2)}, {v(D + 2 * d, 2)}, {v(96 + 2 * d, 2)}, {v(X1 + 2 * d, 2)}")
            A(f"v_cvt_pk_bf16_f32 {v(32 + d)}, {v(D + 2 * d)}, {v(D + 2 * d + 1)}")
        if q & 1:
            b = 32 + 2 * (q - 1)
            A(f"v_permlane32_swap_b32 {v(b)}, {v(b + 2)}")
            A(f"v_permlane32_swap_b32 {v(b + 1)}, {v(b + 3)}")
            A(f"buffer_store_dwordx4 {v(b, 4)}, v0, {s(SOUT, 4)}, s52 offen offset:{16 * (q - 1)} {'sc1' if 'osc1' in OPT else ('nt' if 'ont' in OPT else '')}")


def build():
    A = K()
    prologue(A)
    attention(A)
    early, A.stubs = A.stubs, []
    attn_epilogue(A)
    outproj(A)
    ffn(A)
    if STAMPS:
        if len(STAMPS) > 2:
            A("s_waitcnt vmcnt(0)")
        A.stamp("end")
        A("s_lshl_b32 s38, s2, 2")
        A(f"s_add_u32 s38, s38, {s(sW)}")
        A("s_lshl_b32 s38, s38, 7")
        A(f"s_add_u32 s38, s38, {WS_STAMP}")
        for i in range(len(STAMPS)):
            A(f"v_mov_b32 v4, {s(76 + 2 * i)}")
            A(f"buffer_store_dword v4, off, {s(WS, 4)}, s38 offset:{8 * i}")
    if any(o.startswith("pad=") for o in OPT):
        A("L_pad:")
        A("s_sleep 1")
        A("s_memrealtime s[96:97]")
        A("s_sub_u32 s96, s96, s98")
        A("s_cmp_lt_u32 s96, 6000")
        A("s_cbranch_scc1 L_pad")
    A("s_endpgm")
    for x in A.stubs:
        A(x)
    A("L_end:")
    A("s_endpgm")
    B = K()
    for x in early:
        B(x)
    fallback(B)
    g = [x.label for x in A.ins].index("L_gap")
    A.ins[g:g + 1] = B.ins
    return A


def add_pads(A):
    if "pad" not in OPT:
        return
    sz = ins_sizes(A)
    i0 = [x.label for x in A.ins].index("L_aligned") + 1
    pos, addr, page = [], 0, 0
    i = i0
    while i < len(A.ins):
        if addr >= page * 4096 and A.ins[i].ws:
            k, ad = i, addr
            best = i
            while ad + 4 <= page * 4096 + 64 and k < len(A.ins):
                if k > i0 and A.ins[k - 1].kind == "mfma" and A.ins[k].kind == "valu":
                    best = k
                    break
                ad += sz[k]
                k += 1
            pos.append(best)
            addr += 4
            page += 1
        addr += sz[i]
        i += 1
    n = len(pos)
    assert n >= 4
    for p in reversed(range(n)):
        tgt = f"L_page{p + 4}" if p + 4 < n else "L_warmed"
        A.ins[pos[p]:pos[p]] = [Ins(f"L_page{p}:"), Ins(f"s_cbranch_execz {tgt} ; warm")]


HEAD = """; adaLN block: multi-query attention + ReGLU feed-forward, one launch of 256 workgroups (one per CU).
; Generated by gen/fused.py (hand-written generator).
; @launch grid=(256,1,1) block=(256,1,1) lds=%d
.amdgcn_target "amdgcn-amd-amdhsa--gfx950"
""" % LDS_BYTES


def main(out, opt=""):
    OPT.clear()
    OPT.update(x for x in opt.split(",") if x)
    STAMPS.clear()
    for k, names in STAMP_SETS.items():
        if k in OPT:
            STAMPS.extend(names)
    for o in OPT:
        if o.startswith("st="):
            STAMPS.extend(o[3:].split(":"))
    A = build()
    text = ("; stamps: " + ",".join(STAMPS) + "\n" if STAMPS else "") + HEAD + kernel_text(NAME + "_kernel", A, verbose="v" in OPT, post=add_pads)
    open(out, "w").write(text)


if __name__ == "__main__":
    main(sys.argv[1], sys.argv[2] if len(sys.argv) > 2 else "")
```

```python
import struct
import sys

from asmlib import Asm, Ins, a, ins_sizes, kernel_text, r, s, v

NAME = "adaLN_cond__grouped_kv_mqa__glu_gated_reglu__prompt"
WS_NONCE = 0x0
WS_MODG = 0x1000
WS_FKV = 0x4000
WS_FRL = 0x6000
WS_FG = 0x8000
WS_KV = 0x20000
WS_WGU = 0x100000
WS_B = 0x400000
WS_STAMP = 0x1C00000
WS_SIZE = 0x2000000
QSCALE = 0.25 * 1.4426950408889634
HT = 32 * 1056
L_H1 = 0
L_WQ = 2 * HT
KVB = 2080
L_SP = 64 * KVB
L_MODL = L_SP
L_OWN = L_SP + 4096
L_MPART = L_SP + 5120
L_RED = L_SP + 6144
L_WO = 0
L_H = 65536
LDS_BYTES = 163840
assert L_WQ + 65536 == L_SP and L_RED + 16384 <= LDS_BYTES

MF = "v_mfma_f32_32x32x16_bf16"
MF16 = "v_mfma_f32_16x16x32_bf16"
SM = "v_smfmac_f32_32x32x32_bf16"
DPPF = "row_mask:0xf bank_mask:0xf"
SPIN_MAX = 1 << 18

WS, WSF, WSS, SX, SOUT, T1, T2, OF, OS = 8, 12, 16, 20, 24, 28, 4, 68, 72
sW, sG, sJ, sTAG, sTT, sHP = 32, 33, 34, 35, 36, 37
sGA = 62
OPT = set()
STAMPS = []
STAMP_SETS = {
    "stA": ["start", "modpub", "ln0", "ln1", "hop1", "hop1done", "kvst", "rows", "qdone", "hop2", "attn0", "attn1", "end"],
    "stC": ["start", "attn0", "kt4", "kt8", "kt12", "kt16", "kt24", "kt32", "kt40", "kt48", "kt56", "attn1", "end"],
    "stB": ["start", "attn0", "attn1", "e1", "oproj", "stat", "e2a", "e2b", "up0", "up1", "down1", "end"],
}


def P(name, default):
    for o in OPT:
        if o.startswith(name + "="):
            return int(o.split("=")[1])
    return default


def f2u(x):
    return hex(struct.unpack("<I", struct.pack("<f", x))[0])


class K(Asm):
    def __init__(self):
        super().__init__()
        self.stubs = []
        self.nlab = 0

    def lab(self, p):
        self.nlab += 1
        return f"L_{p}_{self.nlab}"

    def stamp(self, name):
        if "pad=" + name in OPT or (name == "start" and any(o.startswith("pad=") for o in OPT)):
            pj = [o for o in OPT if o.startswith("padj=")]
            if pj and name != "start":
                lo, hi = pj[0][5:].split(":")
                L = self.lab("pj")
                self("s_bfe_u32 s97, s2, 0x30003")
                self(f"s_sub_u32 s97, s97, {lo}")
                self(f"s_cmp_gt_u32 s97, {int(hi) - int(lo)}")
                self(f"s_cbranch_scc1 {L}")
                self("s_memrealtime s[98:99]")
                self(f"{L}:")
            else:
                self("s_memrealtime s[98:99]")
        if name in STAMPS:
            self(f"{'s_memtime' if 'cyc' in OPT else 's_memrealtime'} {s(76 + 2 * STAMPS.index(name), 2)}")

    def srd(self, d, src, size):
        self(f"s_mov_b32 {s(d)}, {s(src)}")
        self(f"s_mov_b32 {s(d + 1)}, {s(src + 1)}")
        self(f"s_mov_b32 {s(d + 2)}, {size}")
        self(f"s_mov_b32 {s(d + 3)}, 0x20000")

    def xstore(self, op, data, vaddr, soff, extra="", tok=None, out=False):
        t = f" ; def:{tok}" if tok else ""
        self(f"{op} {data}, {vaddr}, {s(OF if out else WSF, 4)}, {soff} offen {extra}{t}")
        self(f"{op} {data}, {vaddr}, {s(OS if out else WSS, 4)}, {soff} offen {extra} sc1{t}")

    def xflag(self, soff, off, vt, use):
        self(f"; use:{use}")
        self(f"buffer_store_dword {v(vt)}, off, {s(WSF, 4)}, {soff} offset:{off}")
        self(f"buffer_store_dword {v(vt)}, off, {s(WSS, 4)}, {soff} offset:{off} sc1")

    def spin(self, loads, check, sleep=0):
        L, E = self.lab("spin"), self.lab("spun")
        self("s_mov_b32 s3, 0")
        self(f"{L}:")
        for x in loads:
            self(x)
        for x in check:
            self(x)
        self(f"s_cbranch_vccz {E}")
        if sleep:
            self(f"s_sleep {sleep}")
        self("s_add_u32 s3, s3, 1")
        self(f"s_cmp_lt_u32 s3, {SPIN_MAX}")
        self(f"s_cbranch_scc1 {L}")
        self(f"{E}:")

    def check_or_spin(self, loads, check):
        L, E, S = self.lab("late"), self.lab("ok"), self.lab("lspin")
        for x in check:
            self(x)
        self(f"s_cbranch_vccnz {L}")
        self(f"{E}:")
        st = [f"{L}:", "s_mov_b32 s3, 0", f"{S}:"] + list(loads) + list(check) + [
            f"s_cbranch_vccz {E}", "s_add_u32 s3, s3, 1", f"s_cmp_lt_u32 s3, {SPIN_MAX}", f"s_cbranch_scc1 {S}",
            f"s_branch {E}"]
        self.stubs += st


SD = 32


def mod_loads(SD=SD):
    setup = ["v_lshrrev_b32 v89, 2, v0", "v_and_b32 v90, 3, v0", "v_lshlrev_b32 v91, 2, v89",
             "v_lshl_add_u32 v91, v90, 8, v91", "v_mul_u32_u24 v89, 12288, v89", "v_lshl_add_u32 v89, v90, 4, v89",
             "s_lshl_b32 s42, s41, 6"]
    loads = [[f"buffer_load_dword v88, v91, {s(T2, 4)}, 0 offen"]]
    for i in range(8):
        pre = [f"s_add_u32 s42, s42, {6144 if i & 1 else 127 * 6144}"] if i else []
        loads.append(pre + [f"buffer_load_dwordx4 {v(SD + 4 * i, 4)}, v89, {s(T1, 4)}, s42 offen"])
    return setup, loads


def mod_partial(A, T, SD=SD):
    c0, c1, acc, pm = T, T + 1, T + 4, T + 12
    A(f"v_lshlrev_b32 {v(c0)}, 16, v88")
    A(f"v_and_b32 {v(c1)}, 0xffff0000, v88")
    for x in (c0, c1):
        A(f"v_mul_f32 {v(x + 2)}, {f2u(-1.4426950408889634)}, {v(x)}")
    for x in (c0, c1):
        A(f"v_exp_f32 {v(x + 2)}, {v(x + 2)}")
    for e in range(8):
        A(f"v_mov_b32 {v(acc + e)}, 0")
    for x in (c0, c1):
        A(f"v_add_f32 {v(x + 2)}, 1.0, {v(x + 2)}")
    for x in (c0, c1):
        A(f"v_rcp_f32 {v(x + 2)}, {v(x + 2)}")
    A("s_mov_b32 s38, 0x05040100")
    A("s_mov_b32 s39, 0x07060302")
    for x in (c0, c1):
        A(f"v_mul_f32 {v(x)}, {v(x)}, {v(x + 2)}")
    A(f"v_cvt_pk_bf16_f32 {v(c0)}, {v(c0)}, {v(c1)}")
    for p in range(4):
        for d in range(4):
            w0, w1 = SD + 8 * p + d, SD + 4 + 8 * p + d
            A(f"v_perm_b32 {v(pm + 2 * d)}, {v(w1)}, {v(w0)}, s38")
            A(f"v_perm_b32 {v(pm + 1 + 2 * d)}, {v(w1)}, {v(w0)}, s39")
        for e in range(8):
            A(f"v_dot2c_f32_bf16_dpp {v(acc + e)}, {v(c0)}, {v(pm + e)} quad_perm:[{p},{p},{p},{p}] {DPPF}")
    for e in range(4):
        A(f"v_permlane32_swap_b32 {v(acc + e)}, {v(acc + 4 + e)}")
    for e in range(4):
        A(f"v_add_f32 {v(acc + e)}, {v(acc + e)}, {v(acc + 4 + e)}")
    A(f"v_lshrrev_b32 {v(c0)}, 4, v1")
    for e in range(2):
        A(f"v_permlane16_swap_b32 {v(acc + e)}, {v(acc + 2 + e)}")
    for e in range(2):
        A(f"v_add_f32 {v(acc + e)}, {v(acc + e)}, {v(acc + 2 + e)}")
    A(f"v_and_b32 {v(c1)}, 3, v1")
    A(f"v_lshl_add_u32 {v(c0)}, {v(c1)}, 2, {v(c0)}")
    for e in range(2):
        A(f"v_add_f32_dpp {v(acc + e)}, {v(acc + e)}, {v(acc + e)} row_ror:8 {DPPF}")
    A(f"s_lshl_b32 s38, {s(sW)}, 7")
    A(f"v_lshl_add_u32 {v(c0)}, {v(c0)}, 3, s38")
    for e in range(2):
        A(f"v_add_f32_dpp {v(acc + e)}, {v(acc + e)}, {v(acc + e)} row_ror:4 {DPPF}")
    A(f"v_add_u32 {v(c0)}, {L_MPART}, {v(c0)}")
    A(f"ds_write_b64 {v(c0)}, {v(acc, 2)}")


def mod_publish(A, T):
    A(f"v_and_b32 {v(T)}, 15, v1")
    A(f"v_lshlrev_b32 {v(T)}, 3, {v(T)}")
    A(f"v_add_u32 {v(T + 1)}, {L_MPART}, {v(T)}")
    P = T + 2
    for i in range(4):
        A(f"ds_read_b64 {v(P + 2 * i, 2)}, {v(T + 1)} offset:{128 * i}")
    A("s_lshr_b32 s38, s41, 4")
    A("s_cmp_eq_u32 s38, 1")
    A("s_cselect_b32 s39, 1.0, 0")
    A("s_cmp_eq_u32 s38, 4")
    A("s_cselect_b32 s39, 1.0, s39")
    A("s_lshl_b32 s38, s41, 7")
    A(f"s_add_u32 s38, s38, {WS_MODG}")
    A(f"v_pk_add_f32 {v(P, 2)}, {v(P, 2)}, {v(P + 2, 2)}")
    A(f"v_pk_add_f32 {v(P + 4, 2)}, {v(P + 4, 2)}, {v(P + 6, 2)}")
    A(f"v_pk_add_f32 {v(P, 2)}, {v(P, 2)}, {v(P + 4, 2)}")
    A(f"v_cvt_pk_bf16_f32 {v(P)}, {v(P)}, {v(P + 1)}")
    A(f"v_mov_b32 {v(P + 3)}, {s(sTAG)}")
    A(f"v_and_b32 {v(P + 1)}, 0xffff0000, {v(P)}")
    A(f"v_lshlrev_b32 {v(P)}, 16, {v(P)}")
    A(f"v_add_f32 {v(P + 1)}, s39, {v(P + 1)}")
    A(f"v_add_f32 {v(P)}, s39, {v(P)}")
    A(f"v_cvt_pk_bf16_f32 {v(P + 2)}, {v(P)}, {v(P + 1)}")
    A("s_mov_b64 exec, 0xffff")
    A(f"buffer_store_dwordx2 {v(P + 2, 2)}, {v(T)}, {s(WS, 4)}, s38 offen sc1")
    A("s_mov_b64 exec, -1")


def relayout_setup(A):
    A(f"s_sub_u32 s38, {s(sJ)}, 5")
    A("s_lshl_b32 s38, s38, 5")
    A(f"s_add_u32 s38, s38, {s(sG)}")
    A("s_lshl_b32 s38, s38, 2")
    A(f"s_add_u32 s38, s38, {s(sW)}")
    A("s_lshl_b32 s43, s38, 12")
    A("s_cmp_lt_u32 s38, 352")
    A(f"s_cselect_b32 s40, {512 * 2752}, 0")
    A.srd(T1, 56, "s40")
    A.srd(T2, 58, "s40")
    A("s_lshr_b32 s3, s38, 5")
    A("s_and_b32 s38, s38, 31")
    A(f"s_mul_i32 s41, s38, {16 * 2752}")
    A("s_lshl_b32 s39, s3, 8")
    A("s_add_u32 s41, s41, s39")
    A("s_lshl_b32 s42, s3, 18")
    A("s_lshl_b32 s38, s38, 10")
    A("s_add_u32 s42, s42, s38")
    A(f"s_add_u32 s42, s42, {WS_WGU}")


def relayout_loads(A):
    A("v_lshrrev_b32 v89, 4, v1")
    A("v_and_b32 v90, 15, v1")
    A("v_mul_u32_u24 v89, 2752, v89")
    A("v_lshl_add_u32 v89, v90, 4, v89")
    for q in range(8):
        A(f"buffer_load_dwordx4 {v(SD + 4 * q, 4)}, v89, {s(T2 if q & 1 else T1, 4)}, s41 offen")
        if q & 1 and q < 7:
            A(f"s_add_u32 s41, s41, {4 * 2752}")


def relayout_finish(A, T):
    A(f"s_mul_i32 s38, {s(sW)}, 9216")
    A(f"v_lshrrev_b32 {v(T)}, 4, v1")
    A(f"v_mul_u32_u24 {v(T)}, 576, {v(T)}")
    A(f"v_and_b32 {v(T + 1)}, 15, v1")
    A(f"v_lshlrev_b32 {v(T + 1)}, 4, {v(T + 1)}")
    A(f"v_add3_u32 {v(T)}, {v(T)}, {v(T + 1)}, s38")
    for q in range(8):
        A(f"ds_write_b128 {v(T)}, {v(SD + 4 * q, 4)} offset:{(q >> 1) * 4 * 576 + (q & 1) * 288}")
    A(f"v_lshl_add_u32 {v(T)}, v11, 2, v9")
    A(f"v_mul_u32_u24 {v(T)}, 576, {v(T)}")
    A(f"v_bfe_u32 {v(T + 1)}, v1, 4, 1")
    A(f"v_mul_u32_u24 {v(T + 1)}, 288, {v(T + 1)}")
    A(f"v_add3_u32 {v(T)}, {v(T)}, {v(T + 1)}, s38")
    A(f"v_add_u32 {v(T)}, {v(T)}, v8")
    A("s_waitcnt lgkmcnt(0)")
    for f in range(8):
        A(f"ds_read_b64_tr_b16 {v(SD + 4 * f, 2)}, {v(T)} offset:{32 * f}")
        A(f"ds_read_b64_tr_b16 {v(SD + 2 + 4 * f, 2)}, {v(T)} offset:{32 * f + 8 * 576}")
    for f in range(8):
        A(f"buffer_store_dwordx4 {v(SD + 4 * f, 4)}, v2, {s(WS, 4)}, s42 offen sc1 ; def:rl")
        if f < 7:
            A("s_add_u32 s42, s42, 32768")


def slice_voffset(A, d, t):
    A(f"v_lshrrev_b32 {v(d)}, 3, v1")
    A(f"v_lshrrev_b32 {v(t)}, 2, v1")
    A(f"v_and_b32 {v(t)}, 4, {v(t)}")
    A(f"v_xor_b32 {v(t)}, {v(t)}, v1")
    A(f"v_and_b32 {v(t)}, 7, {v(t)}")
    A(f"v_lshlrev_b32 {v(t)}, 4, {v(t)}")
    A(f"v_lshl_add_u32 {v(d)}, {v(d)}, 10, {v(t)}")


def slice_read_addr(A, d, t, hshift, base):
    A(f"v_lshrrev_b32 {v(d)}, 5, v1")
    A(f"v_bfe_u32 {v(t)}, v1, 2, 2")
    A(f"v_lshl_add_u32 {v(d)}, {v(d)}, {hshift}, {v(t)}")
    A(f"v_lshrrev_b32 {v(t)}, 1, {v(t)}")
    A(f"v_xor_b32 {v(t)}, {s(sHP)}, {v(t)}")
    A(f"v_lshl_add_u32 {v(d)}, {v(d)}, 1, {v(t)}")
    A(f"v_bfe_u32 {v(t)}, v1, 4, 1")
    A(f"v_lshl_add_u32 {v(d)}, {v(d)}, 1, {v(t)}")
    A(f"v_and_b32 {v(t)}, 3, v1")
    A(f"v_lshl_add_u32 {v(d)}, {v(d)}, 2, {v(t)}")
    A(f"v_lshlrev_b32 {v(d)}, 3, {v(d)}")
    A(f"v_add_u32 {v(d)}, {base}, {v(d)}")


def column_id(A, d):
    A(f"s_cmp_eq_u32 {s(sJ)}, 3")
    A(f"s_cselect_b32 {s(d)}, 5, {s(sJ)}")
    A(f"s_cmp_eq_u32 {s(sJ)}, 5")
    A(f"s_cselect_b32 {s(d)}, 3, {s(d)}")


def prologue(A):
    X, N = 64, 128
    XA = 192
    A("s_cmp_ge_u32 s2, 256")
    A("s_cbranch_scc1 L_end")
    A.stamp("start")
    A("s_load_dwordx16 s[44:59], s[0:1], 0")
    A("s_load_dwordx8 s[60:67], s[0:1], 64")
    A(f"s_load_dwordx2 {s(WS, 2)}, s[0:1], 104")
    A("v_lshrrev_b32 v3, 6, v0")
    A("v_and_b32 v1, 63, v0")
    A(f"v_readfirstlane_b32 {s(sW)}, v3")
    A("v_lshlrev_b32 v2, 4, v1")
    A(f"s_lshr_b32 {s(sJ)}, s2, 3")
    A(f"s_and_b32 {s(sJ)}, {s(sJ)}, 7")
    A(f"s_lshr_b32 {s(sG)}, s2, 6")
    A(f"s_cmp_lt_u32 {s(sJ)}, 5")
    A("s_cbranch_scc1 L_nocode")
    A("s_getpc_b64 s[38:39]")
    A("L_pc:")
    A(f"s_sub_u32 s3, {s(sJ)}, 5")
    A("s_lshl_b32 s3, s3, 2")
    A(f"s_add_u32 s3, s3, {s(sG)}")
    A("s_lshl_b32 s3, s3, 12")
    A("v_lshrrev_b32 v4, 3, v0")
    A("v_lshl_add_u32 v4, v4, 7, s3")
    A("v_min_u32 v4, L_end-L_pc, v4")
    A("global_load_dword v5, v4, s[38:39]")
    A("L_nocode:")
    A(f"s_lshl_b32 {s(sG)}, {s(sG)}, 3")
    A("s_and_b32 s3, s2, 7")
    A(f"s_add_u32 {s(sG)}, {s(sG)}, s3")
    A(f"s_and_b32 {s(sTT)}, {s(sW)}, 1")
    A(f"s_lshr_b32 {s(sHP)}, {s(sW)}, 1")
    A(f"s_mov_b32 {s(WS + 2)}, {WS_SIZE}")
    A(f"s_mov_b32 {s(WS + 3)}, 0x20000")
    A("s_bfe_u32 s38, s2, 0x10007")
    A("s_lshl_b32 s39, s38, 2")
    A("s_xor_b32 s3, s3, s39")
    A(f"s_lshr_b32 s39, {s(sJ)}, 1")
    A("s_and_b32 s39, s39, 2")
    A("s_xor_b32 s3, s3, s39")
    A("s_lshl_b32 s38, s38, 3")
    A("s_add_u32 s3, s3, s38")
    A("s_lshl_b32 s3, s3, 1")
    A("s_bfe_u32 s38, s2, 0x10006")
    A("s_add_u32 s3, s3, s38")
    A(f"s_sub_u32 s41, {s(sJ)}, 2")
    A("s_lshl_b32 s41, s41, 5")
    A("s_add_u32 s41, s41, s3")
    msetup, mloads = mod_loads()
    for x in msetup:
        A(x)
    A(f"s_and_b32 s38, {s(sJ)}, 1")
    A("s_lshl_b32 s38, s38, 15")
    A(f"s_lshl_b32 s43, {s(sG)}, 16")
    A(f"s_lshl_b32 s40, {s(sW)}, 13")
    A("s_add_u32 s43, s43, s40")
    A("s_add_u32 s43, s43, s38")
    nonce = f"buffer_load_dword v7, off, {s(WS, 4)}, 0 offset:{WS_NONCE} sc1"

    def x_loads():
        for i in range(16):
            A(f"buffer_load_dwordx4 {v(XA + 4 * i, 4)}, v2, {s(SX, 4)}, s43 offen offset:{(i & 3) * 1024}")
            if i in (3, 11):
                A("s_add_u32 s43, s43, 4096")
            if i == 7:
                A("s_xor_b32 s43, s43, 0x9000")

    def get_tag():
        A(f"v_readfirstlane_b32 {s(sTAG)}, v7")
        A(f"s_mul_i32 {s(sTAG)}, {s(sTAG)}, 1664525")
        A(f"s_add_u32 {s(sTAG)}, {s(sTAG)}, 1013904223")

    A.srd(T1, 64, 512 * 6144)
    A.stamp("karg")
    A.srd(T2, 62, 1024)
    A.srd(SX, 44, 2048 * 1024)
    A(f"s_cmp_lg_u32 {s(sJ)}, 2")
    A("s_cbranch_scc1 L_not_crit")
    for g in mloads:
        for x in g:
            A(x)
    A(nonce)
    A.stamp("modiss")
    if "modarr" in STAMPS:
        A("s_waitcnt vmcnt(9)")
        A.stamp("carr")
        A("s_waitcnt vmcnt(8)")
        A.stamp("mod1st")
        A("s_waitcnt vmcnt(1)")
        A.stamp("modarr")
        A("s_waitcnt vmcnt(0)")
        A.stamp("nonce")
    mod_partial(A, 8)
    get_tag()
    A("s_waitcnt lgkmcnt(0)")
    A("s_barrier")
    A(f"s_cmp_lg_u32 {s(sW)}, 0")
    A("s_cbranch_scc1 L_crit_done")
    mod_publish(A, 8)
    A("L_crit_done:")
    if "nob2" not in OPT:
        A("s_barrier")
    A.stamp("modpub")
    x_loads()
    A("s_branch L_ln")
    A("L_not_crit:")
    if "notw" not in OPT:
        A(f"s_sub_u32 s38, {s(sJ)}, 4")
        A("s_lshl_b32 s38, s38, 5")
        A(f"s_add_u32 s38, s38, {s(sG)}")
        A("s_lshl_b32 s38, s38, 2")
        A(f"s_add_u32 s38, s38, {s(sW)}")
        A("s_min_u32 s38, s38, 512")
        A("s_mul_i32 s38, s38, 6144")
        A("v_and_b32 v4, 15, v1")
        A("v_lshlrev_b32 v4, 7, v4")
        A(f"buffer_load_dword v10, v4, {s(T1, 4)}, s38 offen")
    x_loads()
    A(nonce)
    A(f"s_cmp_gt_u32 {s(sJ)}, 2")
    A("s_cbranch_scc1 L_role_rl")
    A(f"s_cmp_eq_u32 {s(sHP)}, 0")
    A(f"s_cselect_b32 {s(WSF)}, s48, s50")
    A(f"s_cselect_b32 {s(WSF + 1)}, s49, s51")
    A(f"s_mov_b32 {s(WSF + 2)}, 16384")
    A(f"s_mov_b32 {s(WSF + 3)}, 0x20000")
    A(f"s_lshl_b32 m0, {s(sW)}, 13")
    A(f"s_lshl_b32 s38, {s(sTT)}, 13")
    for i in range(8):
        A(f"buffer_load_dwordx4 v2, {s(WSF, 4)}, s38 offen offset:{(i & 3) * 1024} lds ; def:kvw")
        if i == 3:
            A("s_add_u32 m0, m0, 4096")
            A("s_add_u32 s38, s38, 4096")
    A("s_branch L_ln")
    A("L_role_rl:")
    A(f"s_cmp_le_u32 {s(sJ)}, 4")
    A("s_cbranch_scc1 L_ln")
    relayout_setup(A)
    if P("rl", 1) == 1:
        relayout_loads(A)

    A("L_ln:")
    A.stamp("ln0")
    A.srd(SOUT, 66, 2048 * 1024)
    A.srd(WSS, 60, 1376 * 1024)
    A.srd(WSF, 46, 512 * 1024)
    slice_voffset(A, 6, 4)
    A(f"s_lshl_b32 s38, {s(sW)}, 17")
    column_id(A, 39)
    A("s_lshl_b32 s39, s39, 7")
    A("s_add_u32 s38, s38, s39")
    A(f"s_lshl_b32 s39, {s(sW)}, 14")
    A(f"s_add_u32 m0, s39, {L_WQ}")
    wq = []
    for i in range(16):
        wq.append([f"buffer_load_dwordx4 v6, {s(WSF, 4)}, s38 offen lds ; def:wq"]
                  + (["s_add_u32 m0, m0, 1024", "s_add_u32 s38, s38, 8192"] if i < 15 else []))
    if P("rl", 1) == 2:
        while wq:
            for y in wq.pop(0):
                A(y)
        A(f"s_cmp_le_u32 {s(sJ)}, 4")
        A("s_cbranch_scc1 L_rl2")
        relayout_loads(A)
        A("L_rl2:")
    cnt = [0]

    def V(x, every=20):
        A(x)
        cnt[0] += 1
        if cnt[0] >= every and wq:
            cnt[0] = 0
            for y in wq.pop(0):
                A(y)

    S1, S2 = 96, 112
    A("v_mov_b32 v3, 0x3f803f80")
    for i in range(16):
        E = A if i < 15 else V
        E(f"v_dot2_f32_bf16 {v(S1 + i)}, {v(XA + 4 * i)}, v3, 0")
        E(f"v_dot2_f32_bf16 {v(S2 + i)}, {v(XA + 4 * i)}, {v(XA + 4 * i)}, 0")
        if i:
            for d in range(1, 4):
                E(f"v_dot2c_f32_bf16 {v(S1 + i - 1)}, {v(XA + 4 * i - 4 + d)}, v3")
                E(f"v_dot2c_f32_bf16 {v(S2 + i - 1)}, {v(XA + 4 * i - 4 + d)}, {v(XA + 4 * i - 4 + d)}")
            if i <= 8:
                for d in range(4):
                    E(f"v_lshlrev_b32 {v(N + 8 * (i - 1) + 2 * d)}, 16, {v(XA + 4 * (i - 1) + d)}")
                    E(f"v_and_b32 {v(N + 8 * (i - 1) + 2 * d + 1)}, 0xffff0000, {v(XA + 4 * (i - 1) + d)}")
    cnt[0] = 100
    for d in range(1, 4):
        V(f"v_dot2c_f32_bf16 {v(S1 + 15)}, {v(XA + 60 + d)}, v3")
        V(f"v_dot2c_f32_bf16 {v(S2 + 15)}, {v(XA + 60 + d)}, {v(XA + 60 + d)}")
    EV = 14
    for op, n in (("v_permlane32_swap_b32", 8), ("v_permlane16_swap_b32", 4)):
        for b in (S1, S2):
            for i in range(n):
                V(f"{op} {v(b + i)}, {v(b + i + n)}", EV)
        for b in (S1, S2):
            for i in range(n):
                V(f"v_add_f32 {v(b + i)}, {v(b + i)}, {v(b + i + n)}", EV)
    for b in (S1, S2):
        for i in range(2):
            V(f"v_add_f32_dpp {v(b + i)}, {v(b + i)}, {v(b + i)} row_ror:8 row_mask:0xf bank_mask:0x3", EV)
    for b in (S1, S2):
        for i in range(2):
            V(f"v_add_f32_dpp {v(b + i)}, {v(b + i + 2)}, {v(b + i + 2)} row_ror:8 row_mask:0xf bank_mask:0xc", EV)
    unp = []
    for i in range(8, 16):
        for d in range(4):
            src, dst = XA + 4 * i + d, N + 8 * i + 2 * d
            assert dst + 1 <= src
            unp.append(f"v_lshlrev_b32 {v(dst)}, 16, {v(src)}")
            unp.append(f"v_and_b32 {v(dst + 1)}, 0xffff0000, {v(src)}")

    def fill(n):
        for _ in range(n):
            V(unp.pop(0), EV)

    for b in (S1, S2):
        A(f"v_add_f32_dpp {v(b)}, {v(b)}, {v(b)} row_half_mirror row_mask:0xf bank_mask:0x5")
    fill(1)
    for b in (S1, S2):
        A(f"v_add_f32_dpp {v(b)}, {v(b + 1)}, {v(b + 1)} row_half_mirror row_mask:0xf bank_mask:0xa")
    for qp in ("[1,0,3,2]", "[2,3,0,1]"):
        fill(1)
        for b in (S1, S2):
            A(f"v_add_f32_dpp {v(b)}, {v(b)}, {v(b)} quad_perm:{qp} {DPPF}")
    A(f"v_mul_f32 v3, {f2u(1 / 512)}, {v(S1)}")
    A(f"v_mul_f32 v4, {f2u(1 / 512)}, {v(S2)}")
    A("v_fma_f32 v4, -v3, v3, v4")
    A("v_max_f32 v4, 0, v4")
    A(f"v_add_f32 v4, {f2u(1e-5)}, v4")
    A("v_rsq_f32 v4, v4")
    fill(1)
    A("v_mul_f32 v3, -v3, v4")
    for i in range(16):
        V(f"v_readlane_b32 {s(44 + 2 * i)}, v4, {4 * i}", EV)
        V(f"v_readlane_b32 {s(45 + 2 * i)}, v3, {4 * i}", EV)
    fill(len(unp))
    for i in range(16):
        for d in range(4):
            n = v(N + 8 * i + 2 * d, 2)
            V(f"v_pk_fma_f32 {n}, {n}, {s(44 + 2 * i, 2)}, {s(44 + 2 * i, 2)} op_sel:[0,0,1] op_sel_hi:[1,0,1]", EV)
    while wq:
        for y in wq.pop(0):
            A(y)
    A.stamp("ln1")
    A.srd(WSF, WS, 0)
    A("v_and_b32 v8, 3, v1")
    A("v_lshlrev_b32 v8, 3, v8")
    A("v_bfe_u32 v9, v1, 2, 2")
    A("v_lshrrev_b32 v11, 5, v1")
    A(f"s_cmp_eq_u32 {s(sJ)}, 2")
    A("s_cbranch_scc1 L_hop1")
    get_tag()
    A(f"s_cmp_lt_u32 {s(sJ)}, 2")
    A("s_cbranch_scc1 L_kvw")
    A(f"s_cmp_gt_u32 {s(sJ)}, 4")
    A("s_cbranch_scc1 L_rl_loads")
    if "tw2" in OPT:
        A(f"s_sub_u32 s38, {s(sJ)}, 3")
        A("s_lshl_b32 s38, s38, 5")
        A(f"s_add_u32 s38, s38, {s(sG)}")
        A("s_lshl_b32 s38, s38, 2")
        A(f"s_add_u32 s38, s38, {s(sW)}")
        A("s_mul_i32 s38, s38, 12288")
        A("v_and_b32 v3, 31, v1")
        A("v_mul_u32_u24 v4, 6144, v11")
        A("v_lshl_add_u32 v3, v3, 7, v4")
        A(f"buffer_load_dword v10, v3, {s(T1, 4)}, s38 offen offset:2048")
    A("s_branch L_hop1")
    A("L_rl_loads:")
    if P("rl", 1) == 0:
        relayout_loads(A)
    A("s_branch L_hop1")
    A("L_kvw:")
    A("v_lshrrev_b32 v3, 4, v1")
    A("v_lshl_add_u32 v3, v3, 3, v9")
    A("v_lshl_add_u32 v3, v3, 5, v8")
    A(f"s_lshl_b32 s38, {s(sHP)}, 14")
    A("v_add_u32 v3, s38, v3")
    A("s_barrier ; use:kvw")
    for ks in range(16):
        A(f"ds_read_b64_tr_b16 {a(128 + 4 * ks, 2)}, v3 offset:{ks * 1024}")
        A(f"ds_read_b64_tr_b16 {a(130 + 4 * ks, 2)}, v3 offset:{ks * 1024 + 128}")
    A("L_hop1:")
    A.stamp("hop1")
    A("v_lshlrev_b32 v3, 4, v0")
    A(f"s_mov_b32 s38, {WS_MODG}")
    A("v_lshlrev_b32 v4, 3, v0")
    A(f"v_add_u32 v4, {L_MODL}, v4")
    A(f"s_and_b32 s39, {s(sJ)}, 1")
    A(f"s_mul_i32 s44, s39, {HT}")
    A("s_xor_b32 s39, s39, 1")
    A(f"s_mul_i32 s39, s39, {HT}")
    A(f"s_lshl_b32 s45, {s(sW)}, 7")
    A("v_mul_u32_u24 v5, 528, v1")
    A("v_add_u32 v5, s45, v5")
    A("v_add_u32 v6, s39, v5")
    A("v_add_u32 v5, s44, v5")
    A(f"v_add_u32 v7, {L_MODL}, v2")
    A.spin([f"buffer_load_dwordx4 v[12:15], v3, {s(WS, 4)}, s38 offen sc1"],
           [f"v_xor_b32 v13, {s(sTAG)}, v13", f"v_xor_b32 v15, {s(sTAG)}, v15", "v_or_b32 v15, v13, v15",
            "v_cmp_ne_u32 vcc, 0, v15"])
    A(f"s_cmp_le_u32 {s(sJ)}, 4")
    A("s_cbranch_scc1 L_no_rl")
    relayout_finish(A, 64)
    if "notw3" not in OPT:
        A("v_and_b32 v3, 31, v1")
        A("v_lshlrev_b32 v3, 7, v3")
        A(f"buffer_load_dword v87, v3, {s(WSS, 4)}, s43 offen")
    A("L_no_rl:")
    A.srd(WSS, WS, WS_SIZE)
    A("v_mov_b32 v13, v14")
    A("v_xor_b32 v16, 0x80008000, v12")
    A("v_xor_b32 v17, 0x80008000, v14")
    A("ds_write_b64 v4, v[12:13]")
    A("ds_write_b64 v4, v[16:17] offset:2048")
    A("s_waitcnt lgkmcnt(0)")
    A("s_barrier")
    A.stamp("hop1done")
    SH, SC = 16, 24
    A("ds_read_b128 v[12:15], v7")
    A("ds_read_b128 v[64:67], v7 offset:1024")
    A(f"s_sub_u32 s40, {s(sJ)}, 3")
    A("s_cmp_gt_u32 s40, 1")
    A("s_cbranch_scc1 L_nomod2")
    for x in sum(mloads, []):
        A(x)
    A("L_nomod2:")
    for d in range(4):
        A(f"v_lshlrev_b32 {v(SH + 2 * d)}, 16, {v(12 + d)}")
        A(f"v_and_b32 {v(SH + 2 * d + 1)}, 0xffff0000, {v(12 + d)}")
    for d in range(4):
        A(f"v_lshlrev_b32 {v(SC + 2 * d)}, 16, {v(64 + d)}")
        A(f"v_and_b32 {v(SC + 2 * d + 1)}, 0xffff0000, {v(64 + d)}")

    def modrow(i):
        t = 64 + 4 * (i & 3)
        for d in range(4):
            n = v(N + 8 * i + 2 * d, 2)
            A(f"v_pk_fma_f32 {n}, {n}, {v(SC + 2 * d, 2)}, {v(SH + 2 * d, 2)}")
        for d in range(4):
            A(f"v_cvt_pk_bf16_f32 {v(t + d)}, {v(N + 8 * i + 2 * d)}, {v(N + 8 * i + 2 * d + 1)}")
        A(f"ds_write_b128 {v(5 + (i >> 3))}, {v(t, 4)} offset:{16 * (i & 7)}")

    for i in range(8):
        modrow(i)
    A(f"s_cmp_ge_u32 {s(sJ)}, 2")
    A("s_cbranch_scc1 L_rows2")
    KA = "v[80:83]"
    A("v_lshrrev_b32 v3, 4, v1")
    A("v_and_b32 v4, 15, v1")
    A("v_mul_u32_u24 v12, 528, v3")
    A("v_lshl_add_u32 v12, v4, 4, v12")
    A(f"s_lshl_b32 s38, {s(sTT)}, 8")
    A("s_add_u32 s38, s38, s44")
    A("v_add_u32 v12, s38, v12")
    A(f"s_lshl_b32 s38, {s(sG)}, 1")
    A(f"s_add_u32 s38, s38, {s(sJ)}")
    A("s_lshl_b32 s38, s38, 11")
    A(f"s_add_u32 s38, s38, {WS_KV}")
    A(f"s_cmp_lg_u32 {s(sHP)}, 0")
    A("s_cbranch_scc1 L_vjob")
    A("v_lshlrev_b32 v13, 4, v3")
    A(f"v_add_u32 v13, {L_MODL + 2048}, v13")
    for ks in range(16):
        A(f"ds_read_b128 {a(64 + 4 * ks, 4)}, v13 offset:{ks * 64}")
        if ks == 11:
            A("s_waitcnt lgkmcnt(12)")
            A("s_barrier")
    A("v_and_b32 v3, 1, v3")
    A("v_lshl_add_u32 v4, v3, 5, v4")
    A(f"s_lshl_b32 s39, {s(sTT)}, 4")
    A("v_add_lshl_u32 v4, v4, s39, 4")
    for ks in range(16):
        A(f"{MF16} {KA}, {a(128 + 4 * ks, 4)}, {a(64 + 4 * ks, 4)}, {'0' if ks == 0 else KA}")
        A(f"ds_read_b128 {a(4 * ks, 4)}, v12 offset:{ks * 2112}")
    for ks in range(16):
        A(f"{MF16} {KA}, {a(128 + 4 * ks, 4)}, {a(4 * ks, 4)}, {KA}")
    A("v_cvt_pk_bf16_f32 v84, v80, v81")
    A("v_cvt_pk_bf16_f32 v86, v80, v81")
    A("v_cvt_pk_bf16_f32 v85, v82, v83")
    A("v_cvt_pk_bf16_f32 v87, v82, v83")
    A("v_permlane32_swap_b32 v84, v86")
    A("v_permlane32_swap_b32 v85, v87")
    A("s_mov_b32 exec_hi, 0")
    A(f"buffer_store_dwordx4 v[84:87], v4, {s(WS, 4)}, s38 offen sc1 ; def:pub1")
    A("s_mov_b32 exec_hi, -1")
    A("s_branch L_rows2")
    A("L_vjob:")
    A("s_waitcnt lgkmcnt(0)")
    A("s_barrier")
    for ks in range(16):
        A(f"ds_read_b128 {a(4 * ks, 4)}, v12 offset:{ks * 2112}")
    A("v_lshrrev_b32 v3, 1, v3")
    A("v_lshl_add_u32 v4, v3, 4, v4")
    A(f"s_lshl_b32 s39, {s(sTT)}, 5")
    A("v_add_lshl_u32 v4, v4, s39, 4")
    for ks in range(16):
        A(f"{MF16} {KA}, {a(4 * ks, 4)}, {a(128 + 4 * ks, 4)}, {'0' if ks == 0 else KA}")
    A("v_cvt_pk_bf16_f32 v84, v80, v81")
    A("v_cvt_pk_bf16_f32 v86, v80, v81")
    A("v_cvt_pk_bf16_f32 v85, v82, v83")
    A("v_cvt_pk_bf16_f32 v87, v82, v83")
    A("v_permlane16_swap_b32 v84, v86")
    A("v_permlane16_swap_b32 v85, v87")
    A("s_mov_b32 exec_lo, 0xffff")
    A("s_mov_b32 exec_hi, 0xffff")
    A(f"buffer_store_dwordx4 v[84:87], v4, {s(WS, 4)}, s38 offen offset:1024 sc1 ; def:pub1")
    A("s_mov_b64 exec, -1")
    A("L_rows2:")
    A.stamp("kvst")
    for i in range(8, 16):
        modrow(i)
    A("v_mul_u32_u24 v3, 528, v11")
    A("v_and_b32 v4, 31, v1")
    A("v_lshl_add_u32 v3, v4, 4, v3")
    A(f"s_mul_i32 s38, {s(sTT)}, {HT}")
    A("v_add_u32 v3, s38, v3")
    slice_read_addr(A, 4, 9, 3, L_WQ)
    A(f"s_cmp_ge_u32 {s(sJ)}, 2")
    A("s_cbranch_scc1 L_nokvflag")
    A(f"v_mov_b32 v8, {s(sTAG)}")
    A(f"s_lshl_b32 s38, {s(sG)}, 1")
    A(f"s_add_u32 s38, s38, {s(sJ)}")
    A("s_lshl_b32 s38, s38, 7")
    A(f"s_add_u32 s38, s38, {WS_FKV}")
    A(f"s_cmp_eq_u32 {s(sW)}, 0")
    A(f"s_cselect_b32 {s(WSF + 2)}, {s(WS + 2)}, 0")
    A("s_waitcnt lgkmcnt(0) ; use:pub1")
    A("s_barrier")
    A(f"buffer_store_dword v8, off, {s(WSF, 4)}, s38 sc1")
    A("s_branch L_qgemm")
    A("L_nokvflag:")
    A("s_waitcnt lgkmcnt(0) ; use:wq")
    A("s_barrier")
    A("L_qgemm:")
    A.stamp("rows")
    NB, D = 8, 4
    for ks in range(32 + D):
        k = ks - D
        if k >= 0:
            A(f"{MF} v[16:31], {a(32 + 4 * (k % NB), 4)}, {a(4 * (k % NB), 4)}, {'0' if k == 0 else 'v[16:31]'}")
        if ks < 32:
            A(f"ds_read_b128 {a(4 * (ks % NB), 4)}, v3 offset:{ks * 1056}")
            A(f"ds_read_b64_tr_b16 {a(32 + 4 * (ks % NB), 2)}, v4 offset:{ks * 2048}")
            A(f"ds_read_b64_tr_b16 {a(34 + 4 * (ks % NB), 2)}, v4 offset:{ks * 2048 + 512}")
    column_id(A, 3)
    A(f"s_mov_b32 {s(sJ)}, s3")
    A("s_cmp_gt_u32 s40, 1")
    A("s_cbranch_scc1 L_qdone")
    mod_partial(A, 64)
    A("s_waitcnt lgkmcnt(0)")
    A("s_barrier")
    A(f"s_cmp_lg_u32 {s(sW)}, 0")
    A("s_cbranch_scc1 L_qdone2")
    mod_publish(A, 64)
    A("s_branch L_qdone2")
    A("L_qdone:")
    A("s_barrier")
    A("L_qdone2:")
    A.stamp("qdone")


Q, S, O, KF, VF, XR = 8, [16, 32], [48, 64], [80, 84], [88, 96], 112
vK, vV0, vV1, IDX = 4, 5, 6, 7
U = [128, 256, 384]


def attention(A):
    NPRE = 4
    A("v_and_b32 v3, 15, v1")
    A("v_lshlrev_b32 v105, 9, v3")
    A(f"s_lshl_b32 s48, {s(sW)}, 7")
    A(f"s_add_u32 s48, s48, {WS_FKV}")
    kv_ld = [f"buffer_load_dword v104, v105, {s(WS, 4)}, s48 offen sc1"]
    A(kv_ld[0])
    A("v_and_b32 v0, 31, v1")
    A("v_lshlrev_b32 v0, 10, v0")
    A("v_lshrrev_b32 v106, 5, v1")
    A("v_lshl_add_u32 v0, v106, 3, v0")
    A(f"s_lshl_b32 s52, {s(sG)}, 16")
    A(f"s_lshl_b32 s3, {s(sTT)}, 15")
    A("s_add_u32 s52, s52, s3")
    A(f"s_lshl_b32 s3, {s(sJ)}, 7")
    A("s_add_u32 s52, s52, s3")
    A(f"s_lshl_b32 s3, {s(sHP)}, 6")
    A("s_add_u32 s52, s52, s3")
    A(f"s_load_dwordx2 {s(T1, 2)}, s[0:1], 32")
    A(f"s_load_dwordx2 {s(T2, 2)}, s[0:1], 64")
    A(f"s_mov_b32 {s(T1 + 2)}, {512 * 1024}")
    A(f"s_mov_b32 {s(T2 + 2)}, {1376 * 1024}")
    A(f"s_mov_b32 s46, {f2u(QSCALE)}")
    A(f"s_lshl_b32 s44, {s(sW)}, 11")
    A(f"s_add_u32 s44, s44, {WS_KV}")
    A(f"s_mul_i32 m0, {s(sW)}, {KVB}")
    for d in range(8):
        A(f"v_pk_mul_f32 {v(16 + 2 * d, 2)}, {v(16 + 2 * d, 2)}, s[46:47] op_sel_hi:[1,0]")
    for d in range(8):
        A(f"v_cvt_pk_bf16_f32 {v(Q + d)}, {v(16 + 2 * d)}, {v(17 + 2 * d)}")
    A(f"v_mul_u32_u24 v3, {KVB}, v1")
    for d in range(4):
        A(f"v_mov_b32 {v(120 + d)}, 0x3f803f80")
        A(f"v_mov_b32 {v(124 + d)}, 0")
    A("ds_write_b128 v3, v[120:123] offset:2048")
    A("ds_write_b128 v3, v[124:127] offset:2064")
    A(f"v_mov_b32 {v(vK)}, v2")
    A("v_lshrrev_b32 v106, 5, v1")
    A("v_lshlrev_b32 v106, 4, v106")
    A("v_and_b32 v107, 15, v1")
    A("v_add_lshl_u32 v106, v106, v107, 4")
    A(f"v_add_u32 {v(vV0)}, 1024, v106")
    A(f"v_add_u32 {v(vV1)}, 1536, v106")
    A("v_and_b32 v108, 27, v1")
    A("v_cmp_eq_u32 vcc, 16, v108")
    A("v_mov_b32 v106, 2048")
    A("v_mov_b32 v107, 2064")
    A(f"v_cndmask_b32 {v(vV0)}, {v(vV0)}, v106, vcc")
    A(f"v_cndmask_b32 {v(vV1)}, {v(vV1)}, v106, vcc")
    A("v_cmp_lt_u32 vcc, 16, v108")
    A(f"v_mov_b32 {v(IDX)}, 0xdddddddd")
    A("s_nop 0")
    A(f"v_cndmask_b32 {v(vV0)}, {v(vV0)}, v107, vcc")
    A(f"v_cndmask_b32 {v(vV1)}, {v(vV1)}, v107, vcc")
    for i in range(32):
        A(f"v_mov_b32 {v(O[0] + i)}, 0")
    A.check_or_spin(kv_ld, [f"v_cmp_ne_u32 vcc, {s(sTAG)}, v104"])
    A.stamp("hop2")

    def kv_dma(n):
        tok = "kv0" if n < 2 else ("kv1" if n <= 5 else "kv2")
        pre = [] if n == 0 else [f"s_add_u32 m0, m0, {4 * KVB}", "s_add_u32 s44, s44, 8192"]
        return [(pre, f"buffer_load_dwordx4 v2, {s(WS, 4)}, s44 offen sc1 lds ; def:{tok}"),
                ([], f"buffer_load_dwordx4 v2, {s(WS, 4)}, s44 offen offset:1024 sc1 lds ; def:{tok}")]

    for n in range(NPRE):
        for pre, x in kv_dma(n):
            for y in pre:
                A(y)
            A(x)
    A(f"s_lshl_b32 s45, {s(sW)}, 3")
    A(f"s_add_u32 s45, s45, {s(sJ)}")
    A("s_lshl_b32 s47, s45, 15")
    A(f"s_add_u32 s47, s47, {WS_WGU + 64 * 32768}")
    A("s_cmp_lt_u32 s45, 22")
    A(f"s_cselect_b32 s47, s47, {WS_SIZE}")
    A("s_lshl_b32 s46, s45, 15")
    A(f"s_add_u32 s46, s46, {WS_WGU}")
    A(f"s_lshl_b32 s48, {s(sJ)}, 7")
    A(f"s_lshl_b32 s49, {s(sW)}, 17")
    A("s_add_u32 s48, s48, s49")
    A(f"s_lshl_b32 s49, {s(sW)}, 14")
    slice_voffset(A, 124, 125)
    A("v_add_u32 v126, 7168, v124")
    A(f"s_mov_b32 s50, {WS_FRL}")
    A(f"s_lshl_b32 s51, {s(sG)}, 5")
    A(f"s_add_u32 s51, s51, {WS_FRL}")
    A(f"s_lshl_b32 s53, {s(sJ)}, 2")
    A("s_add_u32 s53, s53, s51")
    A(f"s_lshl_b32 s54, {s(sJ)}, 8")
    A(f"s_add_u32 s54, s54, {WS_MODG + 4096}")
    A("s_getreg_b32 s55, hwreg(HW_REG_XCC_ID, 0, 3)")
    A(f"s_add_u32 s56, s55, {s(sTAG)}")
    A(f"s_cmp_eq_u32 {s(sW)}, 0")
    A(f"s_cselect_b32 {s(WSF + 2)}, {s(WS + 2)}, 0")
    A("v_and_b32 v3, 7, v1")
    A("v_lshlrev_b32 v3, 2, v3")
    A(f"s_lshl_b32 {s(sGA)}, {s(sG)}, 16")
    A("s_lshl_b32 s57, s45, 11")
    A(f"s_add_u32 s57, s57, {s(sGA)}")
    A.srd(OF, SOUT, 0)
    A.srd(OS, SOUT, 0)
    A("v_lshrrev_b32 v110, 4, v1")
    A("v_and_b32 v111, 15, v1")
    A("v_lshlrev_b32 v111, 4, v111")
    A("v_lshl_add_u32 v110, v110, 11, v111")
    A("v_mov_b32 v109, s56")
    A("v_lshlrev_b32 v111, 3, v111")
    if "pad" in OPT:
        A("s_mov_b64 exec, 0")
        for w in range(3):
            A(f"s_cmp_eq_u32 {s(sW)}, {w}")
            A(f"s_cbranch_scc1 L_page{w} ; warm")
        A("s_branch L_page3 ; warm")
        A("L_warmed:")
        A("s_mov_b64 exec, -1")
    A("s_branch L_aligned")
    A("L_gap:")
    A(".p2align 12")
    A("L_aligned:")
    A("s_waitcnt lgkmcnt(0) ; use:kv0")
    A("s_barrier")
    A.stamp("attn0")
    A(f"ds_read_b128 {v(KF[0], 4)}, {v(vK)}")
    A(f"ds_read_b128 {v(VF[0], 4)}, {v(vV0)}")
    A(f"ds_read_b128 {v(VF[0] + 4, 4)}, {v(vV1)}")
    A(f"ds_read_b128 {v(KF[1], 4)}, {v(vK)} offset:{KVB}")
    A(f"buffer_store_dword v109, off, {s(WSF, 4)}, s53 sc1")
    for q in range(2):
        A(f"{MF} {v(S[q], 16)}, {v(KF[0], 4)}, {v(Q + 4 * q, 4)}, 0")
    A("s_nop 7")

    KT_CHECK = 11
    grp = {}
    for n in range(NPRE, 16):
        (pre, x), (_, y) = kv_dma(n)
        grp[n - NPRE] = [pre, [x, y]]
    frl_ld = [f"buffer_load_dwordx4 v[104:107], v2, {s(WS, 4)}, s50 offen sc1",
              f"buffer_load_dword v108, v3, {s(WS, 4)}, s51 offen sc1",
              f"buffer_load_dwordx4 v[120:123], v110, {s(WS, 4)}, s54 offen sc1"]
    for q in range(4):
        grp[2 + (q >> 1)][1].append(f"buffer_load_dwordx2 {v(XR + 2 * q, 2)}, v0, {s(SX, 4)}, s52 offen offset:{16 * q}")
    grp[7][1].append(frl_ld[2])
    grp[8][1] += frl_ld[:2]

    def unit_loads(p, first, n):
        sreg = 47 if p == 2 else 46
        pre = []
        if first & 3 == 0 and not (first == 0 and p != 1):
            pre = [f"s_add_u32 {s(sreg)}, {s(sreg)}, {4096 if first else (32 * 32768 - 7 * 4096)}"]
        return [pre, [f"buffer_load_dwordx4 {r(U[p] + 4 * ks, 4)}, v2, {s(WS, 4)}, {s(sreg)} offen offset:{(ks & 3) * 1024} sc1"
                      for ks in range(first, first + n)]]

    later = [unit_loads(p, 4 * i, 4) for p in range(2) for i in range(8)]
    for i in range(8):
        pre, x = unit_loads(2, 2 * i, 2)
        pre = pre + ([f"s_add_u32 m0, s49, {L_WO}"] if i == 0 else ["s_add_u32 m0, m0, 2048", "s_add_u32 s48, s48, 16384"])
        later.append([pre, x + [f"buffer_load_dwordx4 v124, {s(T1, 4)}, s48 offen lds ; def:wo",
                                f"buffer_load_dwordx4 v126, {s(T1, 4)}, s48 offen offset:1024 lds ; def:wo"]])
    later += [unit_loads(2, 16 + 4 * i, 4) for i in range(4)]
    if "notouch" not in OPT:
        later[14][1].append("global_load_dword v109, v111, s[58:59]")
        later[24][1].append("global_load_dword v125, v111, s[60:61]")
        later[25][1].append("global_load_dword v110, v111, s[60:61] offset:2048")
        later.append([[f"s_add_u32 s63, s57, {WS_B}", f"s_lshl_b32 s65, {s(sG)}, 10", f"s_add_u32 s65, s65, {WS_FG}"],
                      [f"buffer_load_dword v104, v111, {s(WS, 4)}, s65 offen sc1",
                       f"buffer_load_dword v105, v111, {s(SOUT, 4)}, s57 offen sc1",
                       f"buffer_load_dword v106, v111, {s(WS, 4)}, s63 offen sc1"]])
        NA = P("wda", 2)
        if NA:
            A(f"s_lshr_b32 s3, {s(sG)}, 3")
            A("s_lshl_b32 s3, s3, 2")
            A(f"s_add_u32 s3, s3, {s(sW)}")
            A("s_lshl_b32 s3, s3, 14")
            A(f"s_lshl_b32 s64, {s(sJ)}, 7")
            A("s_add_u32 s64, s64, s3")
            A("v_lshlrev_b32 v127, 3, v111")
            for i in range(NA):
                g = later[-2 - P("wdg", 1) * (NA - 1 - i)]
                if i:
                    g[0].append("s_add_u32 s64, s64, 0x40000")
                g[1].append(f"buffer_load_dword {v(120 + i)}, v127, {s(T2, 4)}, s64 offen")
        A("s_getpc_b64 s[60:61]")
        A("L_pc2:")
        A(f"s_lshl_b32 s3, {s(sW)}, 11")
        A("s_add_u32 s3, s3, L_post-L_pc2-8192")
        A("s_add_u32 s58, s60, s3")
        A("s_addc_u32 s59, s61, 0")
        A(f"s_lshl_b32 s3, {s(sW)}, 12")
        A("s_min_u32 s3, s3, L_end-L_post-4096")
        A("s_add_u32 s3, s3, L_post-L_pc2")
        A("s_add_u32 s60, s60, s3")
        A("s_addc_u32 s61, s61, 0")
    SPAN = P("span", 38)
    for i, g in enumerate(later):
        kt = 12 + (i * SPAN) // (len(later) - 1)
        assert kt not in grp and (kt >= 32 or not any("def:wo" in x for x in g[1]))
        grp[kt] = g

    base = [0]

    def off(kt):
        o = kt * KVB - base[0]
        assert 0 <= o < 65536 - 2096
        return o

    def salu(kt, n):
        while n and kt in grp and grp[kt][0]:
            A(grp[kt][0].pop(0))
            n -= 1

    rest = []
    for kt in range(64):
        kb = kt & 1
        A.stamp(f"kt{kt}")
        if kt in (28, 56):
            base[0] += 28 * KVB
            for x in (vK, vV0, vV1):
                A(f"v_add_u32 {v(x)}, {28 * KVB}, {v(x)}")
        for q in range(2):
            p = 1 - q
            pv = kb if q == 1 else 1 - kb
            pk = 1 - kb if q == 1 else kb
            first = kt == 0 and q == 0
            for i in range(16):
                A(f"v_exp_f32 {v(S[q] + i)}, {v(S[q] + i)}")
                if i == 1:
                    if not first:
                        A(f"{SM} {v(O[p], 16)}, {v(VF[pv] + 4, 4)}, {v(S[p] + 8, 8)}, {v(IDX)}")
                    if q == 0:
                        A("s_waitcnt lgkmcnt(0)")
                        if kt == 6:
                            A("s_barrier ; use:kv1")
                        elif kt == 22:
                            A("s_barrier ; use:kv2")
                        elif kt == 32:
                            A("s_barrier")
                        elif kt == 58:
                            A("s_barrier ; use:wo")
                        elif kt == KT_CHECK:
                            chk = []
                            for d in range(5):
                                chk.append(f"v_subrev_u32 {v(104 + d)}, {s(sTAG)}, {v(104 + d)}")
                            chk += ["v_or3_b32 v104, v104, v105, v106", "v_or3_b32 v104, v104, v107, v108",
                                    f"v_xor_b32 v121, {s(sTAG)}, v121", f"v_xor_b32 v123, {s(sTAG)}, v123",
                                    "v_or3_b32 v104, v104, v121, v123", "v_cmp_lt_u32 vcc, 7, v104"]
                            A.check_or_spin(frl_ld, chk)
                            A("v_and_b32 v121, 0xffff0000, v120")
                            A("v_lshlrev_b32 v120, 16, v120")
                            A("v_and_b32 v123, 0xffff0000, v122")
                            A("v_lshlrev_b32 v122, 16, v122")
                            A(f"v_add_u32 v110, {L_OWN}, v2")
                            A("ds_write_b128 v110, v[120:123]")
                            A(f"v_mov_b32 v109, {s(sTAG)}")
                            A("v_cmp_ne_u32 vcc, s55, v108")
                            A("s_cmp_eq_u32 s2, 0")
                            A(f"s_cselect_b32 {s(WSF + 2)}, 4, 0")
                            A(f"buffer_store_dword v109, off, {s(WSF, 4)}, 0 offset:{WS_NONCE} sc1")
                            if "slow" in OPT:
                                A("s_cmp_eq_u32 s2, 999")
                            else:
                                A("s_cmp_eq_u64 vcc, 0")
                            A(f"s_cselect_b32 {s(WSF + 2)}, {s(WS + 2)}, 0")
                            A(f"s_cselect_b32 {s(WSS + 2)}, 0, {s(WS + 2)}")
                            A(f"s_cselect_b32 {s(OF + 2)}, {s(SOUT + 2)}, 0")
                            A(f"s_cselect_b32 {s(OS + 2)}, 0, {s(SOUT + 2)}")
                        for x in rest:
                            A(x)
                        rest = []
                    elif kt in grp:
                        assert not grp[kt][0]
                        rest = grp.pop(kt)[1]
                        nsplit = P("split", 2)
                        for _ in range((len(rest) + nsplit - 1) // nsplit if len(rest) > P("mins", 1) else len(rest)):
                            A(rest.pop(0))
                if i == 4:
                    if not first and not (q == 1 and kt == 63):
                        A(f"{MF} {v(S[p], 16)}, {v(KF[pk], 4)}, {v(Q + 4 * p, 4)}, 0")
                    if q == 0 and kt < 63:
                        salu(kt, 1)
                        A(f"ds_read_b128 {v(VF[1 - kb], 4)}, {v(vV0)} offset:{off(kt + 1)}")
                    if q == 1 and kt < 62:
                        A(f"ds_read_b128 {v(KF[kb], 4)}, {v(vK)} offset:{off(kt + 2)}")
                if i == 9:
                    A(f"{SM} {v(O[q], 16)}, {v(VF[kb], 4)}, {v(S[q], 8)}, {v(IDX)}")
                    if q == 0:
                        salu(kt, 2)
                        if kt < 63:
                            A(f"ds_read_b128 {v(VF[1 - kb] + 4, 4)}, {v(vV1)} offset:{off(kt + 1)}")
                    elif P("split", 2) == 3:
                        for _ in range((len(rest) + 1) // 2):
                            A(rest.pop(0))
    assert not grp
    A(f"s_lshl_b32 s46, {s(sG)}, 10")
    A(f"s_lshl_b32 s47, {s(sJ)}, 2")
    A(f"{SM} {v(O[1], 16)}, {v(VF[1] + 4, 4)}, {v(S[1] + 8, 8)}, {v(IDX)}")
    A.stamp("attn1")


def attn_epilogue(A):
    A("L_post:")
    A(f"s_add_u32 s46, s46, {WS_FG}")
    A(f"s_add_u32 s47, s47, {s(sW)}")
    A("s_lshl_b32 s47, s47, 2")
    A("s_add_u32 s47, s47, s46")
    A(f"s_lshl_b32 s48, {s(sTT)}, 5")
    A(f"s_lshl_b32 s49, {s(sJ)}, 2")
    A("s_add_u32 s48, s48, s49")
    A(f"s_lshl_b32 s49, {s(sHP)}, 1")
    A("s_add_u32 s48, s48, s49")
    A("s_lshl_b32 s48, s48, 10")
    A(f"s_add_u32 s49, s48, {s(sGA)}")
    A("s_mov_b32 s40, 0")
    A("L_attn_ok:")
    for q in range(2):
        A(f"v_rcp_f32 {v(O[q] + 10)}, {v(O[q] + 8)}")
        if q == 0:
            A(f"s_mov_b32 s50, {f2u(2.0 ** 120)}")
        else:
            A(f"s_mov_b32 s51, {f2u(2.0 ** -90)}")
        for d in range(4):
            o = v(O[q] + 2 * d, 2)
            A(f"v_pk_mul_f32 {o}, {o}, {v(O[q] + 10, 2)} op_sel_hi:[1,0]")
        for d in range(4):
            A(f"v_cvt_pk_bf16_f32 {v(120 + 4 * q + d)}, {v(O[q] + 2 * d)}, {v(O[q] + 2 * d + 1)}")
        A.xstore("buffer_store_dwordx4", v(120 + 4 * q, 4), "v2", "s49", f"offset:{1024 * q}", "o", True)
    for q in range(2):
        t = 104 + q
        A(f"v_add_f32 {v(t)}, abs({v(O[q])}), {v(O[q] + 8)}")
        for i in range(1, 8):
            A(f"v_add_f32 {v(t)}, abs({v(O[q] + i)}), {v(t)}")
    A("v_add_f32 v104, v104, v105")
    A(f"v_min_f32 v105, {v(O[0] + 8)}, {v(O[1] + 8)}")
    A("v_cmp_nge_f32 vcc, s50, v104")
    A("v_cmp_nle_f32 s[38:39], s51, v105")
    A("s_or_b64 vcc, vcc, s[38:39]")
    A("s_cbranch_vccnz L_fallback")
    A("L_attn_done:")
    A(f"v_mov_b32 v7, {s(sTAG)}")


def fallback(A):
    A("L_fallback:")
    A("s_cmp_lg_u32 s40, 0")
    A("s_cbranch_scc1 L_attn_done")
    A("s_mov_b32 s40, 1")
    M = [104, 105]
    for q in range(2):
        A(f"v_mov_b32 {v(M[q])}, 0xff800000")
    A(f"s_mov_b32 s38, {WS_KV}")
    A("L_fb_max:")
    A(f"buffer_load_dwordx4 {v(KF[0], 4)}, v2, {s(WS, 4)}, s38 offen sc1")
    for q in range(2):
        A(f"{MF} {v(S[q], 16)}, {v(KF[0], 4)}, {v(Q + 4 * q, 4)}, 0")
    for q in range(2):
        for i in range(0, 16, 2):
            A(f"v_max3_f32 {v(M[q])}, {v(M[q])}, {v(S[q] + i)}, {v(S[q] + i + 1)}")
    A("s_add_u32 s38, s38, 2048")
    A(f"s_cmp_lt_u32 s38, {WS_KV + 64 * 2048}")
    A("s_cbranch_scc1 L_fb_max")
    for q in range(2):
        A(f"v_mov_b32 v106, {v(M[q])}")
        A(f"v_permlane32_swap_b32 v106, {v(M[q])}")
        A(f"v_max_f32 {v(M[q])}, {v(M[q])}, v106")
    for i in range(32):
        A(f"v_mov_b32 {v(O[0] + i)}, 0")
    for i in range(8):
        A(f"v_mov_b32 {v(VF[0] + i)}, 0x3f803f80")
    A("v_lshrrev_b32 v106, 5, v1")
    A("v_lshlrev_b32 v106, 4, v106")
    A("v_and_b32 v107, 15, v1")
    A("v_add_lshl_u32 v106, v106, v107, 4")
    A(f"s_mov_b32 s38, {WS_KV}")
    A("L_fb_sum:")
    A(f"buffer_load_dwordx4 {v(KF[0], 4)}, v2, {s(WS, 4)}, s38 offen sc1")
    A("s_mov_b32 exec_lo, 0xffff")
    A("s_mov_b32 exec_hi, 0xffff")
    A(f"buffer_load_dwordx4 {v(VF[0], 4)}, v106, {s(WS, 4)}, s38 offen offset:1024 sc1")
    A(f"buffer_load_dwordx4 {v(VF[0] + 4, 4)}, v106, {s(WS, 4)}, s38 offen offset:1536 sc1")
    A("s_mov_b64 exec, -1")
    for q in range(2):
        A(f"{MF} {v(S[q], 16)}, {v(KF[0], 4)}, {v(Q + 4 * q, 4)}, 0")
    for q in range(2):
        for i in range(16):
            A(f"v_sub_f32 {v(S[q] + i)}, {v(S[q] + i)}, {v(M[q])}")
        for i in range(16):
            A(f"v_exp_f32 {v(S[q] + i)}, {v(S[q] + i)}")
        for h in range(2):
            A(f"{SM} {v(O[q], 16)}, {v(VF[0] + 4 * h, 4)}, {v(S[q] + 8 * h, 8)}, {v(IDX)}")
    A("s_add_u32 s38, s38, 2048")
    A(f"s_cmp_lt_u32 s38, {WS_KV + 64 * 2048}")
    A("s_cbranch_scc1 L_fb_sum")
    A("s_nop 11")
    A("s_branch L_attn_ok")


X1 = 80


def own_vec(A, dst, vec):
    for q in range(4):
        A(f"ds_read_b128 {v(dst + 4 * q, 4)}, v6 offset:{vec * 256 + q * 32}")


def outproj(A):
    B, ACC, AR = 16, [80, 96], [8, 12, 120, 124]
    A(f"s_lshl_b32 s38, {s(sHP)}, 15")
    slice_read_addr(A, 4, 5, 2, "s38")
    A("v_xor_b32 v5, 64, v4")

    seq = [(k, t) for k in range(12) for t in range(2)] + [(k, t) for t in (1, 0) for k in range(12, 16)]

    def aread(m):
        k, t = seq[m]
        A(f"ds_read_b64_tr_b16 {v(AR[m & 3], 2)}, {v(4 + t)} offset:{k * 2048}")
        A(f"ds_read_b64_tr_b16 {v(AR[m & 3] + 2, 2)}, {v(4 + t)} offset:{k * 2048 + 1024}")

    A("v_lshrrev_b32 v6, 5, v1")
    A("v_lshlrev_b32 v6, 4, v6")
    A(f"s_lshl_b32 s38, {s(sHP)}, 7")
    A(f"s_add_u32 s38, s38, {L_OWN}")
    A("v_add_u32 v6, s38, v6")
    A("v_lshlrev_b32 v104, 1, v3")
    A(f"s_lshl_b32 s38, {s(sHP)}, 4")
    A(f"s_add_u32 s38, s38, {s(sTT)}")
    A("s_lshl_b32 s38, s38, 2")
    A("s_add_u32 s38, s38, s46")
    A(f"s_lshl_b32 s39, {s(sTT)}, 15")
    A(f"s_lshl_b32 s40, {s(sHP)}, 14")
    A("s_add_u32 s39, s39, s40")
    A(f"s_add_u32 s39, s39, {s(sGA)}")
    for i in range(4):
        aread(i)
    A.xflag("s47", 0, 7, "o")
    A.spin([f"buffer_load_dword v105, v104, {s(WS, 4)}, s38 offen sc1"], ["v_cmp_ne_u32 vcc, v7, v105"])
    A.stamp("e1")
    def oload(k):
        A(f"buffer_load_dwordx4 {v(B + 4 * k, 4)}, v2, {s(SOUT, 4)}, s39 offen offset:{(k & 3) * 1024} sc1")
        if k & 3 == 3 and k < 15:
            A("s_add_u32 s39, s39, 4096")

    NO = P("no", 8)
    for k in range(NO):
        oload(k)
    GA, SH, SC, T = 16, 32, 48, 64
    wr = []
    for m, (k, t) in enumerate(seq):
        A(f"{MF} {v(ACC[t], 16)}, {v(AR[m & 3], 4)}, {v(B + 4 * k, 4)}, {'0' if k == 0 else v(ACC[t], 16)}")
        if m & 1 == 0 and NO + (m >> 1) < 16:
            oload(NO + (m >> 1))
        if m + 4 < 32:
            aread(m + 4)
        if "wd1" in OPT:
            NR, M = P("wdrows", 16), P("wdat", 21)
            if m == M - 3:
                A(f"s_lshr_b32 s38, {s(sG)}, 3")
                A("s_lshl_b32 s38, s38, 2")
                A(f"s_add_u32 s38, s38, {s(sW)}")
            if m == M - 2:
                A(f"s_mul_i32 s38, s38, {NR * 1024}")
                A(f"s_lshl_b32 s40, {s(sJ)}, 7")
                A("s_add_u32 s38, s38, s40")
            if m == M - 1:
                A(f"s_add_u32 s38, s38, {P('wda', 2) * 0x40000}")
                A(f"v_min_u32 v7, {NR - 1}, v1")
                A("v_lshlrev_b32 v7, 10, v7")
            if m == M:
                A(f"buffer_load_dword v7, v7, {s(T2, 4)}, s38 offen")
        if m == 27:
            A(f"s_xor_b32 s38, {s(sW)}, 2")
            A("s_lshl_b32 s38, s38, 12")
            A(f"s_add_u32 s38, s38, {L_RED}")
            A("v_add_u32 v4, s38, v2")
        if m == 28:
            own_vec(A, GA, 0)
            wr = [f"ds_write_b128 v4, {v(ACC[1] + 4 * q, 4)} offset:{q * 1024}" for q in range(4)]
        if m >= 29:
            A(wr.pop(0))
    A(wr.pop(0))
    A.stamp("oproj")
    A(f"s_lshl_b32 s38, {s(sW)}, 12")
    A(f"s_add_u32 s38, s38, {L_RED}")
    A("v_add_u32 v5, s38, v2")
    for d in range(8):
        A(f"v_lshlrev_b32 {v(T + 2 * d)}, 16, {v(XR + d)}")
        A(f"v_and_b32 {v(T + 2 * d + 1)}, 0xffff0000, {v(XR + d)}")
    A("s_waitcnt lgkmcnt(0)")
    A("s_barrier")
    for q in range(4):
        A(f"ds_read_b128 {v(ACC[1] + 4 * q, 4)}, v5 offset:{q * 1024}")
    for d in range(8):
        A(f"v_pk_fma_f32 {v(T + 2 * d, 2)}, {v(X1 + 2 * d, 2)}, {v(GA + 2 * d, 2)}, {v(T + 2 * d, 2)}")
    A(f"s_lshl_b32 s38, {s(sTT)}, 15")
    A(f"s_add_u32 s38, s38, {s(sGA)}")
    A(f"s_add_u32 s38, s38, {WS_B}")
    A(f"s_lshl_b32 s39, {s(sJ)}, 10")
    A(f"s_lshl_b32 s40, {s(sHP)}, 3")
    A("s_add_u32 s39, s39, s40")
    A("s_add_u32 s39, s39, s38")
    A("s_add_u32 s40, s38, 4096")
    for d in range(8):
        A(f"v_pk_fma_f32 {v(X1 + 2 * d, 2)}, {v(ACC[1] + 2 * d, 2)}, {v(GA + 2 * d, 2)}, {v(T + 2 * d, 2)}")
        if d == 0:
            A(f"v_pk_mul_f32 v[10:11], {v(X1, 2)}, {v(X1, 2)}")
        elif d == 1:
            A(f"v_pk_add_f32 v[8:9], {v(X1, 2)}, {v(X1 + 2, 2)}")
        else:
            A(f"v_pk_add_f32 v[8:9], v[8:9], {v(X1 + 2 * d, 2)}")
        if d:
            A(f"v_pk_fma_f32 v[10:11], {v(X1 + 2 * d, 2)}, {v(X1 + 2 * d, 2)}, v[10:11]")
    A("v_add_f32 v8, v8, v9")
    A("v_add_f32 v10, v10, v11")
    A(f"v_mov_b32 v9, {s(sTAG)}")
    A("v_permlane32_swap_b32 v8, v10")
    A("v_add_f32 v8, v8, v10")
    A.xstore("buffer_store_dwordx2", "v[8:9]", "v2", "s39")
    A.stamp("stat")
    A(f"v_mov_b32 v7, {s(sTAG)}")
    own_vec(A, SH, 1)
    own_vec(A, SC, 2)
    ffn_setup(A)
    G = 96
    lds = [f"buffer_load_dwordx4 {v(G + 4 * i, 4)}, v2, {s(WS, 4)}, {'s38' if i < 4 else 's40'} offen offset:{(i & 3) * 1024} sc1"
           for i in range(8)]
    chk = []
    for i in range(8):
        g = G + 4 * i
        if i == 0:
            chk += [f"v_min_u32 v10, {v(g + 1)}, {v(g + 3)}", f"v_max_u32 v11, {v(g + 1)}, {v(g + 3)}",
                    f"v_add_f32 v12, {v(g)}, {v(g + 2)}"]
        else:
            chk += [f"v_min3_u32 v10, v10, {v(g + 1)}, {v(g + 3)}", f"v_max3_u32 v11, v11, {v(g + 1)}, {v(g + 3)}",
                    f"v_add_f32 v12, v12, {v(g)}", f"v_add_f32 v12, v12, {v(g + 2)}"]
    chk += ["v_xor_b32 v10, v7, v10", "v_xor_b32 v11, v7, v11", "v_or_b32 v10, v10, v11", "v_cmp_ne_u32 vcc, 0, v10"]
    A.spin(lds, chk)
    A.stamp("e2a")
    A(f"v_mul_f32 v12, {f2u(1 / 512)}, v12")
    A("v_mov_b32 v13, v12")
    A(f"s_lshl_b32 s38, {s(sW)}, 5")
    A("v_permlane32_swap_b32 v12, v13")
    A("v_fma_f32 v13, -v12, v12, v13")
    A("v_max_f32 v13, 0, v13")
    A(f"v_add_f32 v13, {f2u(1e-5)}, v13")
    A("v_rsq_f32 v14, v13")
    A("s_add_u32 s38, s38, s46")
    A("v_mul_f32 v15, -v12, v14")
    for hh in range(2):
        for d in range(4 * hh, 4 * hh + 4):
            A(f"v_pk_fma_f32 {v(T + 2 * d, 2)}, {v(X1 + 2 * d, 2)}, v[14:15], v[14:15] op_sel:[0,0,1] op_sel_hi:[1,0,1]")
        for d in range(4 * hh, 4 * hh + 4):
            A(f"v_pk_fma_f32 {v(T + 2 * d, 2)}, {v(T + 2 * d, 2)}, {v(SC + 2 * d, 2)}, {v(SH + 2 * d, 2)}")
        for d in range(4 * hh, 4 * hh + 4):
            A(f"v_cvt_pk_bf16_f32 {v(16 + d)}, {v(T + 2 * d)}, {v(T + 2 * d + 1)}")
        A.xstore("buffer_store_dwordx4", v(16 + 4 * hh, 4), "v2", "s49", f"offset:{1024 * hh}", "h", True)
    A(f"s_lshl_b32 s40, {s(sW)}, 13")
    A(f"s_add_u32 s39, s40, {s(sGA)}")
    A(f"s_add_u32 m0, s40, {L_H}")
    A(f"v_add_u32 v4, {L_H}, v2")
    A.xflag("s47", 128, 7, "h")
    A.spin([f"buffer_load_dword v8, v3, {s(WS, 4)}, s38 offen offset:128 sc1"], ["v_cmp_ne_u32 vcc, v7, v8"])
    A.hcopy = []
    for c in range(4):
        for i in range(4):
            A.hcopy.append(f"buffer_load_dwordx4 v2, {s(SOUT, 4)}, s39 offen offset:{i * 1024} sc1 lds")
        if c < 3:
            x = 0x1000 if c == 1 else 0x8000
            A.hcopy += [f"s_xor_b32 m0, m0, {x}", f"s_xor_b32 s39, s39, {x}"]
    for _ in range(P("nh", 14)):
        A(A.hcopy.pop(0))
    A.stamp("e2b")


ORD = [8 * (i >> 2) + (i & 3) for i in range(16)] + [8 * (i >> 2) + 4 + (i & 3) for i in range(16)]


def ffn_setup(A):
    A(f"s_lshl_b32 s55, {s(sW)}, 14")
    A(f"s_lshl_b32 s54, {s(sJ)}, 7")
    A("s_add_u32 s54, s54, s55")
    A(f"s_add_u32 s41, {s(sGA)}, {WS_B}")
    A(f"s_lshl_b32 s56, {s(sTT)}, 5")
    A(f"s_add_u32 s56, s56, {s(sW)}")
    A("s_lshl_b32 s56, s56, 10")
    A("s_add_u32 s56, s56, s41")
    A("s_xor_b32 s57, s56, 32768")
    A("s_lshl_b32 s58, s45, 10")
    A("s_add_u32 s58, s58, s41")
    A("s_add_u32 s59, s58, 32768")
    A(f"s_sub_u32 s63, s58, {WS_B}")
    A(f"s_sub_u32 s64, s59, {WS_B}")
    A("s_lshl_b32 s60, s45, 2")
    A("s_add_u32 s60, s60, s46")
    A(f"s_lshl_b32 s61, {s(sW)}, 2")
    A("s_add_u32 s61, s61, s46")


def ffn(A):
    ACC = [16, 48]
    BR = 96
    PK, vWD, vA = 8, 12, 13
    D = 16
    BORD = [(st, i) for st in list(range(16)) + [21] for i in range(2)] + [(st, i) for i in (1, 0) for st in range(16, 21)]

    def areg(ai):
        return U[0] + 4 * ORD[ai] if ai < 32 else U[1] + 4 * ORD[ai - 32]

    def breg(bi):
        return U[1] + 4 * ORD[12 + bi] if bi < 20 else U[2] + 4 * ORD[bi - 20]

    A("v_lshlrev_b32 v3, 2, v3")
    slice_voffset(A, vWD, vA)
    slice_read_addr(A, vA, vA + 1, 2, "s55")
    A(f"v_xor_b32 {v(vA + 1)}, 64, {v(vA)}")
    A("v_and_b32 v15, 31, v1")
    A("v_lshlrev_b32 v15, 2, v15")
    A("v_lshrrev_b32 v1, 5, v1")
    A("v_lshl_add_u32 v0, v1, 3, v0")
    A(f"v_add_u32 v1, 7168, {v(vWD)}")

    def flag_ld(p):
        if p == 2:
            return [f"buffer_load_dword v5, v3, {s(WS, 4)}, s61 offen offset:{256 + 128 * p} sc1"]
        return [f"buffer_load_dword v5, v15, {s(WS, 4)}, s46 offen offset:{256 + 128 * p} sc1"]

    def bread(n, t):
        return f"ds_read_b128 {v(BR + 8 * (n & 3) + 4 * t, 4)}, v4 offset:{t * 32768 + ORD[n % 32] * 1024}"

    mf = []
    for n in range(96):
        p, kk = n >> 5, n & 31
        for t in range(2):
            acc = v(ACC[p & 1] + 16 * t, 16)
            mf.append(f"{MF} {acc}, {r(U[p] + 4 * ORD[kk], 4)}, {v(BR + 8 * (n & 3) + 4 * t, 4)}, {'0' if kk == 0 else acc}")
    HEAD = 7
    seq = [(st, t) for st in range(HEAD) for t in (2, 3)] + [(st, t) for st in range(HEAD) for t in (0, 1)]
    seq += [(st, t) for st in list(range(HEAD, 16)) + [21] for t in range(4)]
    seq += [(st, t) for t in (3, 2, 1, 0) for st in range(16, 21)]
    for st, t in seq:
        acc = v(D + 16 * t, 16)
        mf.append(f"{MF} {acc}, {r(areg(2 * st + (t >> 1)), 4)}, {r(breg(2 * st + (t & 1)), 4)}, {'0' if st == 0 else acc}")
    M21 = 192 + 64

    at = {}
    F = [P("f0", 16), P("f1", 16), P("f2", 13)]
    PL = [P("p0", 16), P("p1", 10), P("p2", 9), P("p3", 26)]
    C = [P("c0", 12), P("c1", 11), P("c2", 10)]
    LAG = P("lag", 24)
    qepi, qsync, qmem, qrd = [], [], [], []
    for p in range(3):
        e0 = 64 * (p + 1) + (3 if p < 2 else 1)
        for t in range(2):
            b = ACC[p & 1] + 16 * t
            for i in range(8):
                qepi.append([e0, 1, [f"v_max_f32 {v(b + i)}, 0, {v(b + i)}"], None, 0])
            for i in range(8):
                qepi.append([e0, 1, [f"v_mul_f32 {v(b + i)}, {v(b + i)}, {v(b + 8 + i)}"], None, 0])
            for d in range(4):
                qepi.append([e0, 1, [f"v_cvt_pk_bf16_f32 {v(PK + d)}, {v(b + 2 * d)}, {v(b + 2 * d + 1)}"], None, 0])
            e = (f"chk{p - 1}", 0) if p else e0
            sf, ss, so = (OF, OS, 63 + t) if p == 1 else (WSF, WSS, 58 + t)
            qepi.append([e, 3, [f"buffer_store_dwordx4 {v(PK, 4)}, v2, {s(sf, 4)}, {s(so)} offen ; def:h2_{p}"], None, 0])
            qepi.append([e, 3, [f"buffer_store_dwordx4 {v(PK, 4)}, v2, {s(ss, 4)}, {s(so)} offen sc1 ; def:h2_{p}"],
                         f"st{p}" if t else None, 0])
    for p in range(4):
        o = 256 + 128 * p
        if p < 3:
            qsync.append([(f"st{p}", F[p]), 0, [], None, 0])
        if p & 1:
            qsync.append([(f"b{8 * p + 7}", P("fb", 11)), 0, [], None, 0])
        qsync.append([0, 3, [f"buffer_store_dword v7, off, {s(WSF, 4)}, s60 offset:{o}"], None, 0])
        qsync.append([0, 2, [f"buffer_store_dword v7, off, {s(WSS, 4)}, s60 offset:{o} sc1"], f"fl{p}", 0])
        qsync.append([(f"fl{p}", PL[p]), 2, flag_ld(p), f"pl{p}", 0])
        if p < 3:
            qsync.append([(f"pl{p}", C[p]), 4, lambda E, p=p: E.check_or_spin(flag_ld(p), ["v_cmp_ne_u32 vcc, v7, v5"]),
                          f"chk{p}", 0])
    for x in A.hcopy:
        qmem.append([0, 2, [x], None, 2] if "lds" in x else [0, 1, [x], None, 0])
    for d in range(44):
        st, hf = d >> 1, d & 1
        e = 4 if st < 8 else (f"rd{st - 8}", 8)
        if not hf:
            qmem.append([0, 1, [f"s_add_u32 m0, s55, {(st & 7) * 2048}"], None, 0])
            if st:
                qmem.append([0, 1, ["s_add_u32 s54, s54, 65536"], None, 0])
        qmem.append([e, 2, [f"buffer_load_dwordx4 {'v1' if hf else v(vWD)}, {s(T2, 4)}, s54 offen offset:{hf * 1024} lds ; def:wd{st}"],
                     f"dma{d}", 1])
        o = (st & 7) * 2048
        qrd.append([max(0, 2 * d + 2), 0, [], None, 0])
        qrd.append([(f"dma{d | 1}", LAG), 3 - hf, [f"ds_read_b64_tr_b16 {r(areg(d), 2)}, {v(vA + hf)} offset:{o} ; use:wd{st}",
                                              f"ds_read_b64_tr_b16 {r(areg(d) + 2, 2)}, {v(vA + hf)} offset:{o + 1024}"],
                    f"rd{st}" if hf else None, 0])
    pos = lambda x: (0 if x >> 3 == 1 else WS_B) + (x & 7) * 4096
    cur = [0, 0]
    for st, i in BORD:
        bi = 2 * st + i
        if st:
            qmem.append([0, 1, [f"s_add_u32 {s(56 + i)}, {s(56 + i)}, {(pos(st) - pos(cur[i])) & 0xffffffff}"], None, 0])
            cur[i] = st
        qmem.append([2 * (44 + bi) + 2, 0, [], None, 0])
        qmem.append([(f"chk{st >> 3}", 0), 2,
                     [f"buffer_load_dwordx4 {r(breg(bi), 4)}, v2, {s(SOUT if st >> 3 == 1 else WS, 4)}, {s(56 + i)} offen sc1"
                      + (f" ; def:rd_{1 + 2 * (st >> 3)}" if st < 16 else "")], f"b{bi}", 2])
    qtail = [[M21 - 12, 1, ["v_add_u32 v8, s55, v2"], None, 0]]
    for i in range(1, 4):
        qtail.append([0, 3, [f"s_xor_b32 s38, {s(sW)}, {i}", "s_lshl_b32 s38, s38, 14", f"v_add_u32 {v(8 + i)}, s38, v2"], None, 0])
    for q in range(4):
        qtail.append([0, 2, [f"ds_read_b128 {v(96 + 4 * q, 4)}, v6 offset:{3 * 256 + q * 32}"], None, 0])
    for t in (3, 2, 1):
        e = M21 + 4 + 5 * (4 - t)
        qtail.append([e - 1, 5, ["s_nop 4"], None, 0])
        qtail.append([e, 5, ["s_nop 4"], None, 0])
        for q in range(4):
            qtail.append([0, 3, [f"ds_write_b128 v8, {v(D + 16 * t + 4 * q, 4)} offset:{(t - 1) * 4096 + q * 1024}"], None, 0])
    queues = [qmem, qsync, qepi, qrd, qtail]

    A("s_barrier ; use:hs0")
    A.stamp("up0")
    for n in range(3):
        for t in range(2):
            A(bread(n, t))
    E = K()
    E.nlab = 1000
    E("L_no_unit2:")
    last_bulk = [-9, -9, -9]
    for m, x in enumerate(mf):
        if m == 64:
            A.stamp("r1")
        if m == 128:
            A.stamp("r2")
            A("s_cmp_ge_u32 s45, 22")
            A("s_cbranch_scc1 L_no_unit2")
        if m == 192:
            A("L_up_done:")
            A.stamp("up1")
        if m == M21:
            A(f"s_cmp_ge_u32 {s(sW)}, 2")
            A("s_cbranch_scc1 L_down_tail")
        if m == M21 + 4:
            A("L_down_tail:")
        if m >= 192:
            st, t = seq[m - 192]
            assert at[f"b{2 * st + (t & 1)}"] + 10 <= m, (m, st, t, at[f"b{2 * st + (t & 1)}"])
            assert t >= 2 or not qepi, (m, len(qepi), at)
        A.stamp(f"m{m}")
        A(x)
        budget = 5
        if m == 26:
            A("s_barrier ; use:hs1")
            budget -= 2
        if m + 6 < 192:
            A(bread((m >> 1) + 3, m & 1))
            budget -= 1
        if m + 1 in (128, M21):
            budget -= 2
        if M21 <= m < M21 + 4:
            continue
        first = budget
        for q in queues:
            while q:
                e, cost, ins, name, bulk = q[0]
                if isinstance(e, tuple):
                    if e[0] not in at or at[e[0]] + e[1] > m:
                        break
                elif e > m:
                    break
                if cost > budget or (bulk and (budget < first or (m - last_bulk[-2] < 3 if "chk2" in at else m - last_bulk[-1] < 2)
                                               or (bulk == 1 and m < 180 and m - last_bulk[0] < P("rate", 7)))):
                    break
                if q is qmem and 192 <= m and qepi and True:
                    break
                q.pop(0)
                budget -= cost
                for X in ([A, E] if 128 <= m < 192 else [A]):
                    if callable(ins):
                        ins(X)
                    else:
                        for y in ins:
                            X(y)
                if name:
                    at[name] = m
                if bulk:
                    last_bulk = last_bulk[1:] + [m]
    for e, cost, ins, name, bulk in qtail:
        for y in ins:
            A(y)
    assert not (qsync or qepi or qrd or qmem)
    if "v" in OPT:
        print({k: x for k, x in at.items() if k[:2] in ("st", "fl", "pl", "ch") or k in ("dma43", "rd21", "b0", "b15", "b16", "b31", "b42", "b40")}, len(qtail))
    E(f"s_mov_b32 s58, {WS_SIZE}")
    E(f"s_mov_b32 s59, {WS_SIZE}")
    E("s_branch L_up_done")
    A.stubs += [x.text for x in E.ins] + E.stubs
    A.stamp("down1")
    A("s_waitcnt lgkmcnt(0)")
    A("s_barrier")
    R = 128
    for q in range(4):
        for t in range(3):
            A(f"ds_read_b128 {v(R + 16 * t + 4 * q, 4)}, {v(9 + t)} offset:{t * 4096 + q * 1024}")
    A.check_or_spin(flag_ld(3), ["v_cmp_ne_u32 vcc, v7, v5"])
    for q in range(4):
        for d in range(2 * q, 2 * q + 2):
            A(f"v_pk_add_f32 {v(D + 2 * d, 2)}, {v(D + 2 * d, 2)}, {v(R + 2 * d, 2)}")
            A(f"v_pk_add_f32 {v(R + 16 + 2 * d, 2)}, {v(R + 16 + 2 * d, 2)}, {v(R + 32 + 2 * d, 2)}")
            A(f"v_pk_add_f32 {v(D + 2 * d, 2)}, {v(D + 2 * d, 2)}, {v(R + 16 + 2 * d, 2)}")
            A(f"v_pk_fma_f32 {v(D + 2 * d, 2)}, {v(D + 2 * d, 2)}, {v(96 + 2 * d, 2)}, {v(X1 + 2 * d, 2)}")
            A(f"v_cvt_pk_bf16_f32 {v(32 + d)}, {v(D + 2 * d)}, {v(D + 2 * d + 1)}")
        if q & 1:
            b = 32 + 2 * (q - 1)
            A(f"v_permlane32_swap_b32 {v(b)}, {v(b + 2)}")
            A(f"v_permlane32_swap_b32 {v(b + 1)}, {v(b + 3)}")
            A(f"buffer_store_dwordx4 {v(b, 4)}, v0, {s(SOUT, 4)}, s52 offen offset:{16 * (q - 1)} {'sc1' if 'osc1' in OPT else ('nt' if 'ont' in OPT else '')}")


def build():
    A = K()
    prologue(A)
    attention(A)
    early, A.stubs = A.stubs, []
    attn_epilogue(A)
    outproj(A)
    ffn(A)
    if STAMPS:
        if len(STAMPS) > 2:
            A("s_waitcnt vmcnt(0)")
        A.stamp("end")
        A("s_lshl_b32 s38, s2, 2")
        A(f"s_add_u32 s38, s38, {s(sW)}")
        A("s_lshl_b32 s38, s38, 7")
        A(f"s_add_u32 s38, s38, {WS_STAMP}")
        for i in range(len(STAMPS)):
            A(f"v_mov_b32 v4, {s(76 + 2 * i)}")
            A(f"buffer_store_dword v4, off, {s(WS, 4)}, s38 offset:{8 * i}")
    if any(o.startswith("pad=") for o in OPT):
        A("L_pad:")
        A("s_sleep 1")
        A("s_memrealtime s[96:97]")
        A("s_sub_u32 s96, s96, s98")
        A("s_cmp_lt_u32 s96, 6000")
        A("s_cbranch_scc1 L_pad")
    A("s_endpgm")
    for x in A.stubs:
        A(x)
    A("L_end:")
    A("s_endpgm")
    B = K()
    for x in early:
        B(x)
    fallback(B)
    g = [x.label for x in A.ins].index("L_gap")
    A.ins[g:g + 1] = B.ins
    return A


def add_pads(A):
    if "pad" not in OPT:
        return
    sz = ins_sizes(A)
    i0 = [x.label for x in A.ins].index("L_aligned") + 1
    pos, addr, page = [], 0, 0
    i = i0
    while i < len(A.ins):
        if addr >= page * 4096 and A.ins[i].ws:
            k, ad = i, addr
            best = i
            while ad + 4 <= page * 4096 + 64 and k < len(A.ins):
                if k > i0 and A.ins[k - 1].kind == "mfma" and A.ins[k].kind == "valu":
                    best = k
                    break
                ad += sz[k]
                k += 1
            pos.append(best)
            addr += 4
            page += 1
        addr += sz[i]
        i += 1
    n = len(pos)
    assert n >= 4
    for p in reversed(range(n)):
        tgt = f"L_page{p + 4}" if p + 4 < n else "L_warmed"
        A.ins[pos[p]:pos[p]] = [Ins(f"L_page{p}:"), Ins(f"s_cbranch_execz {tgt} ; warm")]


HEAD = """; adaLN block: multi-query attention + ReGLU feed-forward, one launch of 256 workgroups (one per CU).
; Generated by gen/fused.py (hand-written generator).
; @launch grid=(256,1,1) block=(256,1,1) lds=%d
.amdgcn_target "amdgcn-amd-amdhsa--gfx950"
""" % LDS_BYTES


def main(out, opt=""):
    OPT.clear()
    OPT.update(x for x in opt.split(",") if x)
    STAMPS.clear()
    for k, names in STAMP_SETS.items():
        if k in OPT:
            STAMPS.extend(names)
    for o in OPT:
        if o.startswith("st="):
            STAMPS.extend(o[3:].split(":"))
    A = build()
    text = ("; stamps: " + ",".join(STAMPS) + "\n" if STAMPS else "") + HEAD + kernel_text(NAME + "_kernel", A, verbose="v" in OPT, post=add_pads)
    open(out, "w").write(text)


if __name__ == "__main__":
    main(sys.argv[1], sys.argv[2] if len(sys.argv) > 2 else "")
```

```python
import struct
import sys

from asmlib import Asm, Ins, a, ins_sizes, kernel_text, r, s, v

NAME = "adaLN_cond__grouped_kv_mqa__glu_gated_reglu__prompt"
WS_NONCE = 0x0
WS_MODG = 0x1000
WS_FKV = 0x4000
WS_FRL = 0x6000
WS_FMD = 0x7000
WS_FG = 0x8000
WS_KV = 0x20000
WS_MODP = 0x40000
WS_WGU = 0x100000
WS_B = 0x400000
WS_STAMP = 0x1C00000
WS_SIZE = 0x2000000
QSCALE = 0.25 * 1.4426950408889634
HT = 32 * 1056
L_H1 = 0
L_WQ = 2 * HT
KVB = 2080
L_SP = 64 * KVB
L_MODL = L_SP
L_OWN = L_SP + 4096
L_MPART = L_SP + 5120
L_RED = L_SP + 6144
L_WO = 0
L_H = 65536
LDS_BYTES = 163840
assert L_WQ + 65536 == L_SP and L_RED + 16384 <= LDS_BYTES

MF = "v_mfma_f32_32x32x16_bf16"
MF16 = "v_mfma_f32_16x16x32_bf16"
SM = "v_smfmac_f32_32x32x32_bf16"
DPPF = "row_mask:0xf bank_mask:0xf"
SPIN_MAX = 1 << 18

WS, WSF, WSS, SX, SOUT, T1, T2, OF, OS = 8, 12, 16, 20, 24, 28, 4, 68, 72
sW, sG, sJ, sTAG, sTT, sHP = 32, 33, 34, 35, 36, 37
sGA = 62
OPT = set()
STAMPS = []
STAMP_SETS = {
    "stA": ["start", "modpub", "ln0", "ln1", "hop1", "hop1done", "kvst", "rows", "qdone", "hop2", "attn0", "attn1", "end"],
    "stC": ["start", "attn0", "kt4", "kt8", "kt12", "kt16", "kt24", "kt32", "kt40", "kt48", "kt56", "attn1", "end"],
    "stB": ["start", "attn0", "attn1", "e1", "oproj", "stat", "e2a", "e2b", "up0", "up1", "down1", "end"],
}


def P(name, default):
    for o in OPT:
        if o.startswith(name + "="):
            return int(o.split("=")[1])
    return default


def f2u(x):
    return hex(struct.unpack("<I", struct.pack("<f", x))[0])


class K(Asm):
    def __init__(self):
        super().__init__()
        self.stubs = []
        self.nlab = 0

    def lab(self, p):
        self.nlab += 1
        return f"L_{p}_{self.nlab}"

    def stamp(self, name):
        if "pad=" + name in OPT or (name == "start" and any(o.startswith("pad=") for o in OPT)):
            pj = [o for o in OPT if o.startswith("padj=")]
            if pj and name != "start":
                lo, hi = pj[0][5:].split(":")
                L = self.lab("pj")
                self("s_bfe_u32 s97, s2, 0x30003")
                self(f"s_sub_u32 s97, s97, {lo}")
                self(f"s_cmp_gt_u32 s97, {int(hi) - int(lo)}")
                self(f"s_cbranch_scc1 {L}")
                self("s_memrealtime s[98:99]")
                self(f"{L}:")
            else:
                self("s_memrealtime s[98:99]")
        if name in STAMPS:
            self(f"{'s_memtime' if 'cyc' in OPT else 's_memrealtime'} {s(76 + 2 * STAMPS.index(name), 2)}")

    def srd(self, d, src, size):
        self(f"s_mov_b32 {s(d)}, {s(src)}")
        self(f"s_mov_b32 {s(d + 1)}, {s(src + 1)}")
        self(f"s_mov_b32 {s(d + 2)}, {size}")
        self(f"s_mov_b32 {s(d + 3)}, 0x20000")

    def xstore(self, op, data, vaddr, soff, extra="", tok=None, out=False):
        t = f" ; def:{tok}" if tok else ""
        self(f"{op} {data}, {vaddr}, {s(OF if out else WSF, 4)}, {soff} offen {extra}{t}")
        self(f"{op} {data}, {vaddr}, {s(OS if out else WSS, 4)}, {soff} offen {extra} sc1{t}")

    def xflag(self, soff, off, vt, use):
        self(f"; use:{use}")
        self(f"buffer_store_dword {v(vt)}, off, {s(WSF, 4)}, {soff} offset:{off}")
        self(f"buffer_store_dword {v(vt)}, off, {s(WSS, 4)}, {soff} offset:{off} sc1")

    def spin(self, loads, check, sleep=0, work=None):
        L, E = self.lab("spin"), self.lab("spun")
        if work:
            for x in loads:
                self(x)
            work()
            for x in check:
                self(x)
            self(f"s_cbranch_vccz {E}")
        self("s_mov_b32 s3, 0")
        self(f"{L}:")
        for x in loads:
            self(x)
        for x in check:
            self(x)
        self(f"s_cbranch_vccz {E}")
        if sleep:
            self(f"s_sleep {sleep}")
        self("s_add_u32 s3, s3, 1")
        self(f"s_cmp_lt_u32 s3, {SPIN_MAX}")
        self(f"s_cbranch_scc1 {L}")
        self(f"{E}:")

    def check_or_spin(self, loads, check):
        L, E, S = self.lab("late"), self.lab("ok"), self.lab("lspin")
        for x in check:
            self(x)
        self(f"s_cbranch_vccnz {L}")
        self(f"{E}:")
        st = [f"{L}:", "s_mov_b32 s3, 0", f"{S}:"] + list(loads) + list(check) + [
            f"s_cbranch_vccz {E}", "s_add_u32 s3, s3, 1", f"s_cmp_lt_u32 s3, {SPIN_MAX}", f"s_cbranch_scc1 {S}",
            f"s_branch {E}"]
        self.stubs += st


SD = 32


def mod_loads(SD=SD):
    setup = ["v_lshrrev_b32 v89, 2, v0", "v_and_b32 v90, 3, v0", "v_lshlrev_b32 v91, 2, v89",
             "v_lshl_add_u32 v91, v90, 8, v91", "v_mul_u32_u24 v89, 12288, v89", "v_lshl_add_u32 v89, v90, 4, v89",
             "s_lshl_b32 s42, s41, 6"]
    loads = [[f"buffer_load_dword v88, v91, {s(T2, 4)}, 0 offen"]]
    for i in range(8):
        pre = [f"s_add_u32 s42, s42, {6144 if i & 1 else 127 * 6144}"] if i else []
        loads.append(pre + [f"buffer_load_dwordx4 {v(SD + 4 * i, 4)}, v89, {s(T1, 4)}, s42 offen"])
    return setup, loads


def mod_partial(A, T, reduce=True):
    c0, c1, acc, pm = T, T + 1, T + 4, T + 12
    A(f"v_lshlrev_b32 {v(c0)}, 16, v88")
    A(f"v_and_b32 {v(c1)}, 0xffff0000, v88")
    for x in (c0, c1):
        A(f"v_mul_f32 {v(x + 2)}, {f2u(-1.4426950408889634)}, {v(x)}")
    for x in (c0, c1):
        A(f"v_exp_f32 {v(x + 2)}, {v(x + 2)}")
    for e in range(8):
        A(f"v_mov_b32 {v(acc + e)}, 0")
    for x in (c0, c1):
        A(f"v_add_f32 {v(x + 2)}, 1.0, {v(x + 2)}")
    for x in (c0, c1):
        A(f"v_rcp_f32 {v(x + 2)}, {v(x + 2)}")
    A("s_mov_b32 s38, 0x05040100")
    A("s_mov_b32 s39, 0x07060302")
    for x in (c0, c1):
        A(f"v_mul_f32 {v(x)}, {v(x)}, {v(x + 2)}")
    A(f"v_cvt_pk_bf16_f32 {v(c0)}, {v(c0)}, {v(c1)}")
    for p in range(4):
        for d in range(4):
            w0, w1 = SD + 8 * p + d, SD + 4 + 8 * p + d
            A(f"v_perm_b32 {v(pm + 2 * d)}, {v(w1)}, {v(w0)}, s38")
            A(f"v_perm_b32 {v(pm + 1 + 2 * d)}, {v(w1)}, {v(w0)}, s39")
        for e in range(8):
            A(f"v_dot2c_f32_bf16_dpp {v(acc + e)}, {v(c0)}, {v(pm + e)} quad_perm:[{p},{p},{p},{p}] {DPPF}")
    if not reduce:
        return acc
    for e in range(4):
        A(f"v_permlane32_swap_b32 {v(acc + e)}, {v(acc + 4 + e)}")
    for e in range(4):
        A(f"v_add_f32 {v(acc + e)}, {v(acc + e)}, {v(acc + 4 + e)}")
    A(f"v_lshrrev_b32 {v(c0)}, 4, v1")
    for e in range(2):
        A(f"v_permlane16_swap_b32 {v(acc + e)}, {v(acc + 2 + e)}")
    for e in range(2):
        A(f"v_add_f32 {v(acc + e)}, {v(acc + e)}, {v(acc + 2 + e)}")
    A(f"v_and_b32 {v(c1)}, 3, v1")
    A(f"v_lshl_add_u32 {v(c0)}, {v(c1)}, 2, {v(c0)}")
    for e in range(2):
        A(f"v_add_f32_dpp {v(acc + e)}, {v(acc + e)}, {v(acc + e)} row_ror:8 {DPPF}")
    A(f"s_lshl_b32 s38, {s(sW)}, 7")
    A(f"v_lshl_add_u32 {v(c0)}, {v(c0)}, 3, s38")
    for e in range(2):
        A(f"v_add_f32_dpp {v(acc + e)}, {v(acc + e)}, {v(acc + e)} row_ror:4 {DPPF}")
    A(f"v_add_u32 {v(c0)}, {L_MPART}, {v(c0)}")
    A(f"ds_write_b64 {v(c0)}, {v(acc, 2)}")


def mod_publish(A, T):
    A(f"v_and_b32 {v(T)}, 15, v1")
    A(f"v_lshlrev_b32 {v(T)}, 3, {v(T)}")
    A(f"v_add_u32 {v(T + 1)}, {L_MPART}, {v(T)}")
    P = T + 2
    for i in range(4):
        A(f"ds_read_b64 {v(P + 2 * i, 2)}, {v(T + 1)} offset:{128 * i}")
    A("s_lshr_b32 s38, s41, 4")
    A("s_cmp_eq_u32 s38, 1")
    A("s_cselect_b32 s39, 1.0, 0")
    A("s_lshl_b32 s38, s41, 7")
    A(f"s_add_u32 s38, s38, {WS_MODG}")
    A(f"v_pk_add_f32 {v(P, 2)}, {v(P, 2)}, {v(P + 2, 2)}")
    A(f"v_pk_add_f32 {v(P + 4, 2)}, {v(P + 4, 2)}, {v(P + 6, 2)}")
    A(f"v_pk_add_f32 {v(P, 2)}, {v(P, 2)}, {v(P + 4, 2)}")
    A(f"v_cvt_pk_bf16_f32 {v(P)}, {v(P)}, {v(P + 1)}")
    A(f"v_mov_b32 {v(P + 3)}, {s(sTAG)}")
    A(f"v_and_b32 {v(P + 1)}, 0xffff0000, {v(P)}")
    A(f"v_lshlrev_b32 {v(P)}, 16, {v(P)}")
    A(f"v_add_f32 {v(P + 1)}, s39, {v(P + 1)}")
    A(f"v_add_f32 {v(P)}, s39, {v(P)}")
    A(f"v_cvt_pk_bf16_f32 {v(P + 2)}, {v(P)}, {v(P + 1)}")
    A("s_mov_b64 exec, 0xffff")
    A(f"buffer_store_dwordx2 {v(P + 2, 2)}, {v(T)}, {s(WS, 4)}, s38 offen sc1")
    A("s_mov_b64 exec, -1")


def mod2_loads(A):
    A("s_lshl_b32 s41, s40, 5")
    A(f"s_add_u32 s41, s41, {s(sG)}")
    A("s_and_b32 s38, s41, 15")
    A("s_lshr_b32 s39, s41, 4")
    A("s_lshl_b32 s41, s38, 2")
    A("s_add_u32 s41, s41, s39")
    A("s_lshl_b32 s41, s41, 11")
    A("s_lshl_b32 s38, s38, 2")
    A(f"s_add_u32 s38, s38, {s(sW)}")
    A("s_lshl_b32 s3, s38, 4")
    A(f"s_mul_i32 s42, s38, {8 * 6144}")
    A("s_lshl_b32 s39, s39, 10")
    A("s_add_u32 s42, s42, s39")
    A("v_and_b32 v91, 3, v1")
    A("v_lshlrev_b32 v91, 2, v91")
    A(f"buffer_load_dword v88, v91, {s(T2, 4)}, s3 offen")
    for i in range(8):
        A(f"buffer_load_dwordx4 {v(SD + 4 * i, 4)}, v2, {s(T1, 4)}, s42 offen offset:2048")
        if i < 7:
            A("s_add_u32 s42, s42, 6144")


def mod2_finish(A, T):
    acc = mod_partial(A, T, False)
    A(f"s_lshl_b32 s38, {s(sW)}, 11")
    A(f"s_add_u32 s38, s38, {L_RED}")
    A(f"v_lshl_add_u32 {v(T)}, v1, 5, s38")
    A(f"s_lshl_b32 s38, {s(sW)}, 9")
    A(f"v_lshl_add_u32 {v(T + 1)}, v1, 3, s38")
    A(f"ds_write_b128 {v(T)}, {v(acc, 4)}")
    A(f"ds_write_b128 {v(T)}, {v(acc + 4, 4)} offset:16")
    A(f"v_add_u32 {v(T)}, {L_RED}, {v(T + 1)}")
    A(f"s_add_u32 s41, s41, {WS_MODP}")
    A("s_waitcnt lgkmcnt(0)")
    A("s_barrier")
    for i in range(4):
        A(f"ds_read_b64 {v(acc + 2 * i, 2)}, {v(T)} offset:{2048 * i}")
    A(f"v_pk_add_f32 {v(acc, 2)}, {v(acc, 2)}, {v(acc + 2, 2)}")
    A(f"v_pk_add_f32 {v(acc + 4, 2)}, {v(acc + 4, 2)}, {v(acc + 6, 2)}")
    A(f"v_pk_add_f32 v[84:85], {v(acc, 2)}, {v(acc + 4, 2)}")
    A(f"v_mov_b32 v86, {v(T + 1)}")


def relayout_setup(A):
    A(f"s_sub_u32 s38, {s(sJ)}, 5")
    A("s_lshl_b32 s38, s38, 5")
    A(f"s_add_u32 s38, s38, {s(sG)}")
    A("s_lshl_b32 s38, s38, 2")
    A(f"s_add_u32 s38, s38, {s(sW)}")
    A("s_cmp_lt_u32 s38, 352")
    A(f"s_cselect_b32 s40, {512 * 2752}, 0")
    A.srd(T1, 56, "s40")
    A.srd(T2, 58, "s40")
    A("s_lshr_b32 s3, s38, 5")
    A("s_and_b32 s38, s38, 31")
    A(f"s_mul_i32 s41, s38, {16 * 2752}")
    A("s_lshl_b32 s39, s3, 8")
    A("s_add_u32 s41, s41, s39")
    A("s_lshl_b32 s42, s3, 18")
    A("s_lshl_b32 s38, s38, 10")
    A("s_add_u32 s42, s42, s38")
    A(f"s_add_u32 s42, s42, {WS_WGU}")


def relayout_loads(A):
    A("v_lshrrev_b32 v89, 4, v1")
    A("v_and_b32 v90, 15, v1")
    A("v_mul_u32_u24 v89, 2752, v89")
    A("v_lshl_add_u32 v89, v90, 4, v89")
    for q in range(8):
        A(f"buffer_load_dwordx4 {v(SD + 4 * q, 4)}, v89, {s(T2 if q & 1 else T1, 4)}, s41 offen")
        if q & 1 and q < 7:
            A(f"s_add_u32 s41, s41, {4 * 2752}")


def relayout_finish(A, T):
    A(f"s_mul_i32 s39, {s(sW)}, 9216")
    A(f"v_lshrrev_b32 {v(T)}, 4, v1")
    A(f"v_mul_u32_u24 {v(T)}, 576, {v(T)}")
    A(f"v_and_b32 {v(T + 1)}, 15, v1")
    A(f"v_lshlrev_b32 {v(T + 1)}, 4, {v(T + 1)}")
    A(f"v_add3_u32 {v(T)}, {v(T)}, {v(T + 1)}, s39")
    for q in range(8):
        A(f"ds_write_b128 {v(T)}, {v(SD + 4 * q, 4)} offset:{(q >> 1) * 4 * 576 + (q & 1) * 288}")
    A(f"v_lshl_add_u32 {v(T)}, v11, 2, v9")
    A(f"v_mul_u32_u24 {v(T)}, 576, {v(T)}")
    A(f"v_bfe_u32 {v(T + 1)}, v1, 4, 1")
    A(f"v_mul_u32_u24 {v(T + 1)}, 288, {v(T + 1)}")
    A(f"v_add3_u32 {v(T)}, {v(T)}, {v(T + 1)}, s39")
    A(f"v_add_u32 {v(T)}, {v(T)}, v8")
    A("s_waitcnt lgkmcnt(0)")
    for f in range(8):
        A(f"ds_read_b64_tr_b16 {v(SD + 4 * f, 2)}, {v(T)} offset:{32 * f}")
        A(f"ds_read_b64_tr_b16 {v(SD + 2 + 4 * f, 2)}, {v(T)} offset:{32 * f + 8 * 576}")


def relayout_stores(A):
    for f in range(8):
        A(f"buffer_store_dwordx4 {v(SD + 4 * f, 4)}, v2, {s(WS, 4)}, s42 offen sc1 ; def:rl")
        if f < 7:
            A("s_add_u32 s42, s42, 32768")


def slice_voffset(A, d, t):
    A(f"v_lshrrev_b32 {v(d)}, 3, v1")
    A(f"v_lshrrev_b32 {v(t)}, 2, v1")
    A(f"v_and_b32 {v(t)}, 4, {v(t)}")
    A(f"v_xor_b32 {v(t)}, {v(t)}, v1")
    A(f"v_and_b32 {v(t)}, 7, {v(t)}")
    A(f"v_lshlrev_b32 {v(t)}, 4, {v(t)}")
    A(f"v_lshl_add_u32 {v(d)}, {v(d)}, 10, {v(t)}")


def slice_read_addr(A, d, t, hshift, base):
    A(f"v_lshrrev_b32 {v(d)}, 5, v1")
    A(f"v_bfe_u32 {v(t)}, v1, 2, 2")
    A(f"v_lshl_add_u32 {v(d)}, {v(d)}, {hshift}, {v(t)}")
    A(f"v_lshrrev_b32 {v(t)}, 1, {v(t)}")
    A(f"v_xor_b32 {v(t)}, {s(sHP)}, {v(t)}")
    A(f"v_lshl_add_u32 {v(d)}, {v(d)}, 1, {v(t)}")
    A(f"v_bfe_u32 {v(t)}, v1, 4, 1")
    A(f"v_lshl_add_u32 {v(d)}, {v(d)}, 1, {v(t)}")
    A(f"v_and_b32 {v(t)}, 3, v1")
    A(f"v_lshl_add_u32 {v(d)}, {v(d)}, 2, {v(t)}")
    A(f"v_lshlrev_b32 {v(d)}, 3, {v(d)}")
    A(f"v_add_u32 {v(d)}, {base}, {v(d)}")


def column_id(A, d):
    A(f"s_cmp_eq_u32 {s(sJ)}, 3")
    A(f"s_cselect_b32 {s(d)}, 5, {s(sJ)}")
    A(f"s_cmp_eq_u32 {s(sJ)}, 5")
    A(f"s_cselect_b32 {s(d)}, 3, {s(d)}")


def prologue(A):
    X, N = 64, 128
    XA = 192
    A("s_cmp_ge_u32 s2, 256")
    A("s_cbranch_scc1 L_end")
    A.stamp("start")
    if P("probe", -1) >= 0:
        A(f"s_load_dwordx2 s[40:41], s[0:1], {8 * P('probe', 0)}")
        A("v_lshrrev_b32 v4, 4, v0")
        A("s_lshl_b32 s3, s2, 11")
        A(f"s_add_u32 s3, s3, {P('probeoff', 0)}")
        A("v_lshl_add_u32 v4, v4, 7, s3")
        A("s_waitcnt lgkmcnt(0)")
        A("s_memrealtime s[94:95]")
        A("global_load_dword v5, v4, s[40:41]")
        A("s_waitcnt vmcnt(0)")
        A("s_memrealtime s[96:97]")
        A("s_waitcnt lgkmcnt(0)")
        A("s_sub_u32 s96, s96, s94")
        A("s_lshl_b32 s96, s96, 4")
        A("s_add_u32 s98, s98, s96")
        A.stamp("probe")
    A("s_load_dwordx16 s[44:59], s[0:1], 0")
    A("s_load_dwordx8 s[60:67], s[0:1], 64")
    A(f"s_load_dwordx2 {s(WS, 2)}, s[0:1], 104")
    A("v_lshrrev_b32 v3, 6, v0")
    A("v_and_b32 v1, 63, v0")
    A(f"v_readfirstlane_b32 {s(sW)}, v3")
    A("v_lshlrev_b32 v2, 4, v1")
    A(f"s_lshr_b32 {s(sJ)}, s2, 3")
    A(f"s_and_b32 {s(sJ)}, {s(sJ)}, 7")
    A(f"s_lshr_b32 {s(sG)}, s2, 6")
    A(f"s_sub_u32 s3, {s(sJ)}, 3")
    A("s_cmp_gt_u32 s3, 1")
    A("s_cbranch_scc1 L_nocode")
    A("s_getpc_b64 s[38:39]")
    A("L_pc:")
    A("s_lshl_b32 s3, s3, 2")
    A(f"s_add_u32 s3, s3, {s(sG)}")
    A("s_mul_i32 s3, s3, 6144")
    A("v_mul_u32_u24 v4, 24, v0")
    A("v_add_u32 v4, s3, v4")
    A("v_min_u32 v4, L_end-L_pc, v4")
    A("global_load_dword v5, v4, s[38:39]")
    A("L_nocode:")
    A(f"s_lshl_b32 {s(sG)}, {s(sG)}, 3")
    A("s_and_b32 s3, s2, 7")
    A(f"s_add_u32 {s(sG)}, {s(sG)}, s3")
    A(f"s_and_b32 {s(sTT)}, {s(sW)}, 1")
    A(f"s_lshr_b32 {s(sHP)}, {s(sW)}, 1")
    A(f"s_mov_b32 {s(WS + 2)}, {WS_SIZE}")
    A(f"s_mov_b32 {s(WS + 3)}, 0x20000")
    A("s_bfe_u32 s38, s2, 0x10007")
    A("s_lshl_b32 s39, s38, 2")
    A("s_xor_b32 s3, s3, s39")
    A("s_lshl_b32 s38, s38, 3")
    A("s_add_u32 s3, s3, s38")
    A("s_lshl_b32 s3, s3, 1")
    A("s_bfe_u32 s38, s2, 0x10006")
    A("s_add_u32 s41, s3, s38")
    msetup, mloads = mod_loads()
    for x in msetup:
        A(x)
    A(f"s_and_b32 s38, {s(sJ)}, 1")
    A("s_lshl_b32 s38, s38, 15")
    A(f"s_lshl_b32 s43, {s(sG)}, 16")
    A(f"s_lshl_b32 s40, {s(sW)}, 13")
    A("s_add_u32 s43, s43, s40")
    A("s_add_u32 s43, s43, s38")
    nonce = f"buffer_load_dword v7, off, {s(WS, 4)}, 0 offset:{WS_NONCE} sc1"

    def x_loads():
        for i in range(16):
            A(f"buffer_load_dwordx4 {v(XA + 4 * i, 4)}, v2, {s(SX, 4)}, s43 offen offset:{(i & 3) * 1024}")
            if i in (3, 11):
                A("s_add_u32 s43, s43, 4096")
            if i == 7:
                A("s_xor_b32 s43, s43, 0x9000")

    def get_tag():
        A(f"v_readfirstlane_b32 {s(sTAG)}, v7")
        A(f"s_mul_i32 {s(sTAG)}, {s(sTAG)}, 1664525")
        A(f"s_add_u32 {s(sTAG)}, {s(sTAG)}, 1013904223")

    A.srd(T1, 64, 512 * 6144)
    A.stamp("karg")
    A.srd(T2, 62, 1024)
    A.srd(SX, 44, 2048 * 1024)
    A(f"s_cmp_lg_u32 {s(sJ)}, 2")
    A("s_cbranch_scc1 L_not_crit")
    if "xearly" in OPT:
        x_loads()
    for g in mloads:
        for x in g:
            A(x)
    A(nonce)
    A.stamp("modiss")
    if "modarr" in STAMPS:
        A("s_waitcnt vmcnt(9)")
        A.stamp("carr")
        A("s_waitcnt vmcnt(8)")
        A.stamp("mod1st")
        A("s_waitcnt vmcnt(1)")
        A.stamp("modarr")
        A("s_waitcnt vmcnt(0)")
        A.stamp("nonce")
    mod_partial(A, 8)
    get_tag()
    A("s_waitcnt lgkmcnt(0)")
    A("s_barrier")
    A(f"s_cmp_lg_u32 {s(sW)}, 0")
    A("s_cbranch_scc1 L_crit_done")
    mod_publish(A, 8)
    A("L_crit_done:")
    if "xearly" not in OPT:
        A("s_barrier")
    A.stamp("modpub")
    if "xearly" not in OPT:
        x_loads()
    A("s_branch L_ln")
    A("L_not_crit:")
    if "notw" not in OPT:
        if "tw34" in OPT:
            A(f"s_sub_u32 s38, {s(sJ)}, 3")
            A("s_cmp_gt_u32 s38, 1")
            A("s_cbranch_scc1 L_notw")
            A("s_lshl_b32 s38, s38, 5")
            A(f"s_add_u32 s38, s38, {s(sG)}")
            A("s_lshl_b32 s38, s38, 2")
            A(f"s_add_u32 s38, s38, {s(sW)}")
            A("s_mul_i32 s38, s38, 12288")
            A("v_bfe_u32 v3, v1, 4, 1")
            A("v_mul_u32_u24 v3, 6144, v3")
            A("v_and_b32 v4, 15, v1")
            A("v_lshl_add_u32 v4, v4, 7, v3")
        else:
            if P("twr", 3) == 0:
                A(f"s_cmp_gt_u32 {s(sJ)}, 2")
                A(f"s_subb_u32 s38, {s(sJ)}, 0")
            else:
                A(f"s_sub_u32 s38, {s(sJ)}, {P('twr', 3)}")
            A("s_cmp_gt_u32 s38, 3")
            A("s_cbranch_scc1 L_notw")
            A("s_lshl_b32 s38, s38, 5")
            A(f"s_add_u32 s38, s38, {s(sG)}")
            A("s_lshl_b32 s38, s38, 2")
            A(f"s_add_u32 s38, s38, {s(sW)}")
            A("s_mul_i32 s38, s38, 6144")
            A("v_and_b32 v4, 15, v1")
            A("v_lshlrev_b32 v4, 7, v4")
        A(f"buffer_load_dword v10, v4, {s(T1, 4)}, s38 offen")
        A("L_notw:")
    x_loads()
    A(nonce)
    A(f"s_cmp_gt_u32 {s(sJ)}, 2")
    A("s_cbranch_scc1 L_role_rl")
    A(f"s_cmp_eq_u32 {s(sHP)}, 0")
    A(f"s_cselect_b32 {s(WSF)}, s48, s50")
    A(f"s_cselect_b32 {s(WSF + 1)}, s49, s51")
    A(f"s_mov_b32 {s(WSF + 2)}, 16384")
    A(f"s_mov_b32 {s(WSF + 3)}, 0x20000")
    A(f"s_lshl_b32 m0, {s(sW)}, 13")
    A(f"s_lshl_b32 s38, {s(sTT)}, 13")
    for i in range(8):
        A(f"buffer_load_dwordx4 v2, {s(WSF, 4)}, s38 offen offset:{(i & 3) * 1024} lds ; def:kvw")
        if i == 3:
            A("s_add_u32 m0, m0, 4096")
            A("s_add_u32 s38, s38, 4096")
    A("s_branch L_ln")
    A("L_role_rl:")
    A(f"s_cmp_le_u32 {s(sJ)}, 4")
    A("s_cbranch_scc1 L_ln")
    relayout_setup(A)
    if P("rl", 1) == 1:
        relayout_loads(A)

    A("L_ln:")
    A.stamp("ln0")
    A.srd(SOUT, 66, 2048 * 1024)
    A.srd(WSS, WS, WS_SIZE)
    A.srd(WSF, 46, 512 * 1024)
    slice_voffset(A, 6, 4)
    A(f"s_lshl_b32 s38, {s(sW)}, 17")
    column_id(A, 39)
    A("s_lshl_b32 s39, s39, 7")
    A("s_add_u32 s38, s38, s39")
    A(f"s_lshl_b32 s39, {s(sW)}, 14")
    A(f"s_add_u32 m0, s39, {L_WQ}")
    wq = []
    for i in range(16):
        wq.append([f"buffer_load_dwordx4 v6, {s(WSF, 4)}, s38 offen lds ; def:wq"]
                  + (["s_add_u32 m0, m0, 1024", "s_add_u32 s38, s38, 8192"] if i < 15 else []))
    if P("rl", 1) == 2:
        while wq:
            for y in wq.pop(0):
                A(y)
        A(f"s_cmp_le_u32 {s(sJ)}, 4")
        A("s_cbranch_scc1 L_rl2")
        relayout_loads(A)
        A("L_rl2:")
    cnt = [0]

    def V(x, every=20):
        A(x)
        cnt[0] += 1
        if cnt[0] >= every and wq:
            cnt[0] = 0
            for y in wq.pop(0):
                A(y)

    S1, S2 = 96, 112
    A("v_mov_b32 v3, 0x3f803f80")
    for i in range(16):
        E = A if i < 15 else V
        E(f"v_dot2_f32_bf16 {v(S1 + i)}, {v(XA + 4 * i)}, v3, 0")
        E(f"v_dot2_f32_bf16 {v(S2 + i)}, {v(XA + 4 * i)}, {v(XA + 4 * i)}, 0")
        if i:
            for d in range(1, 4):
                E(f"v_dot2c_f32_bf16 {v(S1 + i - 1)}, {v(XA + 4 * i - 4 + d)}, v3")
                E(f"v_dot2c_f32_bf16 {v(S2 + i - 1)}, {v(XA + 4 * i - 4 + d)}, {v(XA + 4 * i - 4 + d)}")
            if i <= 8:
                for d in range(4):
                    E(f"v_lshlrev_b32 {v(N + 8 * (i - 1) + 2 * d)}, 16, {v(XA + 4 * (i - 1) + d)}")
                    E(f"v_and_b32 {v(N + 8 * (i - 1) + 2 * d + 1)}, 0xffff0000, {v(XA + 4 * (i - 1) + d)}")
    if P("rl", 1) == 3:
        A(f"s_cmp_le_u32 {s(sJ)}, 4")
        A("s_cbranch_scc1 L_rl3")
        relayout_loads(A)
        A("L_rl3:")
    cnt[0] = 100
    for d in range(1, 4):
        V(f"v_dot2c_f32_bf16 {v(S1 + 15)}, {v(XA + 60 + d)}, v3")
        V(f"v_dot2c_f32_bf16 {v(S2 + 15)}, {v(XA + 60 + d)}, {v(XA + 60 + d)}")
    EV = 14
    for op, n in (("v_permlane32_swap_b32", 8), ("v_permlane16_swap_b32", 4)):
        for b in (S1, S2):
            for i in range(n):
                V(f"{op} {v(b + i)}, {v(b + i + n)}", EV)
        for b in (S1, S2):
            for i in range(n):
                V(f"v_add_f32 {v(b + i)}, {v(b + i)}, {v(b + i + n)}", EV)
    for b in (S1, S2):
        for i in range(2):
            V(f"v_add_f32_dpp {v(b + i)}, {v(b + i)}, {v(b + i)} row_ror:8 row_mask:0xf bank_mask:0x3", EV)
    for b in (S1, S2):
        for i in range(2):
            V(f"v_add_f32_dpp {v(b + i)}, {v(b + i + 2)}, {v(b + i + 2)} row_ror:8 row_mask:0xf bank_mask:0xc", EV)
    unp = []
    for i in range(8, 16):
        for d in range(4):
            src, dst = XA + 4 * i + d, N + 8 * i + 2 * d
            assert dst + 1 <= src
            unp.append(f"v_lshlrev_b32 {v(dst)}, 16, {v(src)}")
            unp.append(f"v_and_b32 {v(dst + 1)}, 0xffff0000, {v(src)}")

    def fill(n):
        for _ in range(n):
            V(unp.pop(0), EV)

    for b in (S1, S2):
        A(f"v_add_f32_dpp {v(b)}, {v(b)}, {v(b)} row_half_mirror row_mask:0xf bank_mask:0x5")
    fill(1)
    for b in (S1, S2):
        A(f"v_add_f32_dpp {v(b)}, {v(b + 1)}, {v(b + 1)} row_half_mirror row_mask:0xf bank_mask:0xa")
    for qp in ("[1,0,3,2]", "[2,3,0,1]"):
        fill(1)
        for b in (S1, S2):
            A(f"v_add_f32_dpp {v(b)}, {v(b)}, {v(b)} quad_perm:{qp} {DPPF}")
    A(f"v_mul_f32 v3, {f2u(1 / 512)}, {v(S1)}")
    A(f"v_mul_f32 v4, {f2u(1 / 512)}, {v(S2)}")
    A("v_fma_f32 v4, -v3, v3, v4")
    A("v_max_f32 v4, 0, v4")
    A(f"v_add_f32 v4, {f2u(1e-5)}, v4")
    A("v_rsq_f32 v4, v4")
    fill(1)
    A("v_mul_f32 v3, -v3, v4")
    for i in range(16):
        V(f"v_readlane_b32 {s(44 + 2 * i)}, v4, {4 * i}", EV)
        V(f"v_readlane_b32 {s(45 + 2 * i)}, v3, {4 * i}", EV)
    fill(len(unp))
    for i in range(16):
        for d in range(4):
            n = v(N + 8 * i + 2 * d, 2)
            V(f"v_pk_fma_f32 {n}, {n}, {s(44 + 2 * i, 2)}, {s(44 + 2 * i, 2)} op_sel:[0,0,1] op_sel_hi:[1,0,1]", EV)
    while wq:
        for y in wq.pop(0):
            A(y)
    A.stamp("ln1")
    A.srd(WSF, WS, 0)
    A("v_and_b32 v8, 3, v1")
    A("v_lshlrev_b32 v8, 3, v8")
    A("v_bfe_u32 v9, v1, 2, 2")
    A("v_lshrrev_b32 v11, 5, v1")
    A(f"s_cmp_eq_u32 {s(sJ)}, 2")
    A("s_cbranch_scc1 L_hop1")
    get_tag()
    A(f"s_cmp_lt_u32 {s(sJ)}, 2")
    A("s_cbranch_scc1 L_kvw")
    A("s_branch L_hop1")
    A("L_kvw:")
    A("v_lshrrev_b32 v3, 4, v1")
    A("v_lshl_add_u32 v3, v3, 3, v9")
    A("v_lshl_add_u32 v3, v3, 5, v8")
    A(f"s_lshl_b32 s38, {s(sHP)}, 14")
    A("v_add_u32 v3, s38, v3")
    A("s_barrier ; use:kvw")
    for ks in range(16):
        A(f"ds_read_b64_tr_b16 {a(128 + 4 * ks, 2)}, v3 offset:{ks * 1024}")
        A(f"ds_read_b64_tr_b16 {a(130 + 4 * ks, 2)}, v3 offset:{ks * 1024 + 128}")
    A("L_hop1:")
    A.stamp("hop1")
    A("v_lshlrev_b32 v3, 4, v0")
    A(f"s_mov_b32 s38, {WS_MODG}")
    A("v_lshlrev_b32 v4, 3, v0")
    A(f"v_add_u32 v4, {L_MODL}, v4")
    A(f"s_and_b32 s39, {s(sJ)}, 1")
    A(f"s_mul_i32 s44, s39, {HT}")
    A("s_xor_b32 s39, s39, 1")
    A(f"s_mul_i32 s39, s39, {HT}")
    A(f"s_lshl_b32 s45, {s(sW)}, 7")
    A("v_mul_u32_u24 v5, 528, v1")
    A("v_add_u32 v5, s45, v5")
    A("v_add_u32 v6, s39, v5")
    A("v_add_u32 v5, s44, v5")
    A(f"v_add_u32 v7, {L_MODL}, v2")

    def transpose():
        A(f"s_cmp_le_u32 {s(sJ)}, 4")
        A("s_cbranch_scc1 L_no_rl")
        relayout_finish(A, 64)
        A("L_no_rl:")

    A.spin([f"buffer_load_dwordx4 v[12:15], v3, {s(WS, 4)}, s38 offen sc1"],
           [f"v_xor_b32 v13, {s(sTAG)}, v13", f"v_xor_b32 v15, {s(sTAG)}, v15", "v_or_b32 v15, v13, v15",
            "v_cmp_ne_u32 vcc, 0, v15"], work=transpose)
    A("v_mov_b32 v13, v14")
    A("v_xor_b32 v16, 0x80008000, v12")
    A("v_xor_b32 v17, 0x80008000, v14")
    A("ds_write_b64 v4, v[12:13]")
    A("ds_write_b64 v4, v[16:17] offset:2048")
    A("s_waitcnt lgkmcnt(0)")
    A("s_barrier")
    A.stamp("hop1done")
    SH, SC = 16, 24
    A("ds_read_b128 v[12:15], v7")
    A("ds_read_b128 v[64:67], v7 offset:1024")
    A(f"s_sub_u32 s40, {s(sJ)}, 3")
    A("s_cbranch_scc1 L_nomod2")
    A("s_cmp_gt_u32 s40, 1")
    A("s_cbranch_scc1 L_rl_st")
    mod2_loads(A)
    A("s_branch L_nomod2")
    A("L_rl_st:")
    relayout_stores(A)
    A("L_nomod2:")
    for d in range(4):
        A(f"v_lshlrev_b32 {v(SH + 2 * d)}, 16, {v(12 + d)}")
        A(f"v_and_b32 {v(SH + 2 * d + 1)}, 0xffff0000, {v(12 + d)}")
    for d in range(4):
        A(f"v_lshlrev_b32 {v(SC + 2 * d)}, 16, {v(64 + d)}")
        A(f"v_and_b32 {v(SC + 2 * d + 1)}, 0xffff0000, {v(64 + d)}")

    def modrow(i):
        t = 64 + 4 * (i & 3)
        for d in range(4):
            n = v(N + 8 * i + 2 * d, 2)
            A(f"v_pk_fma_f32 {n}, {n}, {v(SC + 2 * d, 2)}, {v(SH + 2 * d, 2)}")
        for d in range(4):
            A(f"v_cvt_pk_bf16_f32 {v(t + d)}, {v(N + 8 * i + 2 * d)}, {v(N + 8 * i + 2 * d + 1)}")
        A(f"ds_write_b128 {v(5 + (i >> 3))}, {v(t, 4)} offset:{16 * (i & 7)}")

    for i in range(8):
        modrow(i)
    A(f"s_cmp_ge_u32 {s(sJ)}, 2")
    A("s_cbranch_scc1 L_rows2")
    KA = "v[80:83]"
    A("v_lshrrev_b32 v3, 4, v1")
    A("v_and_b32 v4, 15, v1")
    A("v_mul_u32_u24 v12, 528, v3")
    A("v_lshl_add_u32 v12, v4, 4, v12")
    A(f"s_lshl_b32 s38, {s(sTT)}, 8")
    A("s_add_u32 s38, s38, s44")
    A("v_add_u32 v12, s38, v12")
    A(f"s_lshl_b32 s38, {s(sG)}, 1")
    A(f"s_add_u32 s38, s38, {s(sJ)}")
    A("s_lshl_b32 s38, s38, 11")
    A(f"s_add_u32 s38, s38, {WS_KV}")
    A(f"s_cmp_lg_u32 {s(sHP)}, 0")
    A("s_cbranch_scc1 L_vjob")
    A("v_lshlrev_b32 v13, 4, v3")
    A(f"v_add_u32 v13, {L_MODL + 2048}, v13")
    for ks in range(16):
        A(f"ds_read_b128 {a(64 + 4 * ks, 4)}, v13 offset:{ks * 64}")
        if ks == 11:
            A("s_waitcnt lgkmcnt(12)")
            A("s_barrier")
    A("v_and_b32 v3, 1, v3")
    A("v_lshl_add_u32 v4, v3, 5, v4")
    A(f"s_lshl_b32 s39, {s(sTT)}, 4")
    A("v_add_lshl_u32 v4, v4, s39, 4")
    for ks in range(16):
        A(f"{MF16} {KA}, {a(128 + 4 * ks, 4)}, {a(64 + 4 * ks, 4)}, {'0' if ks == 0 else KA}")
        A(f"ds_read_b128 {a(4 * ks, 4)}, v12 offset:{ks * 2112}")
    for ks in range(16):
        A(f"{MF16} {KA}, {a(128 + 4 * ks, 4)}, {a(4 * ks, 4)}, {KA}")
    A("v_cvt_pk_bf16_f32 v84, v80, v81")
    A("v_cvt_pk_bf16_f32 v86, v80, v81")
    A("v_cvt_pk_bf16_f32 v85, v82, v83")
    A("v_cvt_pk_bf16_f32 v87, v82, v83")
    A("v_permlane32_swap_b32 v84, v86")
    A("v_permlane32_swap_b32 v85, v87")
    A("s_mov_b32 exec_hi, 0")
    A(f"buffer_store_dwordx4 v[84:87], v4, {s(WS, 4)}, s38 offen sc1 ; def:pub1")
    A("s_mov_b32 exec_hi, -1")
    A("s_branch L_rows2")
    A("L_vjob:")
    A("s_waitcnt lgkmcnt(0)")
    A("s_barrier")
    for ks in range(16):
        A(f"ds_read_b128 {a(4 * ks, 4)}, v12 offset:{ks * 2112}")
    A("v_lshrrev_b32 v3, 1, v3")
    A("v_lshl_add_u32 v4, v3, 4, v4")
    A(f"s_lshl_b32 s39, {s(sTT)}, 5")
    A("v_add_lshl_u32 v4, v4, s39, 4")
    for ks in range(16):
        A(f"{MF16} {KA}, {a(4 * ks, 4)}, {a(128 + 4 * ks, 4)}, {'0' if ks == 0 else KA}")
    A("v_cvt_pk_bf16_f32 v84, v80, v81")
    A("v_cvt_pk_bf16_f32 v86, v80, v81")
    A("v_cvt_pk_bf16_f32 v85, v82, v83")
    A("v_cvt_pk_bf16_f32 v87, v82, v83")
    A("v_permlane16_swap_b32 v84, v86")
    A("v_permlane16_swap_b32 v85, v87")
    A("s_mov_b32 exec_lo, 0xffff")
    A("s_mov_b32 exec_hi, 0xffff")
    A(f"buffer_store_dwordx4 v[84:87], v4, {s(WS, 4)}, s38 offen offset:1024 sc1 ; def:pub1")
    A("s_mov_b64 exec, -1")
    A("L_rows2:")
    A.stamp("kvst")
    for i in range(8, 16):
        modrow(i)
    A("v_mul_u32_u24 v3, 528, v11")
    A("v_and_b32 v4, 31, v1")
    A("v_lshl_add_u32 v3, v4, 4, v3")
    A(f"s_mul_i32 s38, {s(sTT)}, {HT}")
    A("v_add_u32 v3, s38, v3")
    slice_read_addr(A, 4, 9, 3, L_WQ)
    A(f"s_cmp_ge_u32 {s(sJ)}, 2")
    A("s_cbranch_scc1 L_nokvflag")
    A(f"v_mov_b32 v8, {s(sTAG)}")
    A(f"s_lshl_b32 s38, {s(sG)}, 1")
    A(f"s_add_u32 s38, s38, {s(sJ)}")
    A("s_lshl_b32 s38, s38, 7")
    A(f"s_add_u32 s38, s38, {WS_FKV}")
    A(f"s_cmp_eq_u32 {s(sW)}, 0")
    A(f"s_cselect_b32 {s(WSF + 2)}, {s(WS + 2)}, 0")
    A("s_waitcnt lgkmcnt(0) ; use:pub1")
    A("s_barrier")
    A(f"buffer_store_dword v8, off, {s(WSF, 4)}, s38 sc1")
    A("s_branch L_qgemm")
    A("L_nokvflag:")
    A("s_waitcnt lgkmcnt(0) ; use:wq")
    A("s_barrier")
    A("L_qgemm:")
    A.stamp("rows")
    NB, D = 8, 4
    for ks in range(32 + D):
        k = ks - D
        if k >= 0:
            A(f"{MF} v[16:31], {a(32 + 4 * (k % NB), 4)}, {a(4 * (k % NB), 4)}, {'0' if k == 0 else 'v[16:31]'}")
        if ks < 32:
            A(f"ds_read_b128 {a(4 * (ks % NB), 4)}, v3 offset:{ks * 1056}")
            A(f"ds_read_b64_tr_b16 {a(32 + 4 * (ks % NB), 2)}, v4 offset:{ks * 2048}")
            A(f"ds_read_b64_tr_b16 {a(34 + 4 * (ks % NB), 2)}, v4 offset:{ks * 2048 + 512}")
    column_id(A, 3)
    A(f"s_mov_b32 {s(sJ)}, s3")
    A("s_cmp_gt_u32 s40, 1")
    A("s_cbranch_scc1 L_qdone")
    mod2_finish(A, 64)
    A("s_branch L_qdone2")
    A("L_qdone:")
    A(f"s_mov_b32 s41, {WS_SIZE}")
    A("v_mov_b32 v86, 0")
    A("s_barrier")
    A("L_qdone2:")
    A.stamp("qdone")


Q, S, O, KF, VF, XR = 8, [16, 32], [48, 64], [80, 84], [88, 96], 112
vK, vV0, vV1, IDX = 4, 5, 6, 7
U = [128, 256, 384]


def attention(A):
    NPRE = 4
    A("v_and_b32 v3, 15, v1")
    A("v_lshlrev_b32 v105, 9, v3")
    A(f"s_lshl_b32 s48, {s(sW)}, 7")
    A(f"s_add_u32 s48, s48, {WS_FKV}")
    kv_ld = [f"buffer_load_dword v104, v105, {s(WS, 4)}, s48 offen sc1"]
    A(kv_ld[0])
    A("v_and_b32 v0, 31, v1")
    A("v_lshlrev_b32 v0, 10, v0")
    A("v_lshrrev_b32 v106, 5, v1")
    A("v_lshl_add_u32 v0, v106, 3, v0")
    A(f"s_lshl_b32 s52, {s(sG)}, 16")
    A(f"s_lshl_b32 s3, {s(sTT)}, 15")
    A("s_add_u32 s52, s52, s3")
    A(f"s_lshl_b32 s3, {s(sJ)}, 7")
    A("s_add_u32 s52, s52, s3")
    A(f"s_lshl_b32 s3, {s(sHP)}, 6")
    A("s_add_u32 s52, s52, s3")
    A(f"s_load_dwordx2 {s(T1, 2)}, s[0:1], 32")
    A(f"s_load_dwordx2 {s(T2, 2)}, s[0:1], 64")
    A(f"s_mov_b32 {s(T1 + 2)}, {512 * 1024}")
    A(f"s_mov_b32 {s(T2 + 2)}, {1376 * 1024}")
    A(f"s_mov_b32 s46, {f2u(QSCALE)}")
    A(f"s_lshl_b32 s44, {s(sW)}, 11")
    A(f"s_add_u32 s44, s44, {WS_KV}")
    A(f"s_mul_i32 m0, {s(sW)}, {KVB}")
    for d in range(8):
        A(f"v_pk_mul_f32 {v(16 + 2 * d, 2)}, {v(16 + 2 * d, 2)}, s[46:47] op_sel_hi:[1,0]")
    for d in range(8):
        A(f"v_cvt_pk_bf16_f32 {v(Q + d)}, {v(16 + 2 * d)}, {v(17 + 2 * d)}")
    A(f"v_mul_u32_u24 v3, {KVB}, v1")
    for d in range(4):
        A(f"v_mov_b32 {v(120 + d)}, 0x3f803f80")
        A(f"v_mov_b32 {v(124 + d)}, 0")
    A("ds_write_b128 v3, v[120:123] offset:2048")
    A("ds_write_b128 v3, v[124:127] offset:2064")
    A(f"v_mov_b32 {v(vK)}, v2")
    A("v_lshrrev_b32 v106, 5, v1")
    A("v_lshlrev_b32 v106, 4, v106")
    A("v_and_b32 v107, 15, v1")
    A("v_add_lshl_u32 v106, v106, v107, 4")
    A(f"v_add_u32 {v(vV0)}, 1024, v106")
    A(f"v_add_u32 {v(vV1)}, 1536, v106")
    A("v_and_b32 v108, 27, v1")
    A("v_cmp_eq_u32 vcc, 16, v108")
    A("v_mov_b32 v106, 2048")
    A("v_mov_b32 v107, 2064")
    A(f"v_cndmask_b32 {v(vV0)}, {v(vV0)}, v106, vcc")
    A(f"v_cndmask_b32 {v(vV1)}, {v(vV1)}, v106, vcc")
    A("v_cmp_lt_u32 vcc, 16, v108")
    A(f"v_mov_b32 {v(IDX)}, 0xdddddddd")
    A("s_nop 0")
    A(f"v_cndmask_b32 {v(vV0)}, {v(vV0)}, v107, vcc")
    A(f"v_cndmask_b32 {v(vV1)}, {v(vV1)}, v107, vcc")
    for i in range(32):
        A(f"v_mov_b32 {v(O[0] + i)}, 0")
    A.check_or_spin(kv_ld, [f"v_cmp_ne_u32 vcc, {s(sTAG)}, v104"])
    A.stamp("hop2")

    def kv_dma(n):
        tok = "kv0" if n < 2 else ("kv1" if n <= 4 else "kv2")
        pre = [] if n == 0 else [f"s_add_u32 m0, m0, {4 * KVB}", "s_add_u32 s44, s44, 8192"]
        return [(pre, f"buffer_load_dwordx4 v2, {s(WS, 4)}, s44 offen sc1 lds ; def:{tok}"),
                ([], f"buffer_load_dwordx4 v2, {s(WS, 4)}, s44 offen offset:1024 sc1 lds ; def:{tok}")]

    for n in range(NPRE):
        for pre, x in kv_dma(n):
            for y in pre:
                A(y)
            A(x)
    A(f"buffer_store_dwordx2 v[84:85], v86, {s(WS, 4)}, s41 offen sc1")
    A(f"s_lshl_b32 s45, {s(sW)}, 3")
    A(f"s_add_u32 s45, s45, {s(sJ)}")
    A("s_lshl_b32 s47, s45, 15")
    A(f"s_add_u32 s47, s47, {WS_WGU + 64 * 32768}")
    A("s_cmp_lt_u32 s45, 22")
    A(f"s_cselect_b32 s47, s47, {WS_SIZE}")
    A("s_lshl_b32 s46, s45, 15")
    A(f"s_add_u32 s46, s46, {WS_WGU}")
    A(f"s_lshl_b32 s48, {s(sJ)}, 7")
    A(f"s_lshl_b32 s49, {s(sW)}, 17")
    A("s_add_u32 s48, s48, s49")
    A(f"s_lshl_b32 s49, {s(sW)}, 14")
    slice_voffset(A, 124, 125)
    A("v_add_u32 v126, 7168, v124")
    A(f"s_mov_b32 s50, {WS_FRL}")
    A(f"s_lshl_b32 s51, {s(sG)}, 5")
    A(f"s_add_u32 s51, s51, {WS_FRL}")
    A(f"s_lshl_b32 s53, {s(sJ)}, 2")
    A("s_add_u32 s53, s53, s51")
    A(f"s_lshl_b32 s54, {s(sW)}, 3")
    A(f"s_add_u32 s54, s54, {s(sJ)}")
    A("s_lshl_b32 s54, s54, 8")
    A(f"s_add_u32 s38, s54, {WS_MODP}")
    A("s_lshl_b32 s54, s40, 5")
    A(f"s_add_u32 s54, s54, {s(sG)}")
    A("s_lshl_b32 s54, s54, 2")
    A(f"s_add_u32 s54, s54, {WS_FMD}")
    A("s_cmp_le_u32 s40, 1")
    A(f"s_cselect_b32 s54, s54, {WS_SIZE}")
    for i in range(1, 4):
        A(f"s_add_u32 {s(38 + i)}, s38, {8192 * i}")
    A(f"s_cmp_eq_u32 {s(sW)}, 2")
    A("s_cselect_b32 s42, 1.0, 0")
    A(f"s_lshl_b32 s43, {s(sW)}, 8")
    A(f"s_add_u32 s43, s43, {L_OWN}")
    A("s_getreg_b32 s55, hwreg(HW_REG_XCC_ID, 0, 3)")
    A(f"s_add_u32 s56, s55, {s(sTAG)}")
    A(f"s_cmp_eq_u32 {s(sW)}, 0")
    A(f"s_cselect_b32 {s(WSF + 2)}, {s(WS + 2)}, 0")
    A("v_and_b32 v3, 7, v1")
    A("v_lshlrev_b32 v3, 2, v3")
    A(f"s_lshl_b32 {s(sGA)}, {s(sG)}, 16")
    A("s_lshl_b32 s57, s45, 11")
    A(f"s_add_u32 s57, s57, {s(sGA)}")
    A.srd(OF, SOUT, 0)
    A.srd(OS, SOUT, 0)
    A("v_lshrrev_b32 v110, 4, v1")
    A("v_and_b32 v111, 15, v1")
    A("v_lshlrev_b32 v111, 4, v111")
    A("v_lshl_add_u32 v123, v110, 2, v111")
    A("v_add_u32 v123, s43, v123")
    A("v_lshl_add_u32 v110, v110, 15, v111")
    A("v_mov_b32 v109, s56")
    A("v_lshlrev_b32 v111, 3, v111")
    if "pad" in OPT:
        A("s_mov_b64 exec, 0")
        for w in range(3):
            A(f"s_cmp_eq_u32 {s(sW)}, {w}")
            A(f"s_cbranch_scc1 L_page{w} ; warm")
        A("s_branch L_page3 ; warm")
        A("L_warmed:")
        A("s_mov_b64 exec, -1")
    A("s_branch L_aligned")
    A("L_gap:")
    A(".p2align 12")
    A("L_aligned:")
    A("s_waitcnt lgkmcnt(0) ; use:kv0")
    A("s_barrier")
    A.stamp("attn0")
    A(f"ds_read_b128 {v(KF[0], 4)}, {v(vK)}")
    A(f"ds_read_b128 {v(VF[0], 4)}, {v(vV0)}")
    A(f"ds_read_b128 {v(VF[0] + 4, 4)}, {v(vV1)}")
    A(f"ds_read_b128 {v(KF[1], 4)}, {v(vK)} offset:{KVB}")
    A(f"buffer_store_dword v109, off, {s(WSF, 4)}, s53 sc1")
    for q in range(2):
        A(f"{MF} {v(S[q], 16)}, {v(KF[0], 4)}, {v(Q + 4 * q, 4)}, 0")
    A(f"v_mov_b32 v109, {s(sTAG)}")
    A("v_lshlrev_b32 v122, 2, v1")
    A(f"s_mov_b32 s56, {WS_FMD}")

    KT_CHECK = 11
    grp = {}
    for n in range(NPRE, 16):
        (pre, x), (_, y) = kv_dma(n)
        grp[n - NPRE] = [pre, [x, y]]
    frl_ld = [f"buffer_load_dwordx4 v[104:107], v2, {s(WS, 4)}, s50 offen sc1",
              f"buffer_load_dword v108, v3, {s(WS, 4)}, s51 offen sc1"]
    for q in range(4):
        grp[2 + (q >> 1)][1].append(f"buffer_load_dwordx2 {v(XR + 2 * q, 2)}, v0, {s(SX, 4)}, s52 offen offset:{16 * q}")
    grp[KT_CHECK - 3][1] += frl_ld
    OM = U[0] + 112
    KT_OWN = 19
    fmd_ld = [f"buffer_load_dword v121, v122, {s(WS, 4)}, s56 offen sc1"]
    own_ld = [f"buffer_load_dwordx4 {v(OM + 4 * i, 4)}, v110, {s(WS, 4)}, {s(38 + i)} offen sc1" for i in range(4)]
    own = [[f"v_pk_add_f32 {v(OM + d, 2)}, {v(OM + d, 2)}, {v(OM + d + 4, 2)}" for d in (0, 2, 8, 10)]
           + [f"v_pk_add_f32 {v(OM + d, 2)}, {v(OM + d, 2)}, {v(OM + d + 8, 2)}" for d in (0, 2)],
           [f"v_permlane32_swap_b32 {v(OM + e)}, {v(OM + e + 2)}" for e in range(2)]
           + [f"v_pk_add_f32 {v(OM, 2)}, {v(OM, 2)}, {v(OM + 2, 2)}"],
           [f"v_permlane16_swap_b32 {v(OM)}, {v(OM + 1)}", f"v_add_f32 {v(OM)}, {v(OM)}, {v(OM + 1)}",
            f"v_cvt_pk_bf16_f32 {v(OM)}, {v(OM)}, {v(OM)}", f"v_and_b32 {v(OM)}, 0xffff0000, {v(OM)}",
            f"v_add_f32 {v(OM)}, s42, {v(OM)}", f"v_cvt_pk_bf16_f32 {v(OM)}, {v(OM)}, {v(OM)}",
            f"v_and_b32 {v(OM)}, 0xffff0000, {v(OM)}", f"ds_write_b32 v123, {v(OM)}"]]

    def unit_loads(p, first, n):
        sreg = 47 if p == 2 else 46
        pre = []
        if first & 3 == 0 and not (first == 0 and p != 1):
            pre = [f"s_add_u32 {s(sreg)}, {s(sreg)}, {4096 if first else (32 * 32768 - 7 * 4096)}"]
        return [pre, [f"buffer_load_dwordx4 {r(U[p] + 4 * ks, 4)}, v2, {s(WS, 4)}, {s(sreg)} offen offset:{(ks & 3) * 1024} sc1"
                      for ks in range(first, first + n)]]

    later = [unit_loads(p, 4 * i, 4) for p in range(2) for i in range(8)]
    g = later.pop(7)
    later[7][0] = [f"s_add_u32 s46, s46, {32 * 32768 - 6 * 4096}"]
    g[0] = [f"s_sub_u32 s46, s46, {32 * 32768}"]
    later.append(g)
    for i in range(8):
        pre, x = unit_loads(2, 2 * i, 2)
        pre = pre + ([f"s_add_u32 m0, s49, {L_WO}"] if i == 0 else ["s_add_u32 m0, m0, 2048", "s_add_u32 s48, s48, 16384"])
        later.append([pre, x + [f"buffer_load_dwordx4 v124, {s(T1, 4)}, s48 offen lds ; def:wo",
                                f"buffer_load_dwordx4 v126, {s(T1, 4)}, s48 offen offset:1024 lds ; def:wo"]])
    later += [unit_loads(2, 16 + 4 * i, 4) for i in range(4)]
    if "notouch" not in OPT:
        later[14][1].append("global_load_dword v109, v111, s[58:59]")
        later[24][1].append("global_load_dword v125, v111, s[60:61]")
        later[25][1].append("global_load_dword v110, v111, s[60:61] offset:2048")
        later.append([[f"s_add_u32 s63, s57, {WS_B}", f"s_lshl_b32 s65, {s(sG)}, 10", f"s_add_u32 s65, s65, {WS_FG}"],
                      [f"buffer_load_dword v104, v111, {s(WS, 4)}, s65 offen sc1",
                       f"buffer_load_dword v105, v111, {s(SOUT, 4)}, s57 offen sc1",
                       f"buffer_load_dword v106, v111, {s(WS, 4)}, s63 offen sc1"]])
        NA = P("wda", 2)
        if NA:
            A(f"s_lshr_b32 s3, {s(sG)}, 3")
            A("s_lshl_b32 s3, s3, 2")
            A(f"s_add_u32 s3, s3, {s(sW)}")
            A("s_lshl_b32 s3, s3, 14")
            A(f"s_lshl_b32 s64, {s(sJ)}, 7")
            A("s_add_u32 s64, s64, s3")
            A("v_lshlrev_b32 v127, 3, v111")
            A("s_add_u32 s66, s64, 0x40000")
            grp[P("wdk", 57)] = [[], [f"buffer_load_dword {v(120 + i)}, v127, {s(T2, 4)}, {s(64 + 2 * i)} offen" for i in range(2)]]
            A("s_lshl_b32 s67, s2, 2")
            A(f"s_add_u32 s67, s67, {s(sW)}")
            A("s_lshl_b32 s67, s67, 11")
            later[-1][1].insert(0, f"buffer_load_dword v107, v111, {s(T2, 4)}, s67 offen")
        A("s_getpc_b64 s[60:61]")
        A("L_pc2:")
        A(f"s_lshl_b32 s3, {s(sW)}, 11")
        A("s_add_u32 s3, s3, L_post-L_pc2-8192")
        A("s_add_u32 s58, s60, s3")
        A("s_addc_u32 s59, s61, 0")
        A(f"s_lshl_b32 s3, {s(sW)}, 12")
        A("s_min_u32 s3, s3, L_end-L_post-4096")
        A("s_add_u32 s3, s3, L_post-L_pc2")
        A("s_add_u32 s60, s60, s3")
        A("s_addc_u32 s61, s61, 0")
    SPAN = P("span", 35)
    for i, g in enumerate(later):
        kt = 12 + (i * SPAN) // (len(later) - 1)
        assert kt not in grp and (kt >= 32 or not any("def:wo" in x for x in g[1]))
        grp[kt] = g
    grp.setdefault(KT_OWN - 4, [[], []])[1].append(fmd_ld[0])
    free = [k for k in range(KT_OWN, 30) if k not in grp][0]
    grp[free] = [[], own_ld]
    KT_SUM = free + 5
    assert KT_SUM < [k for k, g in grp.items() if any(v(OM, 4) + ", v2" in x for x in g[1])][0]

    base = [0]

    def off(kt):
        o = kt * KVB - base[0]
        assert 0 <= o < 65536 - 2096
        return o

    def salu(kt, n):
        while n and kt in grp and grp[kt][0]:
            A(grp[kt][0].pop(0))
            n -= 1

    rest = []
    for kt in range(64):
        kb = kt & 1
        A.stamp(f"kt{kt}")
        if kt in (28, 56):
            base[0] += 28 * KVB
            for x in (vK, vV0, vV1):
                A(f"v_add_u32 {v(x)}, {28 * KVB}, {v(x)}")
        for q in range(2):
            p = 1 - q
            pv = kb if q == 1 else 1 - kb
            pk = 1 - kb if q == 1 else kb
            first = kt == 0 and q == 0
            for i in range(16):
                A(f"v_exp_f32 {v(S[q] + i)}, {v(S[q] + i)}")
                if i == 1:
                    if not first:
                        A(f"{SM} {v(O[p], 16)}, {v(VF[pv] + 4, 4)}, {v(S[p] + 8, 8)}, {v(IDX)}")
                    if q == 0:
                        A("s_waitcnt lgkmcnt(0)")
                        if kt == P("b1", 4):
                            A("s_barrier ; use:kv1")
                            A(f"buffer_store_dword v109, off, {s(WSF, 4)}, s54 sc1")
                        elif kt == 18:
                            A("s_barrier ; use:kv2")
                        elif kt == 32:
                            A("s_barrier")
                        elif kt == KT_OWN:
                            A.check_or_spin(fmd_ld, ["v_cmp_ne_u32 vcc, v109, v121"])
                        elif kt == 58:
                            A("s_barrier ; use:wo")
                        elif kt == KT_CHECK:
                            chk = []
                            for d in range(5):
                                chk.append(f"v_subrev_u32 {v(104 + d)}, {s(sTAG)}, {v(104 + d)}")
                            chk += ["v_or3_b32 v104, v104, v105, v106", "v_or3_b32 v104, v104, v107, v108",
                                    "v_cmp_lt_u32 vcc, 7, v104"]
                            A.check_or_spin(frl_ld, chk)
                            A("v_cmp_ne_u32 vcc, s55, v108")
                            A("s_cmp_eq_u32 s2, 0")
                            A(f"s_cselect_b32 {s(WSF + 2)}, 4, 0")
                            A(f"buffer_store_dword v109, off, {s(WSF, 4)}, 0 offset:{WS_NONCE} sc1")
                            if "slow" in OPT:
                                A("s_cmp_eq_u32 s2, 999")
                            else:
                                A("s_cmp_eq_u64 vcc, 0")
                            A(f"s_cselect_b32 {s(WSF + 2)}, {s(WS + 2)}, 0")
                            A(f"s_cselect_b32 {s(WSS + 2)}, 0, {s(WS + 2)}")
                            A(f"s_cselect_b32 {s(OF + 2)}, {s(SOUT + 2)}, 0")
                            A(f"s_cselect_b32 {s(OS + 2)}, 0, {s(SOUT + 2)}")
                        for x in rest:
                            A(x)
                        rest = []
                    elif kt in grp:
                        assert not grp[kt][0]
                        rest = grp.pop(kt)[1]
                        nsplit = P("split", 2)
                        for _ in range((len(rest) + nsplit - 1) // nsplit if len(rest) > P("mins", 1) else len(rest)):
                            A(rest.pop(0))
                if i == 4:
                    if not first and not (q == 1 and kt == 63):
                        A(f"{MF} {v(S[p], 16)}, {v(KF[pk], 4)}, {v(Q + 4 * p, 4)}, 0")
                    if q == 0 and kt < 63:
                        salu(kt, 1)
                        A(f"ds_read_b128 {v(VF[1 - kb], 4)}, {v(vV0)} offset:{off(kt + 1)}")
                    if q == 1 and kt < 62:
                        A(f"ds_read_b128 {v(KF[kb], 4)}, {v(vK)} offset:{off(kt + 2)}")
                if kt == KT_SUM and q == 0 and i in (10, 12, 14):
                    for x in own.pop(0):
                        A(x)
                if i == 9:
                    A(f"{SM} {v(O[q], 16)}, {v(VF[kb], 4)}, {v(S[q], 8)}, {v(IDX)}")
                    if q == 0:
                        salu(kt, 2)
                        if kt < 63:
                            A(f"ds_read_b128 {v(VF[1 - kb] + 4, 4)}, {v(vV1)} offset:{off(kt + 1)}")
                    elif P("split", 2) == 3:
                        for _ in range((len(rest) + 1) // 2):
                            A(rest.pop(0))
    assert not grp
    A(f"s_lshl_b32 s46, {s(sG)}, 10")
    A(f"s_lshl_b32 s47, {s(sJ)}, 2")
    A(f"{SM} {v(O[1], 16)}, {v(VF[1] + 4, 4)}, {v(S[1] + 8, 8)}, {v(IDX)}")
    A.stamp("attn1")


def attn_epilogue(A):
    A("L_post:")
    A(f"s_add_u32 s46, s46, {WS_FG}")
    A(f"s_add_u32 s47, s47, {s(sW)}")
    A("s_lshl_b32 s47, s47, 2")
    A("s_add_u32 s47, s47, s46")
    A(f"s_lshl_b32 s48, {s(sTT)}, 5")
    A(f"s_lshl_b32 s49, {s(sJ)}, 2")
    A("s_add_u32 s48, s48, s49")
    A(f"s_lshl_b32 s49, {s(sHP)}, 1")
    A("s_add_u32 s48, s48, s49")
    A("s_lshl_b32 s48, s48, 10")
    A(f"s_add_u32 s49, s48, {s(sGA)}")
    A("s_mov_b32 s40, 0")
    A("L_attn_ok:")
    for q in range(2):
        A(f"v_rcp_f32 {v(O[q] + 10)}, {v(O[q] + 8)}")
        if q == 0:
            A(f"s_mov_b32 s50, {f2u(2.0 ** 120)}")
        else:
            A(f"s_mov_b32 s51, {f2u(2.0 ** -90)}")
        for d in range(4):
            o = v(O[q] + 2 * d, 2)
            A(f"v_pk_mul_f32 {o}, {o}, {v(O[q] + 10, 2)} op_sel_hi:[1,0]")
        for d in range(4):
            A(f"v_cvt_pk_bf16_f32 {v(120 + 4 * q + d)}, {v(O[q] + 2 * d)}, {v(O[q] + 2 * d + 1)}")
        A.xstore("buffer_store_dwordx4", v(120 + 4 * q, 4), "v2", "s49", f"offset:{1024 * q}", "o", True)
    for q in range(2):
        t = 104 + q
        A(f"v_add_f32 {v(t)}, abs({v(O[q])}), {v(O[q] + 8)}")
        for i in range(1, 8):
            A(f"v_add_f32 {v(t)}, abs({v(O[q] + i)}), {v(t)}")
    A("v_add_f32 v104, v104, v105")
    A(f"v_min_f32 v105, {v(O[0] + 8)}, {v(O[1] + 8)}")
    A("v_cmp_nge_f32 vcc, s50, v104")
    A("v_cmp_nle_f32 s[38:39], s51, v105")
    A("s_or_b64 vcc, vcc, s[38:39]")
    A("s_cbranch_vccnz L_fallback")
    A("L_attn_done:")
    A(f"v_mov_b32 v7, {s(sTAG)}")


def fallback(A):
    A("L_fallback:")
    A("s_cmp_lg_u32 s40, 0")
    A("s_cbranch_scc1 L_attn_done")
    A("s_mov_b32 s40, 1")
    M = [104, 105]
    for q in range(2):
        A(f"v_mov_b32 {v(M[q])}, 0xff800000")
    A(f"s_mov_b32 s38, {WS_KV}")
    A("L_fb_max:")
    A(f"buffer_load_dwordx4 {v(KF[0], 4)}, v2, {s(WS, 4)}, s38 offen sc1")
    for q in range(2):
        A(f"{MF} {v(S[q], 16)}, {v(KF[0], 4)}, {v(Q + 4 * q, 4)}, 0")
    for q in range(2):
        for i in range(0, 16, 2):
            A(f"v_max3_f32 {v(M[q])}, {v(M[q])}, {v(S[q] + i)}, {v(S[q] + i + 1)}")
    A("s_add_u32 s38, s38, 2048")
    A(f"s_cmp_lt_u32 s38, {WS_KV + 64 * 2048}")
    A("s_cbranch_scc1 L_fb_max")
    for q in range(2):
        A(f"v_mov_b32 v106, {v(M[q])}")
        A(f"v_permlane32_swap_b32 v106, {v(M[q])}")
        A(f"v_max_f32 {v(M[q])}, {v(M[q])}, v106")
    for i in range(32):
        A(f"v_mov_b32 {v(O[0] + i)}, 0")
    for i in range(8):
        A(f"v_mov_b32 {v(VF[0] + i)}, 0x3f803f80")
    A("v_lshrrev_b32 v106, 5, v1")
    A("v_lshlrev_b32 v106, 4, v106")
    A("v_and_b32 v107, 15, v1")
    A("v_add_lshl_u32 v106, v106, v107, 4")
    A(f"s_mov_b32 s38, {WS_KV}")
    A("L_fb_sum:")
    A(f"buffer_load_dwordx4 {v(KF[0], 4)}, v2, {s(WS, 4)}, s38 offen sc1")
    A("s_mov_b32 exec_lo, 0xffff")
    A("s_mov_b32 exec_hi, 0xffff")
    A(f"buffer_load_dwordx4 {v(VF[0], 4)}, v106, {s(WS, 4)}, s38 offen offset:1024 sc1")
    A(f"buffer_load_dwordx4 {v(VF[0] + 4, 4)}, v106, {s(WS, 4)}, s38 offen offset:1536 sc1")
    A("s_mov_b64 exec, -1")
    for q in range(2):
        A(f"{MF} {v(S[q], 16)}, {v(KF[0], 4)}, {v(Q + 4 * q, 4)}, 0")
    for q in range(2):
        for i in range(16):
            A(f"v_sub_f32 {v(S[q] + i)}, {v(S[q] + i)}, {v(M[q])}")
        for i in range(16):
            A(f"v_exp_f32 {v(S[q] + i)}, {v(S[q] + i)}")
        for h in range(2):
            A(f"{SM} {v(O[q], 16)}, {v(VF[0] + 4 * h, 4)}, {v(S[q] + 8 * h, 8)}, {v(IDX)}")
    A("s_add_u32 s38, s38, 2048")
    A(f"s_cmp_lt_u32 s38, {WS_KV + 64 * 2048}")
    A("s_cbranch_scc1 L_fb_sum")
    A("s_nop 11")
    A("s_branch L_attn_ok")


X1 = 80


def own_vec(A, dst, vec):
    for q in range(4):
        A(f"ds_read_b128 {v(dst + 4 * q, 4)}, v6 offset:{vec * 256 + q * 32}")


def outproj(A):
    B, ACC, AR = 16, [80, 96], [8, 12, 120, 124]
    A(f"s_lshl_b32 s38, {s(sHP)}, 15")
    slice_read_addr(A, 4, 5, 2, "s38")
    A("v_xor_b32 v5, 64, v4")

    seq = [(k, t) for k in range(12) for t in range(2)] + [(k, t) for t in (1, 0) for k in range(12, 16)]

    def aread(m):
        k, t = seq[m]
        A(f"ds_read_b64_tr_b16 {v(AR[m & 3], 2)}, {v(4 + t)} offset:{k * 2048}")
        A(f"ds_read_b64_tr_b16 {v(AR[m & 3] + 2, 2)}, {v(4 + t)} offset:{k * 2048 + 1024}")

    A("v_lshrrev_b32 v6, 5, v1")
    A("v_lshlrev_b32 v6, 4, v6")
    A(f"s_lshl_b32 s38, {s(sHP)}, 7")
    A(f"s_add_u32 s38, s38, {L_OWN}")
    A("v_add_u32 v6, s38, v6")
    A("v_lshlrev_b32 v104, 1, v3")
    A(f"s_lshl_b32 s38, {s(sHP)}, 4")
    A(f"s_add_u32 s38, s38, {s(sTT)}")
    A("s_lshl_b32 s38, s38, 2")
    A("s_add_u32 s38, s38, s46")
    A(f"s_lshl_b32 s39, {s(sTT)}, 15")
    A(f"s_lshl_b32 s40, {s(sHP)}, 14")
    A("s_add_u32 s39, s39, s40")
    A(f"s_add_u32 s39, s39, {s(sGA)}")
    for i in range(4):
        aread(i)
    A.xflag("s47", 0, 7, "o")
    A.spin([f"buffer_load_dword v105, v104, {s(WS, 4)}, s38 offen sc1"], ["v_cmp_ne_u32 vcc, v7, v105"])
    A.stamp("e1")
    def oload(k):
        A(f"buffer_load_dwordx4 {v(B + 4 * k, 4)}, v2, {s(SOUT, 4)}, s39 offen offset:{(k & 3) * 1024} sc1")
        if k & 3 == 3 and k < 15:
            A("s_add_u32 s39, s39, 4096")

    NO = P("no", 8)
    for k in range(NO):
        oload(k)
    GA, SH, SC, T = 16, 32, 48, 64
    wr = []
    for m, (k, t) in enumerate(seq):
        A(f"{MF} {v(ACC[t], 16)}, {v(AR[m & 3], 4)}, {v(B + 4 * k, 4)}, {'0' if k == 0 else v(ACC[t], 16)}")
        if m & 1 == 0 and NO + (m >> 1) < 16:
            oload(NO + (m >> 1))
        if m + 4 < 32:
            aread(m + 4)
        if "wd1" in OPT:
            NR, M = P("wdrows", 16), P("wdat", 21)
            if m == M - 3:
                A(f"s_lshr_b32 s38, {s(sG)}, 3")
                A("s_lshl_b32 s38, s38, 2")
                A(f"s_add_u32 s38, s38, {s(sW)}")
            if m == M - 2:
                A(f"s_mul_i32 s38, s38, {NR * 1024}")
                A(f"s_lshl_b32 s40, {s(sJ)}, 7")
                A("s_add_u32 s38, s38, s40")
            if m == M - 1:
                A(f"s_add_u32 s38, s38, {P('wda', 2) * 0x40000}")
                A(f"v_min_u32 v7, {NR - 1}, v1")
                A("v_lshlrev_b32 v7, 10, v7")
            if m == M:
                A(f"buffer_load_dword v7, v7, {s(T2, 4)}, s38 offen")
        if m == 27:
            A(f"s_xor_b32 s38, {s(sW)}, 2")
            A("s_lshl_b32 s38, s38, 12")
            A(f"s_add_u32 s38, s38, {L_RED}")
            A("v_add_u32 v4, s38, v2")
        if m == 28:
            own_vec(A, GA, 0)
            wr = [f"ds_write_b128 v4, {v(ACC[1] + 4 * q, 4)} offset:{q * 1024}" for q in range(4)]
        if m >= 29:
            A(wr.pop(0))
    A(wr.pop(0))
    A.stamp("oproj")
    A(f"s_lshl_b32 s38, {s(sW)}, 12")
    A(f"s_add_u32 s38, s38, {L_RED}")
    A("v_add_u32 v5, s38, v2")
    for d in range(8):
        A(f"v_lshlrev_b32 {v(T + 2 * d)}, 16, {v(XR + d)}")
        A(f"v_and_b32 {v(T + 2 * d + 1)}, 0xffff0000, {v(XR + d)}")
    A("s_waitcnt lgkmcnt(0)")
    A("s_barrier")
    for q in range(4):
        A(f"ds_read_b128 {v(ACC[1] + 4 * q, 4)}, v5 offset:{q * 1024}")
    for d in range(8):
        A(f"v_pk_fma_f32 {v(T + 2 * d, 2)}, {v(X1 + 2 * d, 2)}, {v(GA + 2 * d, 2)}, {v(T + 2 * d, 2)}")
    A(f"s_lshl_b32 s38, {s(sTT)}, 15")
    A(f"s_add_u32 s38, s38, {s(sGA)}")
    A(f"s_add_u32 s38, s38, {WS_B}")
    A(f"s_lshl_b32 s39, {s(sJ)}, 10")
    A(f"s_lshl_b32 s40, {s(sHP)}, 3")
    A("s_add_u32 s39, s39, s40")
    A("s_add_u32 s39, s39, s38")
    A("s_add_u32 s40, s38, 4096")
    for d in range(8):
        A(f"v_pk_fma_f32 {v(X1 + 2 * d, 2)}, {v(ACC[1] + 2 * d, 2)}, {v(GA + 2 * d, 2)}, {v(T + 2 * d, 2)}")
        if d == 0:
            A(f"v_pk_mul_f32 v[10:11], {v(X1, 2)}, {v(X1, 2)}")
        elif d == 1:
            A(f"v_pk_add_f32 v[8:9], {v(X1, 2)}, {v(X1 + 2, 2)}")
        else:
            A(f"v_pk_add_f32 v[8:9], v[8:9], {v(X1 + 2 * d, 2)}")
        if d:
            A(f"v_pk_fma_f32 v[10:11], {v(X1 + 2 * d, 2)}, {v(X1 + 2 * d, 2)}, v[10:11]")
    A("v_add_f32 v8, v8, v9")
    A("v_add_f32 v10, v10, v11")
    A(f"v_mov_b32 v9, {s(sTAG)}")
    A("v_permlane32_swap_b32 v8, v10")
    A("v_add_f32 v8, v8, v10")
    A.xstore("buffer_store_dwordx2", "v[8:9]", "v2", "s39")
    A.stamp("stat")
    A(f"v_mov_b32 v7, {s(sTAG)}")
    own_vec(A, SH, 1)
    own_vec(A, SC, 2)
    ffn_setup(A)
    G = 96
    lds = [f"buffer_load_dwordx4 {v(G + 4 * i, 4)}, v2, {s(WS, 4)}, {'s38' if i < 4 else 's40'} offen offset:{(i & 3) * 1024} sc1"
           for i in range(8)]
    chk = []
    for i in range(8):
        g = G + 4 * i
        if i == 0:
            chk += [f"v_min_u32 v10, {v(g + 1)}, {v(g + 3)}", f"v_max_u32 v11, {v(g + 1)}, {v(g + 3)}",
                    f"v_add_f32 v12, {v(g)}, {v(g + 2)}"]
        else:
            chk += [f"v_min3_u32 v10, v10, {v(g + 1)}, {v(g + 3)}", f"v_max3_u32 v11, v11, {v(g + 1)}, {v(g + 3)}",
                    f"v_add_f32 v12, v12, {v(g)}", f"v_add_f32 v12, v12, {v(g + 2)}"]
    chk += ["v_xor_b32 v10, v7, v10", "v_xor_b32 v11, v7, v11", "v_or_b32 v10, v10, v11", "v_cmp_ne_u32 vcc, 0, v10"]
    A.spin(lds, chk)
    A.stamp("e2a")
    A(f"v_mul_f32 v12, {f2u(1 / 512)}, v12")
    A("v_mov_b32 v13, v12")
    A(f"s_lshl_b32 s38, {s(sW)}, 5")
    A("v_permlane32_swap_b32 v12, v13")
    A("v_fma_f32 v13, -v12, v12, v13")
    A("v_max_f32 v13, 0, v13")
    A(f"v_add_f32 v13, {f2u(1e-5)}, v13")
    A("v_rsq_f32 v14, v13")
    A("s_add_u32 s38, s38, s46")
    A("v_mul_f32 v15, -v12, v14")
    for hh in range(2):
        for d in range(4 * hh, 4 * hh + 4):
            A(f"v_pk_fma_f32 {v(T + 2 * d, 2)}, {v(X1 + 2 * d, 2)}, v[14:15], v[14:15] op_sel:[0,0,1] op_sel_hi:[1,0,1]")
        for d in range(4 * hh, 4 * hh + 4):
            A(f"v_pk_fma_f32 {v(T + 2 * d, 2)}, {v(T + 2 * d, 2)}, {v(SC + 2 * d, 2)}, {v(SH + 2 * d, 2)}")
        for d in range(4 * hh, 4 * hh + 4):
            A(f"v_cvt_pk_bf16_f32 {v(16 + d)}, {v(T + 2 * d)}, {v(T + 2 * d + 1)}")
        A.xstore("buffer_store_dwordx4", v(16 + 4 * hh, 4), "v2", "s49", f"offset:{1024 * hh}", "h", True)
    A(f"s_lshl_b32 s40, {s(sW)}, 13")
    A(f"s_add_u32 s39, s40, {s(sGA)}")
    A(f"s_add_u32 m0, s40, {L_H}")
    A(f"v_add_u32 v4, {L_H}, v2")
    A.xflag("s47", 128, 7, "h")
    A.spin([f"buffer_load_dword v8, v3, {s(WS, 4)}, s38 offen offset:128 sc1"], ["v_cmp_ne_u32 vcc, v7, v8"])
    A.hcopy = []
    for c in range(4):
        for i in range(4):
            A.hcopy.append(f"buffer_load_dwordx4 v2, {s(SOUT, 4)}, s39 offen offset:{i * 1024} sc1 lds")
        if c < 3:
            x = 0x1000 if c == 1 else 0x8000
            A.hcopy += [f"s_xor_b32 m0, m0, {x}", f"s_xor_b32 s39, s39, {x}"]
    for _ in range(P("nh", 14)):
        A(A.hcopy.pop(0))
    A.stamp("e2b")


ORD = [8 * (i >> 2) + (i & 3) for i in range(16)] + [8 * (i >> 2) + 4 + (i & 3) for i in range(16)]


def ffn_setup(A):
    A(f"s_lshl_b32 s55, {s(sW)}, 14")
    A(f"s_lshl_b32 s54, {s(sJ)}, 7")
    A("s_add_u32 s54, s54, s55")
    A(f"s_add_u32 s41, {s(sGA)}, {WS_B}")
    A(f"s_lshl_b32 s56, {s(sTT)}, 5")
    A(f"s_add_u32 s56, s56, {s(sW)}")
    A("s_lshl_b32 s56, s56, 10")
    A("s_add_u32 s56, s56, s41")
    A("s_xor_b32 s57, s56, 32768")
    A("s_lshl_b32 s58, s45, 10")
    A("s_add_u32 s58, s58, s41")
    A("s_add_u32 s59, s58, 32768")
    A(f"s_sub_u32 s63, s58, {WS_B}")
    A(f"s_sub_u32 s64, s59, {WS_B}")
    A("s_lshl_b32 s60, s45, 2")
    A("s_add_u32 s60, s60, s46")
    A(f"s_lshl_b32 s61, {s(sW)}, 2")
    A("s_add_u32 s61, s61, s46")


def ffn(A):
    ACC = [16, 48]
    BR = 96
    PK, vWD, vA = 8, 12, 13
    D = 16
    BORD = [(st, i) for st in list(range(16)) + [21] for i in range(2)] + [(st, i) for i in (1, 0) for st in range(16, 21)]

    def areg(ai):
        return U[0] + 4 * ORD[ai] if ai < 32 else U[1] + 4 * ORD[ai - 32]

    def breg(bi):
        return U[1] + 4 * ORD[12 + bi] if bi < 20 else U[2] + 4 * ORD[bi - 20]

    A("v_lshlrev_b32 v3, 2, v3")
    slice_voffset(A, vWD, vA)
    slice_read_addr(A, vA, vA + 1, 2, "s55")
    A(f"v_xor_b32 {v(vA + 1)}, 64, {v(vA)}")
    A("v_and_b32 v15, 31, v1")
    A("v_lshlrev_b32 v15, 2, v15")
    A("v_lshrrev_b32 v1, 5, v1")
    A("v_lshl_add_u32 v0, v1, 3, v0")
    A(f"v_add_u32 v1, 7168, {v(vWD)}")

    def flag_ld(p):
        if p == 2:
            return [f"buffer_load_dword v5, v3, {s(WS, 4)}, s61 offen offset:{256 + 128 * p} sc1"]
        return [f"buffer_load_dword v5, v15, {s(WS, 4)}, s46 offen offset:{256 + 128 * p} sc1"]

    def bread(n, t):
        return f"ds_read_b128 {v(BR + 8 * (n & 3) + 4 * t, 4)}, v4 offset:{t * 32768 + ORD[n % 32] * 1024}"

    mf = []
    for n in range(96):
        p, kk = n >> 5, n & 31
        for t in range(2):
            acc = v(ACC[p & 1] + 16 * t, 16)
            mf.append(f"{MF} {acc}, {r(U[p] + 4 * ORD[kk], 4)}, {v(BR + 8 * (n & 3) + 4 * t, 4)}, {'0' if kk == 0 else acc}")
    HEAD = 7
    seq = [(st, t) for st in range(HEAD) for t in (2, 3)] + [(st, t) for st in range(HEAD) for t in (0, 1)]
    seq += [(st, t) for st in list(range(HEAD, 16)) + [21] for t in range(4)]
    seq += [(st, t) for t in (3, 2, 1, 0) for st in range(16, 21)]
    for st, t in seq:
        acc = v(D + 16 * t, 16)
        mf.append(f"{MF} {acc}, {r(areg(2 * st + (t >> 1)), 4)}, {r(breg(2 * st + (t & 1)), 4)}, {'0' if st == 0 else acc}")
    M21 = 192 + 64

    at = {}
    F = [P("f0", 16), P("f1", 16), P("f2", 13)]
    PL = [P("p0", 16), P("p1", 10), P("p2", 9), P("p3", 26)]
    C = [P("c0", 12), P("c1", 11), P("c2", 10)]
    LAG = P("lag", 24)
    qepi, qsync, qmem, qrd = [], [], [], []
    for p in range(3):
        e0 = 64 * (p + 1) + (3 if p < 2 else 1)
        for t in range(2):
            b = ACC[p & 1] + 16 * t
            for i in range(8):
                qepi.append([e0, 1, [f"v_max_f32 {v(b + i)}, 0, {v(b + i)}"], None, 0])
            for i in range(8):
                qepi.append([e0, 1, [f"v_mul_f32 {v(b + i)}, {v(b + i)}, {v(b + 8 + i)}"], None, 0])
            for d in range(4):
                qepi.append([e0, 1, [f"v_cvt_pk_bf16_f32 {v(PK + d)}, {v(b + 2 * d)}, {v(b + 2 * d + 1)}"], None, 0])
            e = (f"chk{p - 1}", 0) if p else e0
            sf, ss, so = (OF, OS, 63 + t) if p == 1 else (WSF, WSS, 58 + t)
            qepi.append([e, 3, [f"buffer_store_dwordx4 {v(PK, 4)}, v2, {s(sf, 4)}, {s(so)} offen ; def:h2_{p}"], None, 0])
            qepi.append([e, 3, [f"buffer_store_dwordx4 {v(PK, 4)}, v2, {s(ss, 4)}, {s(so)} offen sc1 ; def:h2_{p}"],
                         f"st{p}" if t else None, 0])
    for p in range(4):
        o = 256 + 128 * p
        if p < 3:
            qsync.append([(f"st{p}", F[p]), 0, [], None, 0])
        if p & 1:
            qsync.append([(f"b{8 * p + 7}", P("fb", 11)), 0, [], None, 0])
        qsync.append([0, 3, [f"buffer_store_dword v7, off, {s(WSF, 4)}, s60 offset:{o}"], None, 0])
        qsync.append([0, 2, [f"buffer_store_dword v7, off, {s(WSS, 4)}, s60 offset:{o} sc1"], f"fl{p}", 0])
        qsync.append([(f"fl{p}", PL[p]), 2, flag_ld(p), f"pl{p}", 0])
        if p < 3:
            qsync.append([(f"pl{p}", C[p]), 4, lambda E, p=p: E.check_or_spin(flag_ld(p), ["v_cmp_ne_u32 vcc, v7, v5"]),
                          f"chk{p}", 0])
    for x in A.hcopy:
        qmem.append([0, 2, [x], None, 2] if "lds" in x else [0, 1, [x], None, 0])
    for d in range(44):
        st, hf = d >> 1, d & 1
        e = 4 if st < 8 else (f"rd{st - 8}", 8)
        if not hf:
            qmem.append([0, 1, [f"s_add_u32 m0, s55, {(st & 7) * 2048}"], None, 0])
            if st:
                qmem.append([0, 1, ["s_add_u32 s54, s54, 65536"], None, 0])
        qmem.append([e, 2, [f"buffer_load_dwordx4 {'v1' if hf else v(vWD)}, {s(T2, 4)}, s54 offen offset:{hf * 1024} lds ; def:wd{st}"],
                     f"dma{d}", 1])
        o = (st & 7) * 2048
        qrd.append([max(0, 2 * d + 2), 0, [], None, 0])
        qrd.append([(f"dma{d | 1}", LAG), 3 - hf, [f"ds_read_b64_tr_b16 {r(areg(d), 2)}, {v(vA + hf)} offset:{o} ; use:wd{st}",
                                              f"ds_read_b64_tr_b16 {r(areg(d) + 2, 2)}, {v(vA + hf)} offset:{o + 1024}"],
                    f"rd{st}" if hf else None, 0])
    pos = lambda x: (0 if x >> 3 == 1 else WS_B) + (x & 7) * 4096
    cur = [0, 0]
    for st, i in BORD:
        bi = 2 * st + i
        if st:
            qmem.append([0, 1, [f"s_add_u32 {s(56 + i)}, {s(56 + i)}, {(pos(st) - pos(cur[i])) & 0xffffffff}"], None, 0])
            cur[i] = st
        qmem.append([2 * (44 + bi) + 2, 0, [], None, 0])
        qmem.append([(f"chk{st >> 3}", 0), 2,
                     [f"buffer_load_dwordx4 {r(breg(bi), 4)}, v2, {s(SOUT if st >> 3 == 1 else WS, 4)}, {s(56 + i)} offen sc1"
                      + (f" ; def:rd_{1 + 2 * (st >> 3)}" if st < 16 else "")], f"b{bi}", 2])
    qtail = [[M21 - 12, 1, ["v_add_u32 v8, s55, v2"], None, 0]]
    for i in range(1, 4):
        qtail.append([0, 3, [f"s_xor_b32 s38, {s(sW)}, {i}", "s_lshl_b32 s38, s38, 14", f"v_add_u32 {v(8 + i)}, s38, v2"], None, 0])
    for q in range(4):
        qtail.append([0, 2, [f"ds_read_b128 {v(96 + 4 * q, 4)}, v6 offset:{3 * 256 + q * 32}"], None, 0])
    for t in (3, 2, 1):
        e = M21 + 4 + 5 * (4 - t)
        qtail.append([e - 1, 5, ["s_nop 4"], None, 0])
        qtail.append([e, 5, ["s_nop 4"], None, 0])
        for q in range(4):
            qtail.append([0, 3, [f"ds_write_b128 v8, {v(D + 16 * t + 4 * q, 4)} offset:{(t - 1) * 4096 + q * 1024}"], None, 0])
    queues = [qmem, qsync, qepi, qrd, qtail]

    A("s_barrier ; use:hs0")
    A.stamp("up0")
    for n in range(3):
        for t in range(2):
            A(bread(n, t))
    E = K()
    E.nlab = 1000
    E("L_no_unit2:")
    last_bulk = [-9, -9, -9]
    for m, x in enumerate(mf):
        if m == 64:
            A.stamp("r1")
        if m == 128:
            A.stamp("r2")
            A("s_cmp_ge_u32 s45, 22")
            A("s_cbranch_scc1 L_no_unit2")
        if m == 192:
            A("L_up_done:")
            A.stamp("up1")
        if m == M21:
            A(f"s_cmp_ge_u32 {s(sW)}, 2")
            A("s_cbranch_scc1 L_down_tail")
        if m == M21 + 4:
            A("L_down_tail:")
        if m >= 192:
            st, t = seq[m - 192]
            assert at[f"b{2 * st + (t & 1)}"] + 10 <= m, (m, st, t, at[f"b{2 * st + (t & 1)}"])
            assert t >= 2 or not qepi, (m, len(qepi), at)
        A.stamp(f"m{m}")
        A(x)
        budget = 5
        if m == 26:
            A("s_barrier ; use:hs1")
            budget -= 2
        if m + 6 < 192:
            A(bread((m >> 1) + 3, m & 1))
            budget -= 1
        if m + 1 in (128, M21):
            budget -= 2
        if M21 <= m < M21 + 4:
            continue
        first = budget
        for q in queues:
            while q:
                e, cost, ins, name, bulk = q[0]
                if isinstance(e, tuple):
                    if e[0] not in at or at[e[0]] + e[1] > m:
                        break
                elif e > m:
                    break
                if cost > budget or (bulk and (budget < first or (m - last_bulk[-2] < 3 if "chk2" in at else m - last_bulk[-1] < 2)
                                               or (bulk == 1 and m < 180 and m - last_bulk[0] < P("rate", 7)))):
                    break
                if q is qmem and 192 <= m and qepi and True:
                    break
                q.pop(0)
                budget -= cost
                for X in ([A, E] if 128 <= m < 192 else [A]):
                    if callable(ins):
                        ins(X)
                    else:
                        for y in ins:
                            X(y)
                if name:
                    at[name] = m
                if bulk:
                    last_bulk = last_bulk[1:] + [m]
    for e, cost, ins, name, bulk in qtail:
        for y in ins:
            A(y)
    assert not (qsync or qepi or qrd or qmem)
    if "v" in OPT:
        print({k: x for k, x in at.items() if k[:2] in ("st", "fl", "pl", "ch") or k in ("dma43", "rd21", "b0", "b15", "b16", "b31", "b42", "b40")}, len(qtail))
    E(f"s_mov_b32 s58, {WS_SIZE}")
    E(f"s_mov_b32 s59, {WS_SIZE}")
    E("s_branch L_up_done")
    A.stubs += [x.text for x in E.ins] + E.stubs
    A.stamp("down1")
    A("s_waitcnt lgkmcnt(0)")
    A("s_barrier")
    R = 128
    for q in range(4):
        for t in range(3):
            A(f"ds_read_b128 {v(R + 16 * t + 4 * q, 4)}, {v(9 + t)} offset:{t * 4096 + q * 1024}")
    A.check_or_spin(flag_ld(3), ["v_cmp_ne_u32 vcc, v7, v5"])
    for q in range(4):
        for d in range(2 * q, 2 * q + 2):
            A(f"v_pk_add_f32 {v(D + 2 * d, 2)}, {v(D + 2 * d, 2)}, {v(R + 2 * d, 2)}")
            A(f"v_pk_add_f32 {v(R + 16 + 2 * d, 2)}, {v(R + 16 + 2 * d, 2)}, {v(R + 32 + 2 * d, 2)}")
            A(f"v_pk_add_f32 {v(D + 2 * d, 2)}, {v(D + 2 * d, 2)}, {v(R + 16 + 2 * d, 2)}")
            A(f"v_pk_fma_f32 {v(D + 2 * d, 2)}, {v(D + 2 * d, 2)}, {v(96 + 2 * d, 2)}, {v(X1 + 2 * d, 2)}")
            A(f"v_cvt_pk_bf16_f32 {v(32 + d)}, {v(D + 2 * d)}, {v(D + 2 * d + 1)}")
        if q & 1:
            b = 32 + 2 * (q - 1)
            A(f"v_permlane32_swap_b32 {v(b)}, {v(b + 2)}")
            A(f"v_permlane32_swap_b32 {v(b + 1)}, {v(b + 3)}")
            A(f"buffer_store_dwordx4 {v(b, 4)}, v0, {s(SOUT, 4)}, s52 offen offset:{16 * (q - 1)} {'sc1' if 'osc1' in OPT else ('nt' if 'ont' in OPT else '')}")


def build():
    A = K()
    prologue(A)
    attention(A)
    early, A.stubs = A.stubs, []
    attn_epilogue(A)
    outproj(A)
    ffn(A)
    if STAMPS:
        if len(STAMPS) > 2:
            A("s_waitcnt vmcnt(0)")
        A.stamp("end")
        A("s_lshl_b32 s38, s2, 2")
        A(f"s_add_u32 s38, s38, {s(sW)}")
        A("s_lshl_b32 s38, s38, 7")
        A(f"s_add_u32 s38, s38, {WS_STAMP}")
        for i in range(len(STAMPS)):
            A(f"v_mov_b32 v4, {s(76 + 2 * i)}")
            A(f"buffer_store_dword v4, off, {s(WS, 4)}, s38 offset:{8 * i}")
    if any(o.startswith("pad=") for o in OPT):
        A("L_pad:")
        A("s_sleep 1")
        A("s_memrealtime s[96:97]")
        A("s_sub_u32 s96, s96, s98")
        A("s_cmp_lt_i32 s96, 6000")
        A("s_cbranch_scc1 L_pad")
    A("s_endpgm")
    for x in A.stubs:
        A(x)
    A("L_end:")
    A("s_endpgm")
    B = K()
    for x in early:
        B(x)
    fallback(B)
    g = [x.label for x in A.ins].index("L_gap")
    A.ins[g:g + 1] = B.ins
    return A


def add_pads(A):
    if "pad" not in OPT:
        return
    sz = ins_sizes(A)
    i0 = [x.label for x in A.ins].index("L_aligned") + 1
    pos, addr, page = [], 0, 0
    i = i0
    while i < len(A.ins):
        if addr >= page * 4096 and A.ins[i].ws:
            k, ad = i, addr
            best = i
            while ad + 4 <= page * 4096 + 64 and k < len(A.ins):
                if k > i0 and A.ins[k - 1].kind == "mfma" and A.ins[k].kind == "valu":
                    best = k
                    break
                ad += sz[k]
                k += 1
            pos.append(best)
            addr += 4
            page += 1
        addr += sz[i]
        i += 1
    n = len(pos)
    assert n >= 4
    for p in reversed(range(n)):
        tgt = f"L_page{p + 4}" if p + 4 < n else "L_warmed"
        A.ins[pos[p]:pos[p]] = [Ins(f"L_page{p}:"), Ins(f"s_cbranch_execz {tgt} ; warm")]


HEAD = """; adaLN block: multi-query attention + ReGLU feed-forward, one launch of 256 workgroups (one per CU).
; Generated by gen/fused.py (hand-written generator).
; @launch grid=(256,1,1) block=(256,1,1) lds=%d
.amdgcn_target "amdgcn-amd-amdhsa--gfx950"
""" % LDS_BYTES


def main(out, opt=""):
    OPT.clear()
    OPT.update(x for x in opt.split(",") if x)
    STAMPS.clear()
    for k, names in STAMP_SETS.items():
        if k in OPT:
            STAMPS.extend(names)
    for o in OPT:
        if o.startswith("st="):
            STAMPS.extend(o[3:].split(":"))
    A = build()
    text = ("; stamps: " + ",".join(STAMPS) + "\n" if STAMPS else "") + HEAD + kernel_text(NAME + "_kernel", A, verbose="v" in OPT, post=add_pads)
    open(out, "w").write(text)


if __name__ == "__main__":
    main(sys.argv[1], sys.argv[2] if len(sys.argv) > 2 else "")
```

```python
import struct
import sys

from asmlib import Asm, Ins, a, ins_sizes, kernel_text, r, s, v

NAME = "adaLN_cond__grouped_kv_mqa__glu_gated_reglu__prompt"
WS_NONCE = 0x0
WS_MODG = 0x1000
WS_FKV = 0x4000
WS_FRL = 0x6000
WS_FMD = 0x7000
WS_FG = 0x8000
WS_FKF = 0x12000
WS_KV = 0x20000
WS_KVF = 0x60000
WS_MODP = 0x40000
WS_WGU = 0x100000
WS_B = 0x400000
WS_STAMP = 0x1C00000
WS_SIZE = 0x2000000
QSCALE = 0.25 * 1.4426950408889634
HT = 32 * 1056
L_H1 = 0
L_WQ = 2 * HT
KVB = 2080
L_SP = 64 * KVB
L_MODL = L_SP
L_OWN = L_SP + 4096
L_MPART = L_SP + 5120
L_RED = L_SP + 6144
L_WO = 0
L_H = 65536
LDS_BYTES = 163840
assert L_WQ + 65536 == L_SP and L_RED + 16384 <= LDS_BYTES

MF = "v_mfma_f32_32x32x16_bf16"
MF16 = "v_mfma_f32_16x16x32_bf16"
SM = "v_smfmac_f32_32x32x32_bf16"
DPPF = "row_mask:0xf bank_mask:0xf"
SPIN_MAX = 1 << 18

WS, WSF, WSS, SX, SOUT, T1, T2, OF, OS = 8, 12, 16, 20, 24, 28, 4, 68, 72
sW, sG, sJ, sTAG, sTT, sHP = 32, 33, 34, 35, 36, 37
sGA = 62
OPT = set()
STAMPS = []
STAMP_SETS = {
    "stA": ["start", "modpub", "ln0", "ln1", "hop1", "hop1done", "kvst", "rows", "qdone", "hop2", "attn0", "attn1", "end"],
    "stC": ["start", "attn0", "kt4", "kt8", "kt12", "kt16", "kt24", "kt32", "kt40", "kt48", "kt56", "attn1", "end"],
    "stB": ["start", "attn0", "attn1", "e1", "oproj", "stat", "e2a", "e2b", "up0", "up1", "down1", "end"],
}


def P(name, default):
    for o in OPT:
        if o.startswith(name + "="):
            return int(o.split("=")[1])
    return default


def f2u(x):
    return hex(struct.unpack("<I", struct.pack("<f", x))[0])


class K(Asm):
    def __init__(self):
        super().__init__()
        self.stubs = []
        self.nlab = 0

    def lab(self, p):
        self.nlab += 1
        return f"L_{p}_{self.nlab}"

    def stamp(self, name):
        if "pad=" + name in OPT or (name == "start" and any(o.startswith("pad=") for o in OPT)):
            pj = [o for o in OPT if o.startswith("padj=")]
            if pj and name != "start":
                lo, hi = pj[0][5:].split(":")
                L = self.lab("pj")
                self("s_bfe_u32 s97, s2, 0x30003")
                self(f"s_sub_u32 s97, s97, {lo}")
                self(f"s_cmp_gt_u32 s97, {int(hi) - int(lo)}")
                self(f"s_cbranch_scc1 {L}")
                self("s_memrealtime s[98:99]")
                self(f"{L}:")
            else:
                self("s_memrealtime s[98:99]")
        if name in STAMPS:
            self(f"{'s_memtime' if 'cyc' in OPT else 's_memrealtime'} {s(76 + 2 * STAMPS.index(name), 2)}")

    def srd(self, d, src, size):
        self(f"s_mov_b32 {s(d)}, {s(src)}")
        self(f"s_mov_b32 {s(d + 1)}, {s(src + 1)}")
        self(f"s_mov_b32 {s(d + 2)}, {size}")
        self(f"s_mov_b32 {s(d + 3)}, 0x20000")

    def xstore(self, op, data, vaddr, soff, extra="", tok=None, out=False):
        t = f" ; def:{tok}" if tok else ""
        self(f"{op} {data}, {vaddr}, {s(OF if out else WSF, 4)}, {soff} offen {extra}{t}")
        self(f"{op} {data}, {vaddr}, {s(OS if out else WSS, 4)}, {soff} offen {extra} sc1{t}")

    def xflag(self, soff, off, vt, use):
        self(f"; use:{use}")
        self(f"buffer_store_dword {v(vt)}, off, {s(WSF, 4)}, {soff} offset:{off}")
        self(f"buffer_store_dword {v(vt)}, off, {s(WSS, 4)}, {soff} offset:{off} sc1")

    def spin(self, loads, check, sleep=0, work=None):
        L, E = self.lab("spin"), self.lab("spun")
        if work:
            for x in loads:
                self(x)
            work()
            for x in check:
                self(x)
            self(f"s_cbranch_vccz {E}")
        self("s_mov_b32 s3, 0")
        self(f"{L}:")
        for x in loads:
            self(x)
        for x in check:
            self(x)
        self(f"s_cbranch_vccz {E}")
        if sleep:
            self(f"s_sleep {sleep}")
        self("s_add_u32 s3, s3, 1")
        self(f"s_cmp_lt_u32 s3, {SPIN_MAX}")
        self(f"s_cbranch_scc1 {L}")
        self(f"{E}:")

    def check_or_spin(self, loads, check):
        L, E, S = self.lab("late"), self.lab("ok"), self.lab("lspin")
        for x in check:
            self(x)
        self(f"s_cbranch_vccnz {L}")
        self(f"{E}:")
        st = [f"{L}:", "s_mov_b32 s3, 0", f"{S}:"] + list(loads) + list(check) + [
            f"s_cbranch_vccz {E}", "s_add_u32 s3, s3, 1", f"s_cmp_lt_u32 s3, {SPIN_MAX}", f"s_cbranch_scc1 {S}",
            f"s_branch {E}"]
        self.stubs += st


SD = 32


def mod_loads(SD=SD):
    setup = ["v_lshrrev_b32 v89, 2, v0", "v_and_b32 v90, 3, v0", "v_lshlrev_b32 v91, 2, v89",
             "v_lshl_add_u32 v91, v90, 8, v91", "v_mul_u32_u24 v89, 12288, v89", "v_lshl_add_u32 v89, v90, 4, v89",
             "s_lshl_b32 s42, s41, 6"]
    loads = [[f"buffer_load_dword v88, v91, {s(T2, 4)}, 0 offen"]]
    for i in range(8):
        pre = [f"s_add_u32 s42, s42, {6144 if i & 1 else 127 * 6144}"] if i else []
        loads.append(pre + [f"buffer_load_dwordx4 {v(SD + 4 * i, 4)}, v89, {s(T1, 4)}, s42 offen"])
    return setup, loads


def mod_partial(A, T, reduce=True):
    c0, c1, acc, pm = T, T + 1, T + 4, T + 12
    A(f"v_lshlrev_b32 {v(c0)}, 16, v88")
    A(f"v_and_b32 {v(c1)}, 0xffff0000, v88")
    for x in (c0, c1):
        A(f"v_mul_f32 {v(x + 2)}, {f2u(-1.4426950408889634)}, {v(x)}")
    for x in (c0, c1):
        A(f"v_exp_f32 {v(x + 2)}, {v(x + 2)}")
    for e in range(8):
        A(f"v_mov_b32 {v(acc + e)}, 0")
    for x in (c0, c1):
        A(f"v_add_f32 {v(x + 2)}, 1.0, {v(x + 2)}")
    for x in (c0, c1):
        A(f"v_rcp_f32 {v(x + 2)}, {v(x + 2)}")
    A("s_mov_b32 s38, 0x05040100")
    A("s_mov_b32 s39, 0x07060302")
    for x in (c0, c1):
        A(f"v_mul_f32 {v(x)}, {v(x)}, {v(x + 2)}")
    A(f"v_cvt_pk_bf16_f32 {v(c0)}, {v(c0)}, {v(c1)}")
    for p in range(4):
        for d in range(4):
            w0, w1 = SD + 8 * p + d, SD + 4 + 8 * p + d
            A(f"v_perm_b32 {v(pm + 2 * d)}, {v(w1)}, {v(w0)}, s38")
            A(f"v_perm_b32 {v(pm + 1 + 2 * d)}, {v(w1)}, {v(w0)}, s39")
        for e in range(8):
            A(f"v_dot2c_f32_bf16_dpp {v(acc + e)}, {v(c0)}, {v(pm + e)} quad_perm:[{p},{p},{p},{p}] {DPPF}")
    if not reduce:
        return acc
    for e in range(4):
        A(f"v_permlane32_swap_b32 {v(acc + e)}, {v(acc + 4 + e)}")
    for e in range(4):
        A(f"v_add_f32 {v(acc + e)}, {v(acc + e)}, {v(acc + 4 + e)}")
    A(f"v_lshrrev_b32 {v(c0)}, 4, v1")
    for e in range(2):
        A(f"v_permlane16_swap_b32 {v(acc + e)}, {v(acc + 2 + e)}")
    for e in range(2):
        A(f"v_add_f32 {v(acc + e)}, {v(acc + e)}, {v(acc + 2 + e)}")
    A(f"v_and_b32 {v(c1)}, 3, v1")
    A(f"v_lshl_add_u32 {v(c0)}, {v(c1)}, 2, {v(c0)}")
    for e in range(2):
        A(f"v_add_f32_dpp {v(acc + e)}, {v(acc + e)}, {v(acc + e)} row_ror:8 {DPPF}")
    A(f"s_lshl_b32 s38, {s(sW)}, 7")
    A(f"v_lshl_add_u32 {v(c0)}, {v(c0)}, 3, s38")
    for e in range(2):
        A(f"v_add_f32_dpp {v(acc + e)}, {v(acc + e)}, {v(acc + e)} row_ror:4 {DPPF}")
    A(f"v_add_u32 {v(c0)}, {L_MPART}, {v(c0)}")
    A(f"ds_write_b64 {v(c0)}, {v(acc, 2)}")


def mod_publish(A, T):
    A(f"v_and_b32 {v(T)}, 15, v1")
    A(f"v_lshlrev_b32 {v(T)}, 3, {v(T)}")
    A(f"v_add_u32 {v(T + 1)}, {L_MPART}, {v(T)}")
    P = T + 2
    for i in range(4):
        A(f"ds_read_b64 {v(P + 2 * i, 2)}, {v(T + 1)} offset:{128 * i}")
    A("s_lshr_b32 s38, s41, 4")
    A("s_cmp_eq_u32 s38, 1")
    A("s_cselect_b32 s39, 1.0, 0")
    A("s_lshl_b32 s38, s41, 7")
    A(f"s_add_u32 s38, s38, {WS_MODG}")
    A(f"v_pk_add_f32 {v(P, 2)}, {v(P, 2)}, {v(P + 2, 2)}")
    A(f"v_pk_add_f32 {v(P + 4, 2)}, {v(P + 4, 2)}, {v(P + 6, 2)}")
    A(f"v_pk_add_f32 {v(P, 2)}, {v(P, 2)}, {v(P + 4, 2)}")
    A(f"v_cvt_pk_bf16_f32 {v(P)}, {v(P)}, {v(P + 1)}")
    A(f"v_mov_b32 {v(P + 3)}, {s(sTAG)}")
    A(f"v_and_b32 {v(P + 1)}, 0xffff0000, {v(P)}")
    A(f"v_lshlrev_b32 {v(P)}, 16, {v(P)}")
    A(f"v_add_f32 {v(P + 1)}, s39, {v(P + 1)}")
    A(f"v_add_f32 {v(P)}, s39, {v(P)}")
    A(f"v_cvt_pk_bf16_f32 {v(P + 2)}, {v(P)}, {v(P + 1)}")
    A("s_mov_b64 exec, 0xffff")
    A(f"buffer_store_dwordx2 {v(P + 2, 2)}, {v(T)}, {s(WS, 4)}, s38 offen sc1")
    A("s_mov_b64 exec, -1")


def mod2_loads(A):
    A("s_lshl_b32 s41, s40, 5")
    A(f"s_add_u32 s41, s41, {s(sG)}")
    A("s_and_b32 s38, s41, 15")
    A("s_lshr_b32 s39, s41, 4")
    A("s_lshl_b32 s41, s38, 2")
    A("s_add_u32 s41, s41, s39")
    A("s_lshl_b32 s41, s41, 11")
    A("s_lshl_b32 s38, s38, 2")
    A(f"s_add_u32 s38, s38, {s(sW)}")
    A("s_lshl_b32 s3, s38, 4")
    A(f"s_mul_i32 s42, s38, {8 * 6144}")
    A("s_lshl_b32 s39, s39, 10")
    A("s_add_u32 s42, s42, s39")
    A("v_and_b32 v91, 3, v1")
    A("v_lshlrev_b32 v91, 2, v91")
    A(f"buffer_load_dword v88, v91, {s(T2, 4)}, s3 offen")
    for i in range(8):
        A(f"buffer_load_dwordx4 {v(SD + 4 * i, 4)}, v2, {s(T1, 4)}, s42 offen offset:2048")
        if i < 7:
            A("s_add_u32 s42, s42, 6144")
    if "noto" not in OPT:
        A(f"s_load_dwordx2 {s(T2, 2)}, s[0:1], 32")
        A(f"s_mov_b32 {s(T2 + 2)}, {512 * 1024}")
        A("s_lshl_b32 s38, s40, 5")
        A(f"s_add_u32 s38, s38, {s(sG)}")
        A("s_lshl_b32 s38, s38, 2")
        A(f"s_add_u32 s38, s38, {s(sW)}")
        A("s_lshl_b32 s38, s38, 11")
        A("v_and_b32 v91, 15, v1")
        A("v_lshlrev_b32 v91, 7, v91")
        A(f"buffer_load_dword v90, v91, {s(T2, 4)}, s38 offen")


def mod2_finish(A, T):
    acc = mod_partial(A, T, False)
    A(f"s_lshl_b32 s38, {s(sW)}, 11")
    A(f"s_add_u32 s38, s38, {L_RED}")
    A(f"v_lshl_add_u32 {v(T)}, v1, 5, s38")
    A(f"s_lshl_b32 s38, {s(sW)}, 9")
    A(f"v_lshl_add_u32 {v(T + 1)}, v1, 3, s38")
    A(f"ds_write_b128 {v(T)}, {v(acc, 4)}")
    A(f"ds_write_b128 {v(T)}, {v(acc + 4, 4)} offset:16")
    A(f"v_add_u32 {v(T)}, {L_RED}, {v(T + 1)}")
    A(f"s_add_u32 s41, s41, {WS_MODP}")
    A("s_waitcnt lgkmcnt(0)")
    A("s_barrier")
    for i in range(4):
        A(f"ds_read_b64 {v(acc + 2 * i, 2)}, {v(T)} offset:{2048 * i}")
    A(f"v_pk_add_f32 {v(acc, 2)}, {v(acc, 2)}, {v(acc + 2, 2)}")
    A(f"v_pk_add_f32 {v(acc + 4, 2)}, {v(acc + 4, 2)}, {v(acc + 6, 2)}")
    A(f"v_pk_add_f32 v[84:85], {v(acc, 2)}, {v(acc + 4, 2)}")


def relayout_setup(A):
    A(f"s_sub_u32 s38, {s(sJ)}, 5")
    A("s_lshl_b32 s38, s38, 5")
    A(f"s_add_u32 s38, s38, {s(sG)}")
    A("s_lshl_b32 s38, s38, 2")
    A(f"s_add_u32 s38, s38, {s(sW)}")
    A("s_cmp_lt_u32 s38, 352")
    A(f"s_cselect_b32 s40, {512 * 2752}, 0")
    A.srd(T1, 56, "s40")
    A.srd(T2, 58, "s40")
    A("s_lshr_b32 s3, s38, 5")
    A("s_and_b32 s38, s38, 31")
    A(f"s_mul_i32 s41, s38, {16 * 2752}")
    A("s_lshl_b32 s39, s3, 8")
    A("s_add_u32 s41, s41, s39")
    A("s_lshl_b32 s42, s3, 18")
    A("s_lshl_b32 s38, s38, 10")
    A("s_add_u32 s42, s42, s38")
    A(f"s_add_u32 s42, s42, {WS_WGU}")


def relayout_loads(A):
    A("v_lshrrev_b32 v89, 4, v1")
    A("v_and_b32 v90, 15, v1")
    A("v_mul_u32_u24 v89, 2752, v89")
    A("v_lshl_add_u32 v89, v90, 4, v89")
    for q in range(8):
        A(f"buffer_load_dwordx4 {v(SD + 4 * q, 4)}, v89, {s(T2 if q & 1 else T1, 4)}, s41 offen")
        if q & 1 and q < 7:
            A(f"s_add_u32 s41, s41, {4 * 2752}")


RD = 128


def relayout_finish(A, T):
    A(f"s_mul_i32 s39, {s(sW)}, 4608")
    A(f"s_add_u32 s39, s39, {L_RED}")
    A(f"v_lshrrev_b32 {v(T)}, 4, v1")
    A(f"v_mul_u32_u24 {v(T)}, 576, {v(T)}")
    A(f"v_and_b32 {v(T + 1)}, 15, v1")
    A(f"v_lshlrev_b32 {v(T + 1)}, 4, {v(T + 1)}")
    A(f"v_add3_u32 {v(T)}, {v(T)}, {v(T + 1)}, s39")
    A(f"v_bfe_u32 {v(T + 1)}, v1, 2, 2")
    A(f"v_lshl_add_u32 {v(T + 1)}, v11, 2, {v(T + 1)}")
    A(f"v_mul_u32_u24 {v(T + 1)}, 576, {v(T + 1)}")
    A(f"v_bfe_u32 {v(T + 2)}, v1, 4, 1")
    A(f"v_mul_u32_u24 {v(T + 2)}, 288, {v(T + 2)}")
    A(f"v_add3_u32 {v(T + 1)}, {v(T + 1)}, {v(T + 2)}, s39")
    A(f"v_add_u32 {v(T + 1)}, {v(T + 1)}, v8")
    for jj in range(2):
        for q in range(4):
            A(f"ds_write_b128 {v(T)}, {v(SD + 16 * jj + 4 * q, 4)} offset:{(q >> 1) * 4 * 576 + (q & 1) * 288}")
        for f in range(8):
            A(f"ds_read_b64_tr_b16 {v(RD + 4 * f + 2 * jj, 2)}, {v(T + 1)} offset:{32 * f}")


def relayout_stores(A):
    for f in range(8):
        A(f"buffer_store_dwordx4 {v(RD + 4 * f, 4)}, v2, {s(WS, 4)}, s42 offen sc1")
        if f < 7:
            A("s_add_u32 s42, s42, 32768")


def slice_voffset(A, d, t):
    A(f"v_lshrrev_b32 {v(d)}, 3, v1")
    A(f"v_lshrrev_b32 {v(t)}, 2, v1")
    A(f"v_and_b32 {v(t)}, 4, {v(t)}")
    A(f"v_xor_b32 {v(t)}, {v(t)}, v1")
    A(f"v_and_b32 {v(t)}, 7, {v(t)}")
    A(f"v_lshlrev_b32 {v(t)}, 4, {v(t)}")
    A(f"v_lshl_add_u32 {v(d)}, {v(d)}, 10, {v(t)}")


def slice_read_addr(A, d, t, hshift, base):
    A(f"v_lshrrev_b32 {v(d)}, 5, v1")
    A(f"v_bfe_u32 {v(t)}, v1, 2, 2")
    A(f"v_lshl_add_u32 {v(d)}, {v(d)}, {hshift}, {v(t)}")
    A(f"v_lshrrev_b32 {v(t)}, 1, {v(t)}")
    A(f"v_xor_b32 {v(t)}, {s(sHP)}, {v(t)}")
    A(f"v_lshl_add_u32 {v(d)}, {v(d)}, 1, {v(t)}")
    A(f"v_bfe_u32 {v(t)}, v1, 4, 1")
    A(f"v_lshl_add_u32 {v(d)}, {v(d)}, 1, {v(t)}")
    A(f"v_and_b32 {v(t)}, 3, v1")
    A(f"v_lshl_add_u32 {v(d)}, {v(d)}, 2, {v(t)}")
    A(f"v_lshlrev_b32 {v(d)}, 3, {v(d)}")
    A(f"v_add_u32 {v(d)}, {base}, {v(d)}")


KF_LD = [f"buffer_load_dword v104, v105, {s(WS, 4)}, s59 offen sc1"]


def column_id(A, d):
    A(f"s_cmp_eq_u32 {s(sJ)}, 3")
    A(f"s_cselect_b32 {s(d)}, 5, {s(sJ)}")
    A(f"s_cmp_eq_u32 {s(sJ)}, 5")
    A(f"s_cselect_b32 {s(d)}, 3, {s(d)}")


def scalar_setup(A):
    A(f"s_lshl_b32 s52, {s(sG)}, 16")
    A(f"s_lshl_b32 s3, {s(sTT)}, 15")
    A("s_add_u32 s52, s52, s3")
    A(f"s_lshl_b32 s3, {s(sJ)}, 7")
    A("s_add_u32 s52, s52, s3")
    A(f"s_lshl_b32 s3, {s(sHP)}, 6")
    A("s_add_u32 s52, s52, s3")
    A(f"s_lshl_b32 s45, {s(sW)}, 3")
    A(f"s_add_u32 s45, s45, {s(sJ)}")
    A("s_lshl_b32 s47, s45, 15")
    A(f"s_add_u32 s47, s47, {WS_WGU + 64 * 32768}")
    A("s_cmp_lt_u32 s45, 22")
    A(f"s_cselect_b32 s47, s47, {WS_SIZE}")
    A("s_lshl_b32 s46, s45, 15")
    A(f"s_add_u32 s46, s46, {WS_WGU}")
    A(f"s_lshl_b32 s48, {s(sJ)}, 7")
    A(f"s_lshl_b32 s49, {s(sW)}, 17")
    A("s_add_u32 s48, s48, s49")
    A(f"s_lshl_b32 s49, {s(sW)}, 14")
    A(f"s_mov_b32 s50, {WS_FRL}")
    A(f"s_lshl_b32 s51, {s(sG)}, 5")
    A(f"s_add_u32 s51, s51, {WS_FRL}")
    A(f"s_lshl_b32 s53, {s(sJ)}, 2")
    A("s_add_u32 s53, s53, s51")
    A(f"s_lshl_b32 s54, {s(sW)}, 3")
    A(f"s_add_u32 s54, s54, {s(sJ)}")
    A("s_lshl_b32 s54, s54, 8")
    A(f"s_add_u32 s67, s54, {WS_MODP}")
    A("s_lshl_b32 s54, s40, 5")
    A(f"s_add_u32 s54, s54, {s(sG)}")
    A("s_lshl_b32 s54, s54, 2")
    A(f"s_add_u32 s54, s54, {WS_FMD}")
    A("s_cmp_le_u32 s40, 4")
    A(f"s_cselect_b32 s54, s54, {WS_SIZE}")
    A(f"s_cmp_eq_u32 {s(sW)}, 2")
    A("s_cselect_b32 s65, 1.0, 0")
    A(f"s_lshl_b32 s43, {s(sW)}, 8")
    A(f"s_add_u32 s43, s43, {L_OWN}")
    A("s_getreg_b32 s55, hwreg(HW_REG_XCC_ID, 0, 3)")
    A(f"s_add_u32 s56, s55, {s(sTAG)}")
    A(f"s_cmp_eq_u32 {s(sW)}, 0")
    A(f"s_cselect_b32 {s(WSF + 2)}, {s(WS + 2)}, 0")
    A(f"s_lshl_b32 {s(sGA)}, {s(sG)}, 16")
    A("s_lshl_b32 s57, s45, 11")
    A(f"s_add_u32 s57, s57, {s(sGA)}")
    A.srd(OF, SOUT, 0)
    A.srd(OS, SOUT, 0)
    A(f"s_lshl_b32 s63, {s(sW)}, 7")
    A(f"s_add_u32 s63, s63, {WS_FKV}")
    A(f"s_mul_i32 m0, {s(sW)}, {KVB}")


def prologue(A):
    X, N = 64, 128
    XA = 192
    A("s_cmp_ge_u32 s2, 256")
    A("s_cbranch_scc1 L_end")
    A.stamp("start")
    if P("probe", -1) >= 0:
        A(f"s_load_dwordx2 s[40:41], s[0:1], {8 * P('probe', 0)}")
        A("v_lshrrev_b32 v4, 4, v0")
        A("s_lshl_b32 s3, s2, 11")
        A(f"s_add_u32 s3, s3, {P('probeoff', 0)}")
        A("v_lshl_add_u32 v4, v4, 7, s3")
        A("s_waitcnt lgkmcnt(0)")
        A("s_memrealtime s[94:95]")
        A("global_load_dword v5, v4, s[40:41]")
        A("s_waitcnt vmcnt(0)")
        A("s_memrealtime s[96:97]")
        A("s_waitcnt lgkmcnt(0)")
        A("s_sub_u32 s96, s96, s94")
        A("s_lshl_b32 s96, s96, 4")
        A("s_add_u32 s98, s98, s96")
        A.stamp("probe")
    A("s_load_dwordx16 s[44:59], s[0:1], 0")
    A("s_load_dwordx8 s[60:67], s[0:1], 64")
    A(f"s_load_dwordx2 {s(WS, 2)}, s[0:1], 104")
    A("v_lshrrev_b32 v3, 6, v0")
    A("v_and_b32 v1, 63, v0")
    A(f"v_readfirstlane_b32 {s(sW)}, v3")
    A("v_lshlrev_b32 v2, 4, v1")
    A(f"s_lshr_b32 {s(sJ)}, s2, 3")
    A(f"s_and_b32 {s(sJ)}, {s(sJ)}, 7")
    A(f"s_lshr_b32 {s(sG)}, s2, 6")
    A(f"s_sub_u32 s3, {s(sJ)}, 3")
    A("s_cmp_gt_u32 s3, 1")
    A("s_cbranch_scc1 L_nocode")
    A("s_getpc_b64 s[38:39]")
    A("L_pc:")
    A("s_lshl_b32 s3, s3, 2")
    A(f"s_add_u32 s3, s3, {s(sG)}")
    A("s_mul_i32 s3, s3, 6144")
    A("v_mul_u32_u24 v4, 24, v0")
    A("v_add_u32 v4, s3, v4")
    A("v_min_u32 v4, L_end-L_pc, v4")
    A("global_load_dword v5, v4, s[38:39]")
    A("L_nocode:")
    A(f"s_lshl_b32 {s(sG)}, {s(sG)}, 3")
    A("s_and_b32 s3, s2, 7")
    A(f"s_add_u32 {s(sG)}, {s(sG)}, s3")
    A(f"s_and_b32 {s(sTT)}, {s(sW)}, 1")
    A(f"s_lshr_b32 {s(sHP)}, {s(sW)}, 1")
    A(f"s_mov_b32 {s(WS + 2)}, {WS_SIZE}")
    A(f"s_mov_b32 {s(WS + 3)}, 0x20000")
    A("s_bfe_u32 s38, s2, 0x10007")
    A("s_lshl_b32 s39, s38, 2")
    A("s_xor_b32 s3, s3, s39")
    A("s_lshl_b32 s38, s38, 3")
    A("s_add_u32 s3, s3, s38")
    A("s_lshl_b32 s3, s3, 1")
    A("s_bfe_u32 s38, s2, 0x10006")
    A("s_add_u32 s41, s3, s38")
    msetup, mloads = mod_loads()
    for x in msetup:
        A(x)
    A(f"s_and_b32 s38, {s(sJ)}, 1")
    A("s_lshl_b32 s38, s38, 15")
    A(f"s_lshl_b32 s43, {s(sG)}, 16")
    A(f"s_lshl_b32 s40, {s(sW)}, 13")
    A("s_add_u32 s43, s43, s40")
    A("s_add_u32 s43, s43, s38")
    nonce = f"buffer_load_dword v7, off, {s(WS, 4)}, 0 offset:{WS_NONCE} sc1"

    def x_loads():
        for i in range(16):
            A(f"buffer_load_dwordx4 {v(XA + 4 * i, 4)}, v2, {s(SX, 4)}, s43 offen offset:{(i & 3) * 1024}")
            if i in (3, 11):
                A("s_add_u32 s43, s43, 4096")
            if i == 7:
                A("s_xor_b32 s43, s43, 0x9000")

    def get_tag():
        A(f"v_readfirstlane_b32 {s(sTAG)}, v7")
        A(f"s_mul_i32 {s(sTAG)}, {s(sTAG)}, 1664525")
        A(f"s_add_u32 {s(sTAG)}, {s(sTAG)}, 1013904223")

    A.srd(T1, 64, 512 * 6144)
    A.stamp("karg")
    A.srd(T2, 62, 1024)
    A.srd(SX, 44, 2048 * 1024)
    A(f"s_cmp_lg_u32 {s(sJ)}, 2")
    A("s_cbranch_scc1 L_not_crit")
    if "xearly" in OPT:
        x_loads()
    for g in mloads:
        for x in g:
            A(x)
    A(nonce)
    A.stamp("modiss")
    if "modarr" in STAMPS:
        A("s_waitcnt vmcnt(9)")
        A.stamp("carr")
        A("s_waitcnt vmcnt(8)")
        A.stamp("mod1st")
        A("s_waitcnt vmcnt(1)")
        A.stamp("modarr")
        A("s_waitcnt vmcnt(0)")
        A.stamp("nonce")
    mod_partial(A, 8)
    get_tag()
    A("s_waitcnt lgkmcnt(0)")
    A("s_barrier")
    A(f"s_cmp_lg_u32 {s(sW)}, 0")
    A("s_cbranch_scc1 L_crit_done")
    mod_publish(A, 8)
    A("L_crit_done:")
    if "xearly" not in OPT:
        A("s_barrier")
    A.stamp("modpub")
    if "xearly" not in OPT:
        x_loads()
    A("s_branch L_ln")
    A("L_not_crit:")
    if "notw" not in OPT:
        if "tw34" in OPT:
            A(f"s_sub_u32 s38, {s(sJ)}, 3")
            A("s_cmp_gt_u32 s38, 1")
            A("s_cbranch_scc1 L_notw")
            A("s_lshl_b32 s38, s38, 5")
            A(f"s_add_u32 s38, s38, {s(sG)}")
            A("s_lshl_b32 s38, s38, 2")
            A(f"s_add_u32 s38, s38, {s(sW)}")
            A("s_mul_i32 s38, s38, 12288")
            A("v_bfe_u32 v3, v1, 4, 1")
            A("v_mul_u32_u24 v3, 6144, v3")
            A("v_and_b32 v4, 15, v1")
            A("v_lshl_add_u32 v4, v4, 7, v3")
        else:
            if P("twr", 4) == 0:
                A(f"s_cmp_gt_u32 {s(sJ)}, 2")
                A(f"s_subb_u32 s38, {s(sJ)}, 0")
            else:
                A(f"s_sub_u32 s38, {s(sJ)}, {P('twr', 4)}")
            A("s_cmp_gt_u32 s38, 3")
            A("s_cbranch_scc1 L_notw")
            A("s_lshl_b32 s38, s38, 5")
            A(f"s_add_u32 s38, s38, {s(sG)}")
            A("s_lshl_b32 s38, s38, 2")
            A(f"s_add_u32 s38, s38, {s(sW)}")
            A("s_lshl_b32 s39, s38, 10")
            A("s_mul_i32 s38, s38, 6144")
            A("v_and_b32 v4, 15, v1")
            A("v_lshlrev_b32 v4, 7, v4")
        A(f"buffer_load_dword v10, v4, {s(T1, 4)}, s38 offen")
        if "notq" not in OPT:
            A.srd(WSF, 46, 512 * 1024)
            A("v_and_b32 v4, 0x380, v4")
            A(f"buffer_load_dword v9, v4, {s(WSF, 4)}, s39 offen")
        A("L_notw:")
    x_loads()
    A(nonce)
    A(f"s_cmp_le_u32 {s(sJ)}, 4")
    A("s_cbranch_scc1 L_ln")
    relayout_setup(A)

    A("L_ln:")
    A.stamp("ln0")
    A.srd(SOUT, 66, 2048 * 1024)
    A.srd(WSS, WS, WS_SIZE)
    A.srd(WSF, 46, 512 * 1024)
    slice_voffset(A, 6, 4)
    A(f"s_lshl_b32 s38, {s(sW)}, 17")
    column_id(A, 39)
    A("s_lshl_b32 s39, s39, 7")
    A("s_add_u32 s38, s38, s39")
    A(f"s_lshl_b32 s39, {s(sW)}, 14")
    wq = []
    for i in range(16):
        wq.append([f"buffer_load_dwordx4 v6, {s(WSF, 4)}, s38 offen lds ; def:wq"]
                  + (["s_add_u32 m0, m0, 1024", "s_add_u32 s38, s38, 8192"] if i < 15 else []))
    cnt = [0]

    def V(x, every=20):
        A(x)
        cnt[0] += 1
        if cnt[0] >= every and wq:
            cnt[0] = 0
            for y in wq.pop(0):
                A(y)

    S1, S2 = 96, 112
    A("v_mov_b32 v3, 0x3f803f80")
    for i in range(16):
        E = A
        E(f"v_dot2_f32_bf16 {v(S1 + i)}, {v(XA + 4 * i)}, v3, 0")
        E(f"v_dot2_f32_bf16 {v(S2 + i)}, {v(XA + 4 * i)}, {v(XA + 4 * i)}, 0")
        if i:
            for d in range(1, 4):
                E(f"v_dot2c_f32_bf16 {v(S1 + i - 1)}, {v(XA + 4 * i - 4 + d)}, v3")
                E(f"v_dot2c_f32_bf16 {v(S2 + i - 1)}, {v(XA + 4 * i - 4 + d)}, {v(XA + 4 * i - 4 + d)}")
            if i <= 8:
                for d in range(4):
                    E(f"v_lshlrev_b32 {v(N + 8 * (i - 1) + 2 * d)}, 16, {v(XA + 4 * (i - 1) + d)}")
                    E(f"v_and_b32 {v(N + 8 * (i - 1) + 2 * d + 1)}, 0xffff0000, {v(XA + 4 * (i - 1) + d)}")
    A(f"s_cmp_gt_u32 {s(sJ)}, 1")
    A("s_cbranch_scc1 L_nokvw")
    A("s_and_b32 s43, s2, 7")
    A("s_lshl_b32 s43, s43, 2")
    A("s_lshr_b32 s3, s2, 6")
    A("s_add_u32 s43, s43, s3")
    A("s_lshl_b32 s43, s43, 1")
    A(f"s_add_u32 s43, s43, {s(sJ)}")
    A("s_lshl_b32 s3, s43, 11")
    A(f"s_add_u32 s3, s3, {WS_KVF}")
    A("v_lshrrev_b32 v16, 4, v0")
    A("v_lshlrev_b32 v16, 7, v16")
    A(f"buffer_load_dword v17, v16, {s(WS, 4)}, s3 offen sc1")
    A("s_lshl_b32 s3, s43, 7")
    A(f"s_add_u32 s3, s3, {WS_FKF}")
    A(f"buffer_load_dword v18, off, {s(WS, 4)}, s3 sc1")
    A(f"s_cmp_eq_u32 {s(sHP)}, 0")
    A(f"s_cselect_b32 {s(T2)}, s48, s50")
    A(f"s_cselect_b32 {s(T2 + 1)}, s49, s51")
    A(f"s_mov_b32 {s(T2 + 2)}, 16384")
    A(f"s_lshl_b32 m0, {s(sW)}, 13")
    A(f"s_lshl_b32 s3, {s(sTT)}, 13")
    for i in range(8):
        A(f"buffer_load_dwordx4 v2, {s(T2, 4)}, s3 offen offset:{(i & 3) * 1024} lds ; def:kvw")
        if i == 3:
            A("s_add_u32 m0, m0, 4096")
            A("s_add_u32 s3, s3, 4096")
    A("s_branch L_nokvw2")
    A("L_nokvw:")
    if "noep" not in OPT:
        A(f"s_cmp_lg_u32 {s(sJ)}, 2")
        A("s_cbranch_scc1 L_nokvw2")
        A("v_lshlrev_b32 v16, 4, v0")
        A(f"s_mov_b32 s3, {WS_MODG}")
        A(f"buffer_load_dwordx4 v[12:15], v16, {s(WS, 4)}, s3 offen sc1")
    A("L_nokvw2:")
    A(f"s_add_u32 m0, s39, {L_WQ}")
    cnt[0] = 100
    for d in range(1, 4):
        V(f"v_dot2c_f32_bf16 {v(S1 + 15)}, {v(XA + 60 + d)}, v3")
        V(f"v_dot2c_f32_bf16 {v(S2 + 15)}, {v(XA + 60 + d)}, {v(XA + 60 + d)}")
    EV = P("ev", 11)
    for op, n in (("v_permlane32_swap_b32", 8), ("v_permlane16_swap_b32", 4)):
        for b in (S1, S2):
            for i in range(n):
                V(f"{op} {v(b + i)}, {v(b + i + n)}", EV)
        for b in (S1, S2):
            for i in range(n):
                V(f"v_add_f32 {v(b + i)}, {v(b + i)}, {v(b + i + n)}", EV)
    for b in (S1, S2):
        for i in range(2):
            V(f"v_add_f32_dpp {v(b + i)}, {v(b + i)}, {v(b + i)} row_ror:8 row_mask:0xf bank_mask:0x3", EV)
    for b in (S1, S2):
        for i in range(2):
            V(f"v_add_f32_dpp {v(b + i)}, {v(b + i + 2)}, {v(b + i + 2)} row_ror:8 row_mask:0xf bank_mask:0xc", EV)
    unp = []
    for i in range(8, 16):
        for d in range(4):
            src, dst = XA + 4 * i + d, N + 8 * i + 2 * d
            assert dst + 1 <= src
            unp.append(f"v_lshlrev_b32 {v(dst)}, 16, {v(src)}")
            unp.append(f"v_and_b32 {v(dst + 1)}, 0xffff0000, {v(src)}")

    def fill(n):
        for _ in range(n):
            V(unp.pop(0), EV)

    for b in (S1, S2):
        A(f"v_add_f32_dpp {v(b)}, {v(b)}, {v(b)} row_half_mirror row_mask:0xf bank_mask:0x5")
    fill(1)
    for b in (S1, S2):
        A(f"v_add_f32_dpp {v(b)}, {v(b + 1)}, {v(b + 1)} row_half_mirror row_mask:0xf bank_mask:0xa")
    for qp in ("[1,0,3,2]", "[2,3,0,1]"):
        fill(1)
        for b in (S1, S2):
            A(f"v_add_f32_dpp {v(b)}, {v(b)}, {v(b)} quad_perm:{qp} {DPPF}")
    A(f"v_mul_f32 v3, {f2u(1 / 512)}, {v(S1)}")
    A(f"v_mul_f32 v4, {f2u(1 / 512)}, {v(S2)}")
    A("v_fma_f32 v4, -v3, v3, v4")
    A("v_max_f32 v4, 0, v4")
    A(f"v_add_f32 v4, {f2u(1e-5)}, v4")
    A("v_rsq_f32 v4, v4")
    fill(1)
    A("v_mul_f32 v3, -v3, v4")
    for i in range(16):
        V(f"v_readlane_b32 {s(44 + 2 * i)}, v4, {4 * i}", EV)
        V(f"v_readlane_b32 {s(45 + 2 * i)}, v3, {4 * i}", EV)
    fill(len(unp))
    for i in range(16):
        for d in range(4):
            n = v(N + 8 * i + 2 * d, 2)
            V(f"v_pk_fma_f32 {n}, {n}, {s(44 + 2 * i, 2)}, {s(44 + 2 * i, 2)} op_sel:[0,0,1] op_sel_hi:[1,0,1]", EV)
    while wq:
        for y in wq.pop(0):
            A(y)
    A.stamp("ln1")
    A.srd(WSF, WS, 0)
    A("v_and_b32 v8, 3, v1")
    A("v_lshlrev_b32 v8, 3, v8")
    A("v_bfe_u32 v9, v1, 2, 2")
    A("v_lshrrev_b32 v11, 5, v1")
    A(f"s_cmp_eq_u32 {s(sJ)}, 2")
    A("s_cbranch_scc1 L_hop1")
    get_tag()
    A("L_hop1:")
    A.stamp("hop1")
    A("v_lshlrev_b32 v3, 4, v0")
    A(f"s_mov_b32 s38, {WS_MODG}")
    A("v_lshlrev_b32 v4, 3, v0")
    A(f"v_add_u32 v4, {L_MODL}, v4")
    A(f"s_and_b32 s39, {s(sJ)}, 1")
    A(f"s_mul_i32 s44, s39, {HT}")
    A("s_xor_b32 s39, s39, 1")
    A(f"s_mul_i32 s39, s39, {HT}")
    A(f"s_lshl_b32 s45, {s(sW)}, 7")
    A("v_mul_u32_u24 v5, 528, v1")
    A("v_add_u32 v5, s45, v5")
    A("v_add_u32 v6, s39, v5")
    A("v_add_u32 v5, s44, v5")
    A(f"v_add_u32 v7, {L_MODL}, v2")

    def transpose():
        A(f"s_cmp_gt_u32 {s(sJ)}, 1")
        A("s_cbranch_scc1 L_nokvt")
        A("v_lshrrev_b32 v16, 4, v1")
        A("v_lshl_add_u32 v16, v16, 3, v9")
        A("v_lshl_add_u32 v16, v16, 5, v8")
        A(f"s_lshl_b32 s39, {s(sHP)}, 14")
        A("v_add_u32 v16, s39, v16")
        A("s_barrier ; use:kvw")
        for ks in range(16):
            A(f"ds_read_b64_tr_b16 {a(128 + 4 * ks, 2)}, v16 offset:{ks * 1024}")
            A(f"ds_read_b64_tr_b16 {a(130 + 4 * ks, 2)}, v16 offset:{ks * 1024 + 128}")
        A("L_nokvt:")

    chk = [f"v_xor_b32 v13, {s(sTAG)}, v13", f"v_xor_b32 v15, {s(sTAG)}, v15", "v_or_b32 v15, v13, v15",
           "v_cmp_ne_u32 vcc, 0, v15"]
    if "noep" not in OPT:
        A(f"s_cmp_lg_u32 {s(sJ)}, 2")
        A("s_cbranch_scc1 L_hop1b")
        for x in chk:
            A(x)
        A("s_cbranch_vccz L_hop1c")
        A("L_hop1b:")
    A.spin([f"buffer_load_dwordx4 v[12:15], v3, {s(WS, 4)}, s38 offen sc1"], chk, work=transpose)
    A("L_hop1c:")
    A("v_mov_b32 v13, v14")
    A("v_xor_b32 v16, 0x80008000, v12")
    A("v_xor_b32 v17, 0x80008000, v14")
    A("ds_write_b64 v4, v[12:13]")
    A("ds_write_b64 v4, v[16:17] offset:2048")
    A("s_waitcnt lgkmcnt(0)")
    A("s_barrier")
    A.stamp("hop1done")
    SH, SC = 16, 24
    A("ds_read_b128 v[12:15], v7")
    A("ds_read_b128 v[64:67], v7 offset:1024")
    A(f"s_sub_u32 s40, {s(sJ)}, 3")
    A("s_cbranch_scc1 L_nomod2")
    A("s_cmp_gt_u32 s40, 1")
    A("s_cbranch_scc1 L_rl_st")
    mod2_loads(A)
    A("s_branch L_nomod2")
    A("L_rl_st:")
    relayout_loads(A)
    A("L_nomod2:")
    for d in range(4):
        A(f"v_lshlrev_b32 {v(SH + 2 * d)}, 16, {v(12 + d)}")
        A(f"v_and_b32 {v(SH + 2 * d + 1)}, 0xffff0000, {v(12 + d)}")
    for d in range(4):
        A(f"v_lshlrev_b32 {v(SC + 2 * d)}, 16, {v(64 + d)}")
        A(f"v_and_b32 {v(SC + 2 * d + 1)}, 0xffff0000, {v(64 + d)}")

    def modrow(i):
        t = 64 + 4 * (i & 3)
        for d in range(4):
            n = v(N + 8 * i + 2 * d, 2)
            A(f"v_pk_fma_f32 {n}, {n}, {v(SC + 2 * d, 2)}, {v(SH + 2 * d, 2)}")
        for d in range(4):
            A(f"v_cvt_pk_bf16_f32 {v(t + d)}, {v(N + 8 * i + 2 * d)}, {v(N + 8 * i + 2 * d + 1)}")
        A(f"ds_write_b128 {v(5 + (i >> 3))}, {v(t, 4)} offset:{16 * (i & 7)}")

    for i in range(8):
        modrow(i)
    A(f"s_cmp_ge_u32 {s(sJ)}, 2")
    A("s_cbranch_scc1 L_rows2")
    KA = "v[80:83]"
    A("v_lshrrev_b32 v3, 4, v1")
    A("v_and_b32 v4, 15, v1")
    A("v_mul_u32_u24 v12, 528, v3")
    A("v_lshl_add_u32 v12, v4, 4, v12")
    A(f"s_lshl_b32 s38, {s(sTT)}, 8")
    A("s_add_u32 s38, s38, s44")
    A("v_add_u32 v12, s38, v12")
    A("s_lshl_b32 s38, s43, 11")
    A(f"s_add_u32 s3, s38, {WS_KVF}")
    A(f"s_add_u32 s38, s38, {WS_KV}")
    A(f"s_cmp_lg_u32 {s(sHP)}, 0")
    A("s_cbranch_scc1 L_vjob")
    A("v_lshlrev_b32 v13, 4, v3")
    A(f"v_add_u32 v13, {L_MODL + 2048}, v13")
    for ks in range(16):
        A(f"ds_read_b128 {a(64 + 4 * ks, 4)}, v13 offset:{ks * 64}")
        if ks == 11:
            A("s_waitcnt lgkmcnt(12)")
            A("s_barrier")
    A("v_and_b32 v3, 1, v3")
    A("v_lshl_add_u32 v4, v3, 5, v4")
    A(f"s_lshl_b32 s39, {s(sTT)}, 4")
    A("v_add_lshl_u32 v4, v4, s39, 4")
    for ks in range(16):
        A(f"{MF16} {KA}, {a(128 + 4 * ks, 4)}, {a(64 + 4 * ks, 4)}, {'0' if ks == 0 else KA}")
        A(f"ds_read_b128 {a(4 * ks, 4)}, v12 offset:{ks * 2112}")
    for ks in range(16):
        A(f"{MF16} {KA}, {a(128 + 4 * ks, 4)}, {a(4 * ks, 4)}, {KA}")
    A("v_cvt_pk_bf16_f32 v84, v80, v81")
    A("v_cvt_pk_bf16_f32 v86, v80, v81")
    A("v_cvt_pk_bf16_f32 v85, v82, v83")
    A("v_cvt_pk_bf16_f32 v87, v82, v83")
    A("v_permlane32_swap_b32 v84, v86")
    A("v_permlane32_swap_b32 v85, v87")
    A("s_mov_b32 exec_hi, 0")
    A(f"buffer_store_dwordx4 v[84:87], v4, {s(WS, 4)}, s38 offen sc1 ; def:pub1")
    A(f"buffer_store_dwordx4 v[84:87], v4, {s(WS, 4)}, s3 offen ; def:pub1")
    A("s_mov_b32 exec_hi, -1")
    A("s_branch L_rows2")
    A("L_vjob:")
    A("s_waitcnt lgkmcnt(0)")
    A("s_barrier")
    for ks in range(16):
        A(f"ds_read_b128 {a(4 * ks, 4)}, v12 offset:{ks * 2112}")
    A("v_lshrrev_b32 v3, 1, v3")
    A("v_lshl_add_u32 v4, v3, 4, v4")
    A(f"s_lshl_b32 s39, {s(sTT)}, 5")
    A("v_add_lshl_u32 v4, v4, s39, 4")
    for ks in range(16):
        A(f"{MF16} {KA}, {a(4 * ks, 4)}, {a(128 + 4 * ks, 4)}, {'0' if ks == 0 else KA}")
    A("v_cvt_pk_bf16_f32 v84, v80, v81")
    A("v_cvt_pk_bf16_f32 v86, v80, v81")
    A("v_cvt_pk_bf16_f32 v85, v82, v83")
    A("v_cvt_pk_bf16_f32 v87, v82, v83")
    A("v_permlane16_swap_b32 v84, v86")
    A("v_permlane16_swap_b32 v85, v87")
    A("s_mov_b32 exec_lo, 0xffff")
    A("s_mov_b32 exec_hi, 0xffff")
    A(f"buffer_store_dwordx4 v[84:87], v4, {s(WS, 4)}, s38 offen offset:1024 sc1 ; def:pub1")
    A(f"buffer_store_dwordx4 v[84:87], v4, {s(WS, 4)}, s3 offen offset:1024 ; def:pub1")
    A("s_mov_b64 exec, -1")
    A("L_rows2:")
    A.stamp("kvst")
    for i in range(8, 16):
        modrow(i)
    A("v_mul_u32_u24 v3, 528, v11")
    A("v_and_b32 v4, 31, v1")
    A("v_lshl_add_u32 v3, v4, 4, v3")
    A(f"s_mul_i32 s38, {s(sTT)}, {HT}")
    A("v_add_u32 v3, s38, v3")
    slice_read_addr(A, 4, 9, 3, L_WQ)
    A(f"s_cmp_ge_u32 {s(sJ)}, 2")
    A("s_cbranch_scc1 L_nokvflag")
    A(f"v_mov_b32 v8, {s(sTAG)}")
    A("s_getreg_b32 s3, hwreg(HW_REG_XCC_ID, 0, 3)")
    A("v_add_u32 v9, s3, v8")
    A("s_lshl_b32 s38, s43, 7")
    A(f"s_add_u32 s39, s38, {WS_FKF}")
    A(f"s_add_u32 s38, s38, {WS_FKV}")
    A(f"s_cmp_eq_u32 {s(sW)}, 0")
    A(f"s_cselect_b32 {s(WSF + 2)}, {s(WS + 2)}, 0")
    A("s_waitcnt lgkmcnt(0) ; use:pub1")
    A("s_barrier")
    A(f"buffer_store_dword v9, off, {s(WSF, 4)}, s39")
    A(f"buffer_store_dword v8, off, {s(WSF, 4)}, s38 sc1")
    A("s_branch L_qgemm")
    A("L_nokvflag:")
    A(f"s_cmp_lg_u32 {s(sJ)}, 2")
    A("s_cbranch_scc1 L_wq_in")
    A("s_waitcnt vmcnt(0)")
    A("L_wq_in:")
    A("s_waitcnt lgkmcnt(0)")
    A("s_barrier")
    A("L_qgemm:")
    A.stamp("rows")
    NB, D = 8, 4
    S_ = K()
    S_("s_and_b32 s44, s2, 7")
    S_("s_lshl_b32 s44, s44, 3")
    S_(f"s_add_u32 s44, s44, {s(sW)}")
    S_("s_lshl_b32 s59, s44, 7")
    S_(f"s_add_u32 s59, s59, {WS_FKF}")
    S_("s_lshl_b32 s44, s44, 11")
    S_("v_and_b32 v105, 1, v1")
    S_("v_lshlrev_b32 v105, 9, v105")
    column_id(S_, 3)
    S_(f"s_mov_b32 {s(sJ)}, s3")
    scalar_setup(S_)
    sal = [x.text for x in S_.ins]
    for ks in range(32 + D):
        k = ks - D
        if k >= 0:
            A(f"{MF} v[16:31], {a(32 + 4 * (k % NB), 4)}, {a(4 * (k % NB), 4)}, {'0' if k == 0 else 'v[16:31]'}")
            if k == P("kp", 24):
                A(KF_LD[0])
            else:
                for _ in range(2 if ks < 32 else 6):
                    if sal:
                        A(sal.pop(0))
        if ks < 32:
            A(f"ds_read_b128 {a(4 * (ks % NB), 4)}, v3 offset:{ks * 1056}")
            A(f"ds_read_b64_tr_b16 {a(32 + 4 * (ks % NB), 2)}, v4 offset:{ks * 2048}")
            A(f"ds_read_b64_tr_b16 {a(34 + 4 * (ks % NB), 2)}, v4 offset:{ks * 2048 + 512}")
    assert not sal, len(sal)
    A("s_cmp_gt_u32 s40, 1")
    A("s_cbranch_scc1 L_qdone")
    mod2_finish(A, 64)
    A("s_branch L_qdone2")
    A("L_qdone:")
    A("s_cmp_gt_u32 s40, 4")
    A("s_cbranch_scc1 L_qdone1")
    relayout_finish(A, 64)
    A("L_qdone1:")
    A("s_barrier")
    A("L_qdone2:")
    A.stamp("qdone")


Q, S, O, KF, VF, XR = 8, [16, 32], [48, 64], [80, 84], [88, 96], 112
vK, vV0, vV1, IDX = 4, 5, 6, 7
U = [128, 256, 384]


def attention(A):
    kv_ld = [f"buffer_load_dword v104, v105, {s(WS, 4)}, s63 offen sc1"]
    kv_chk = [f"v_cmp_ne_u32 vcc, {s(sTAG)}, v104"]
    A(f"s_add_u32 s60, s44, {WS_KVF}")
    A(f"s_add_u32 s44, s44, {WS_KV}")
    A("v_cmp_ne_u32 vcc, s56, v104")
    A("s_cbranch_vccz L_kf_ok")
    A("s_mov_b32 s3, 0")
    A("L_kf_spin:")
    A(KF_LD[0])
    A("v_cmp_ne_u32 vcc, s56, v104")
    A("s_cbranch_vccz L_kf_ok")
    A("s_add_u32 s3, s3, 1")
    A("s_cmp_lt_u32 s3, 12")
    A("s_cbranch_scc1 L_kf_spin")
    A("s_mov_b32 s60, s44")
    A("v_and_b32 v105, 15, v1")
    A("v_lshlrev_b32 v105, 9, v105")
    A.spin(kv_ld, kv_chk)
    A("L_kf_ok:")
    A.stamp("hop2")
    for n in range(2):
        if n:
            A(f"s_add_u32 m0, m0, {4 * KVB}")
            A("s_add_u32 s60, s60, 8192")
        for o in (0, 1024):
            A(f"buffer_load_dwordx4 v2, {s(WS, 4)}, s60 offen offset:{o} sc1 lds ; def:kv0")
    A("v_and_b32 v105, 15, v1")
    A("v_lshlrev_b32 v105, 9, v105")
    A("v_and_b32 v0, 31, v1")
    A("v_lshlrev_b32 v0, 10, v0")
    A("v_lshrrev_b32 v106, 5, v1")
    A("v_lshl_add_u32 v0, v106, 3, v0")
    A(f"s_load_dwordx2 {s(T1, 2)}, s[0:1], 32")
    A(f"s_load_dwordx2 {s(T2, 2)}, s[0:1], 64")
    A(f"s_mov_b32 {s(T1 + 2)}, {512 * 1024}")
    A(f"s_mov_b32 {s(T2 + 2)}, {1376 * 1024}")
    A(f"s_mov_b32 s60, {f2u(QSCALE)}")
    for d in range(8):
        A(f"v_pk_mul_f32 {v(16 + 2 * d, 2)}, {v(16 + 2 * d, 2)}, s[60:61] op_sel_hi:[1,0]")
    for d in range(8):
        A(f"v_cvt_pk_bf16_f32 {v(Q + d)}, {v(16 + 2 * d)}, {v(17 + 2 * d)}")
    A(f"v_mul_u32_u24 v3, {KVB}, v1")
    for d in range(4):
        A(f"v_mov_b32 {v(120 + d)}, 0x3f803f80")
        A(f"v_mov_b32 {v(124 + d)}, 0")
    A("ds_write_b128 v3, v[120:123] offset:2048")
    A("ds_write_b128 v3, v[124:127] offset:2064")
    A(f"v_mov_b32 {v(vK)}, v2")
    A("v_lshrrev_b32 v106, 5, v1")
    A("v_lshlrev_b32 v106, 4, v106")
    A("v_and_b32 v107, 15, v1")
    A("v_add_lshl_u32 v106, v106, v107, 4")
    A(f"v_add_u32 {v(vV0)}, 1024, v106")
    A(f"v_add_u32 {v(vV1)}, 1536, v106")
    A("v_and_b32 v108, 27, v1")
    A("v_cmp_eq_u32 vcc, 16, v108")
    A("v_mov_b32 v106, 2048")
    A("v_mov_b32 v107, 2064")
    A(f"v_cndmask_b32 {v(vV0)}, {v(vV0)}, v106, vcc")
    A(f"v_cndmask_b32 {v(vV1)}, {v(vV1)}, v106, vcc")
    A("v_cmp_lt_u32 vcc, 16, v108")
    A(f"v_mov_b32 {v(IDX)}, 0xdddddddd")
    A("s_nop 0")
    A(f"v_cndmask_b32 {v(vV0)}, {v(vV0)}, v107, vcc")
    A(f"v_cndmask_b32 {v(vV1)}, {v(vV1)}, v107, vcc")
    for i in range(32):
        A(f"v_mov_b32 {v(O[0] + i)}, 0")
    slice_voffset(A, 124, 125)
    A("v_add_u32 v126, 7168, v124")
    A("v_and_b32 v3, 7, v1")
    A("v_lshlrev_b32 v3, 2, v3")
    A("s_mov_b32 s3, s40")
    A("s_mov_b32 s66, s41")
    A("s_mov_b32 s38, s67")
    for i in range(1, 4):
        A(f"s_add_u32 {s(38 + i)}, s67, {8192 * i}")
    A("v_lshrrev_b32 v110, 4, v1")
    A("v_and_b32 v111, 15, v1")
    A("v_lshlrev_b32 v111, 4, v111")
    A("v_lshl_add_u32 v123, v110, 2, v111")
    A("v_add_u32 v123, s43, v123")
    A("v_lshl_add_u32 v110, v110, 15, v111")
    A("v_mov_b32 v109, s56")
    A("v_lshlrev_b32 v111, 3, v111")
    if "pad" in OPT:
        A("s_mov_b64 exec, 0")
        for w in range(3):
            A(f"s_cmp_eq_u32 {s(sW)}, {w}")
            A(f"s_cbranch_scc1 L_page{w} ; warm")
        A("s_branch L_page3 ; warm")
        A("L_warmed:")
        A("s_mov_b64 exec, -1")
    A("s_cmp_gt_u32 s3, 4")
    A("s_cbranch_scc1 L_side0")
    A("s_cmp_gt_u32 s3, 1")
    A("s_cbranch_scc1 L_side2")
    A(f"s_lshl_b32 s3, {s(sW)}, 9")
    A("v_lshl_add_u32 v86, v1, 3, s3")
    A(f"buffer_store_dwordx2 v[84:85], v86, {s(WS, 4)}, s66 offen sc1")
    A("; use:kv0")
    A("s_branch L_aligned")
    A("L_side2:")
    relayout_stores(A)
    A("; use:kv0")
    A("s_branch L_aligned")
    A("L_side0:")
    A("; use:kv0")
    A("s_branch L_aligned")
    A("L_gap:")
    A(".p2align 12")
    A("L_aligned:")
    A("s_waitcnt lgkmcnt(0)")
    A("s_barrier")
    A.stamp("attn0")
    A(f"ds_read_b128 {v(KF[0], 4)}, {v(vK)}")
    A(f"ds_read_b128 {v(VF[0], 4)}, {v(vV0)}")
    A(f"ds_read_b128 {v(VF[0] + 4, 4)}, {v(vV1)}")
    A(f"ds_read_b128 {v(KF[1], 4)}, {v(vK)} offset:{KVB}")
    A(f"buffer_store_dword v109, off, {s(WSF, 4)}, s53 sc1")
    for q in range(2):
        A(f"{MF} {v(S[q], 16)}, {v(KF[0], 4)}, {v(Q + 4 * q, 4)}, 0")
    A(f"v_mov_b32 v109, {s(sTAG)}")
    A("v_min_u32 v122, 624, v2")
    A(f"s_mov_b32 s56, {WS_FMD}")

    KT_CHECK = P("ktc", 13)
    KT_KV = P("ktkv", 2)
    grp = {2 * KT_KV - 3: [[], kv_ld[:]]}
    for n in range(2, 16):
        tok = "kv1" if n <= 4 else ("kv2" if n <= 9 else "kv3")
        pre = [f"s_add_u32 m0, m0, {4 * KVB}", f"s_xor_b32 s44, s44, {(n ^ (n - 1) if n > 2 else 2) << 13}"]
        grp[2 * KT_KV + 1 + (n - 2) + max(0, n - 5) // 2] = [pre, [
            f"buffer_load_dwordx4 v2, {s(WS, 4)}, s44 offen offset:{o} sc1 lds ; def:{tok}" for o in (0, 1024)]]

    def put(t, ins):
        grp.setdefault(t, [[], []])[1].extend(ins)

    frl_ld = [f"buffer_load_dwordx4 v[104:107], v2, {s(WS, 4)}, s50 offen sc1",
              f"buffer_load_dword v108, v3, {s(WS, 4)}, s51 offen sc1",
              f"buffer_load_dwordx4 {v(U[0] + 112, 4)}, v122, {s(WS, 4)}, s56 offen sc1"]
    for q in range(4):
        put(2 * KT_KV - 2 + (q >> 1), [f"buffer_load_dwordx2 {v(XR + 2 * q, 2)}, v0, {s(SX, 4)}, s52 offen offset:{16 * q}"])
    put(2 * KT_CHECK - 7, frl_ld[:2])
    put(2 * KT_CHECK - 5, frl_ld[2:])
    OM = U[0] + 112
    KT_OWN = KT_CHECK
    own_ld = [f"buffer_load_dwordx4 {v(OM + 4 * i, 4)}, v110, {s(WS, 4)}, {s(38 + i)} offen sc1" for i in range(4)]
    own = [[f"v_pk_add_f32 {v(OM + d, 2)}, {v(OM + d, 2)}, {v(OM + d + 4, 2)}" for d in (0, 2, 8, 10)]
           + [f"v_pk_add_f32 {v(OM + d, 2)}, {v(OM + d, 2)}, {v(OM + d + 8, 2)}" for d in (0, 2)],
           [f"v_permlane32_swap_b32 {v(OM + e)}, {v(OM + e + 2)}" for e in range(2)]
           + [f"v_pk_add_f32 {v(OM, 2)}, {v(OM, 2)}, {v(OM + 2, 2)}"],
           [f"v_permlane16_swap_b32 {v(OM)}, {v(OM + 1)}", f"v_add_f32 {v(OM)}, {v(OM)}, {v(OM + 1)}",
            f"v_cvt_pk_bf16_f32 {v(OM)}, {v(OM)}, {v(OM)}", f"v_and_b32 {v(OM)}, 0xffff0000, {v(OM)}",
            f"v_add_f32 {v(OM)}, s65, {v(OM)}", f"v_cvt_pk_bf16_f32 {v(OM)}, {v(OM)}, {v(OM)}",
            f"v_and_b32 {v(OM)}, 0xffff0000, {v(OM)}", f"ds_write_b32 v123, {v(OM)}"]]

    def unit_loads(p, first, n):
        sreg = 47 if p == 2 else 46
        pre = []
        if first & 3 == 0 and not (first == 0 and p != 1):
            pre = [f"s_add_u32 {s(sreg)}, {s(sreg)}, {4096 if first else (32 * 32768 - 7 * 4096)}"]
        return [pre, [f"buffer_load_dwordx4 {r(U[p] + 4 * ks, 4)}, v2, {s(WS, 4)}, {s(sreg)} offen offset:{(ks & 3) * 1024} sc1"
                      for ks in range(first, first + n)]]

    later = [unit_loads(p, 4 * i, 4) for p in range(2) for i in range(8)]
    g = later.pop(7)
    later[7][0] = [f"s_add_u32 s46, s46, {32 * 32768 - 6 * 4096}"]
    g[0] = [f"s_sub_u32 s46, s46, {32 * 32768}"]
    later.append(g)
    for i in range(8):
        pre, x = unit_loads(2, 2 * i, 2)
        pre = pre + ([f"s_add_u32 m0, s49, {L_WO}"] if i == 0 else ["s_add_u32 m0, m0, 2048", "s_add_u32 s48, s48, 16384"])
        later.append([pre, x + [f"buffer_load_dwordx4 v124, {s(T1, 4)}, s48 offen lds ; def:wo",
                                f"buffer_load_dwordx4 v126, {s(T1, 4)}, s48 offen offset:1024 lds ; def:wo"]])
    later += [unit_loads(2, 16 + 4 * i, 4) for i in range(4)]
    if "notouch" not in OPT:
        later[14][1].append("global_load_dword v109, v111, s[58:59]")
        later[24][1].append("global_load_dword v125, v111, s[60:61]")
        later[25][1].append("global_load_dword v110, v111, s[60:61] offset:2048")
        later.append([[f"s_add_u32 s63, s57, {WS_B}", f"s_lshl_b32 s65, {s(sG)}, 10", f"s_add_u32 s65, s65, {WS_FG}"],
                      [f"buffer_load_dword v104, v111, {s(WS, 4)}, s65 offen sc1",
                       f"buffer_load_dword v105, v111, {s(SOUT, 4)}, s57 offen sc1",
                       f"buffer_load_dword v106, v111, {s(WS, 4)}, s63 offen sc1"]])
        NA = P("wda", 2)
        if NA:
            A(f"s_lshr_b32 s3, {s(sG)}, 3")
            A("s_lshl_b32 s3, s3, 2")
            A(f"s_add_u32 s3, s3, {s(sW)}")
            A("s_lshl_b32 s3, s3, 14")
            A(f"s_lshl_b32 s64, {s(sJ)}, 7")
            A("s_add_u32 s64, s64, s3")
            A("v_lshlrev_b32 v127, 3, v111")
            A("s_add_u32 s66, s64, 0x40000")
            grp[2 * P("wdk", 57) + 1] = [[], [f"buffer_load_dword {v(120 + i)}, v127, {s(T2, 4)}, {s(64 + 2 * i)} offen" for i in range(2)]]
            A("s_lshl_b32 s67, s2, 2")
            A(f"s_add_u32 s67, s67, {s(sW)}")
            A("s_lshl_b32 s67, s67, 11")
            later[-1][1].insert(0, f"buffer_load_dword v107, v111, {s(T2, 4)}, s67 offen")
        A("s_getpc_b64 s[60:61]")
        A("L_pc2:")
        A(f"s_lshl_b32 s3, {s(sW)}, 11")
        A("s_add_u32 s3, s3, L_post-L_pc2-8192")
        A("s_add_u32 s58, s60, s3")
        A("s_addc_u32 s59, s61, 0")
        A(f"s_lshl_b32 s3, {s(sW)}, 12")
        A("s_min_u32 s3, s3, L_end-L_post-4096")
        A("s_add_u32 s3, s3, L_post-L_pc2")
        A("s_add_u32 s60, s60, s3")
        A("s_addc_u32 s61, s61, 0")
    SPAN = P("span", 35)

    def place(kt, g):
        assert 2 * kt + 1 not in grp and 2 * kt + 2 not in grp
        h = (len(g[1]) + 1) // 2
        grp[2 * kt + 1] = [g[0], g[1][:h]]
        grp[2 * kt + 2] = [[], g[1][h:]]

    for i, g in enumerate(later):
        kt = KT_CHECK + (i * SPAN) // (len(later) - 1)
        assert kt >= 32 or not any("def:wo" in x for x in g[1])
        place(kt, g)
    free = [k for k in range(KT_OWN, 30) if 2 * k + 1 not in grp][0]
    place(free, [[], own_ld])
    KT_SUM = free + 5
    assert 2 * KT_SUM + 1 < [k for k, g in grp.items() if any(v(OM, 4) + ", v2" in x for x in g[1])][0]

    base = [0]

    def off(kt):
        o = kt * KVB - base[0]
        assert 0 <= o < 65536 - 2096
        return o

    def salu(kt, n):
        while n and kt in grp and grp[kt][0]:
            A(grp[kt][0].pop(0))
            n -= 1

    for kt in range(64):
        kb = kt & 1
        A.stamp(f"kt{kt}")
        if kt in (28, 56):
            base[0] += 28 * KVB
            for x in (vK, vV0, vV1):
                A(f"v_add_u32 {v(x)}, {28 * KVB}, {v(x)}")
        for q in range(2):
            p = 1 - q
            pv = kb if q == 1 else 1 - kb
            pk = 1 - kb if q == 1 else kb
            first = kt == 0 and q == 0
            for i in range(16):
                A(f"v_exp_f32 {v(S[q] + i)}, {v(S[q] + i)}")
                if i == 1:
                    if not first:
                        A(f"{SM} {v(O[p], 16)}, {v(VF[pv] + 4, 4)}, {v(S[p] + 8, 8)}, {v(IDX)}")
                    if q == 0:
                        A("s_waitcnt lgkmcnt(0)")
                        if kt == KT_KV:
                            A.check_or_spin(kv_ld, kv_chk)
                        elif kt == 6:
                            A("s_barrier ; use:kv1")
                            A(f"buffer_store_dword v109, off, {s(WSF, 4)}, s54 sc1")
                        elif kt == 18:
                            A("s_barrier ; use:kv2")
                        elif kt == 32:
                            A("s_barrier ; use:kv3")
                        elif kt == 58:
                            A("s_barrier ; use:wo")
                        elif kt == KT_CHECK:
                            chk = []
                            for d in range(5):
                                chk.append(f"v_subrev_u32 {v(104 + d)}, {s(sTAG)}, {v(104 + d)}")
                            chk += ["v_or3_b32 v104, v104, v105, v106", "v_or3_b32 v104, v104, v107, v108",
                                    ]
                            for d in range(4):
                                chk.append(f"v_xor_b32 {v(OM + d)}, v109, {v(OM + d)}")
                            chk += [f"v_or3_b32 v104, v104, {v(OM)}, {v(OM + 1)}", f"v_or3_b32 v104, v104, {v(OM + 2)}, {v(OM + 3)}",
                                    "v_cmp_lt_u32 vcc, 7, v104"]
                            A.check_or_spin(frl_ld, chk)
                            A("v_cmp_ne_u32 vcc, s55, v108")
                            A("s_cmp_eq_u32 s2, 0")
                            A(f"s_cselect_b32 {s(WSF + 2)}, 4, 0")
                            A(f"buffer_store_dword v109, off, {s(WSF, 4)}, 0 offset:{WS_NONCE} sc1")
                            if "slow" in OPT:
                                A("s_cmp_eq_u32 s2, 999")
                            else:
                                A("s_cmp_eq_u64 vcc, 0")
                            A(f"s_cselect_b32 {s(WSF + 2)}, {s(WS + 2)}, 0")
                            A(f"s_cselect_b32 {s(WSS + 2)}, 0, {s(WS + 2)}")
                            A(f"s_cselect_b32 {s(OF + 2)}, {s(SOUT + 2)}, 0")
                            A(f"s_cselect_b32 {s(OS + 2)}, 0, {s(SOUT + 2)}")
                    if 2 * kt + q in grp:
                        pre, ins = grp.pop(2 * kt + q)
                        assert not pre
                        for x in ins:
                            A(x)
                if i == 4:
                    if not first and not (q == 1 and kt == 63):
                        A(f"{MF} {v(S[p], 16)}, {v(KF[pk], 4)}, {v(Q + 4 * p, 4)}, 0")
                    salu(2 * kt + q + 1, 1)
                    if q == 0 and kt < 63:
                        A(f"ds_read_b128 {v(VF[1 - kb], 4)}, {v(vV0)} offset:{off(kt + 1)}")
                    if q == 1 and kt < 62:
                        A(f"ds_read_b128 {v(KF[kb], 4)}, {v(vK)} offset:{off(kt + 2)}")
                if kt == KT_SUM and q == 0 and i in (10, 12, 14):
                    for x in own.pop(0):
                        A(x)
                if i == 9:
                    A(f"{SM} {v(O[q], 16)}, {v(VF[kb], 4)}, {v(S[q], 8)}, {v(IDX)}")
                    salu(2 * kt + q + 1, 2)
                    if q == 0 and kt < 63:
                        A(f"ds_read_b128 {v(VF[1 - kb] + 4, 4)}, {v(vV1)} offset:{off(kt + 1)}")
    assert not grp
    A(f"s_lshl_b32 s46, {s(sG)}, 10")
    A(f"s_lshl_b32 s47, {s(sJ)}, 2")
    A(f"{SM} {v(O[1], 16)}, {v(VF[1] + 4, 4)}, {v(S[1] + 8, 8)}, {v(IDX)}")
    A.stamp("attn1")


def attn_epilogue(A):
    A("L_post:")
    A(f"s_add_u32 s46, s46, {WS_FG}")
    A(f"s_add_u32 s47, s47, {s(sW)}")
    A("s_lshl_b32 s47, s47, 2")
    A("s_add_u32 s47, s47, s46")
    A(f"s_lshl_b32 s48, {s(sTT)}, 5")
    A(f"s_lshl_b32 s49, {s(sJ)}, 2")
    A("s_add_u32 s48, s48, s49")
    A(f"s_lshl_b32 s49, {s(sHP)}, 1")
    A("s_add_u32 s48, s48, s49")
    A("s_lshl_b32 s48, s48, 10")
    A(f"s_add_u32 s49, s48, {s(sGA)}")
    A("s_mov_b32 s40, 0")
    A("L_attn_ok:")
    for q in range(2):
        A(f"v_rcp_f32 {v(O[q] + 10)}, {v(O[q] + 8)}")
        if q == 0:
            A(f"s_mov_b32 s50, {f2u(2.0 ** 120)}")
        else:
            A(f"s_mov_b32 s51, {f2u(2.0 ** -90)}")
        for d in range(4):
            o = v(O[q] + 2 * d, 2)
            A(f"v_pk_mul_f32 {o}, {o}, {v(O[q] + 10, 2)} op_sel_hi:[1,0]")
        for d in range(4):
            A(f"v_cvt_pk_bf16_f32 {v(120 + 4 * q + d)}, {v(O[q] + 2 * d)}, {v(O[q] + 2 * d + 1)}")
        A.xstore("buffer_store_dwordx4", v(120 + 4 * q, 4), "v2", "s49", f"offset:{1024 * q}", "o", True)
    for q in range(2):
        t = 104 + q
        A(f"v_add_f32 {v(t)}, abs({v(O[q])}), {v(O[q] + 8)}")
        for i in range(1, 8):
            A(f"v_add_f32 {v(t)}, abs({v(O[q] + i)}), {v(t)}")
    A("v_add_f32 v104, v104, v105")
    A(f"v_min_f32 v105, {v(O[0] + 8)}, {v(O[1] + 8)}")
    A("v_cmp_nge_f32 vcc, s50, v104")
    A("v_cmp_nle_f32 s[38:39], s51, v105")
    A("s_or_b64 vcc, vcc, s[38:39]")
    A("s_cbranch_vccnz L_fallback")
    A("L_attn_done:")
    A(f"v_mov_b32 v7, {s(sTAG)}")


def fallback(A):
    A("L_fallback:")
    A("s_cmp_lg_u32 s40, 0")
    A("s_cbranch_scc1 L_attn_done")
    A("s_mov_b32 s40, 1")
    M = [104, 105]
    for q in range(2):
        A(f"v_mov_b32 {v(M[q])}, 0xff800000")
    A(f"s_mov_b32 s38, {WS_KV}")
    A("L_fb_max:")
    A(f"buffer_load_dwordx4 {v(KF[0], 4)}, v2, {s(WS, 4)}, s38 offen sc1")
    for q in range(2):
        A(f"{MF} {v(S[q], 16)}, {v(KF[0], 4)}, {v(Q + 4 * q, 4)}, 0")
    for q in range(2):
        for i in range(0, 16, 2):
            A(f"v_max3_f32 {v(M[q])}, {v(M[q])}, {v(S[q] + i)}, {v(S[q] + i + 1)}")
    A("s_add_u32 s38, s38, 2048")
    A(f"s_cmp_lt_u32 s38, {WS_KV + 64 * 2048}")
    A("s_cbranch_scc1 L_fb_max")
    for q in range(2):
        A(f"v_mov_b32 v106, {v(M[q])}")
        A(f"v_permlane32_swap_b32 v106, {v(M[q])}")
        A(f"v_max_f32 {v(M[q])}, {v(M[q])}, v106")
    for i in range(32):
        A(f"v_mov_b32 {v(O[0] + i)}, 0")
    for i in range(8):
        A(f"v_mov_b32 {v(VF[0] + i)}, 0x3f803f80")
    A("v_lshrrev_b32 v106, 5, v1")
    A("v_lshlrev_b32 v106, 4, v106")
    A("v_and_b32 v107, 15, v1")
    A("v_add_lshl_u32 v106, v106, v107, 4")
    A(f"s_mov_b32 s38, {WS_KV}")
    A("L_fb_sum:")
    A(f"buffer_load_dwordx4 {v(KF[0], 4)}, v2, {s(WS, 4)}, s38 offen sc1")
    A("s_mov_b32 exec_lo, 0xffff")
    A("s_mov_b32 exec_hi, 0xffff")
    A(f"buffer_load_dwordx4 {v(VF[0], 4)}, v106, {s(WS, 4)}, s38 offen offset:1024 sc1")
    A(f"buffer_load_dwordx4 {v(VF[0] + 4, 4)}, v106, {s(WS, 4)}, s38 offen offset:1536 sc1")
    A("s_mov_b64 exec, -1")
    for q in range(2):
        A(f"{MF} {v(S[q], 16)}, {v(KF[0], 4)}, {v(Q + 4 * q, 4)}, 0")
    for q in range(2):
        for i in range(16):
            A(f"v_sub_f32 {v(S[q] + i)}, {v(S[q] + i)}, {v(M[q])}")
        for i in range(16):
            A(f"v_exp_f32 {v(S[q] + i)}, {v(S[q] + i)}")
        for h in range(2):
            A(f"{SM} {v(O[q], 16)}, {v(VF[0] + 4 * h, 4)}, {v(S[q] + 8 * h, 8)}, {v(IDX)}")
    A("s_add_u32 s38, s38, 2048")
    A(f"s_cmp_lt_u32 s38, {WS_KV + 64 * 2048}")
    A("s_cbranch_scc1 L_fb_sum")
    A("s_nop 11")
    A("s_branch L_attn_ok")


X1 = 80


def own_vec(A, dst, vec):
    for q in range(4):
        A(f"ds_read_b128 {v(dst + 4 * q, 4)}, v6 offset:{vec * 256 + q * 32}")


def outproj(A):
    B, ACC, AR = 16, [80, 96], [8, 12, 120, 124]
    A(f"s_lshl_b32 s38, {s(sHP)}, 15")
    slice_read_addr(A, 4, 5, 2, "s38")
    A("v_xor_b32 v5, 64, v4")

    seq = [(k, t) for k in range(12) for t in range(2)] + [(k, t) for t in (1, 0) for k in range(12, 16)]

    def aread(m):
        k, t = seq[m]
        A(f"ds_read_b64_tr_b16 {v(AR[m & 3], 2)}, {v(4 + t)} offset:{k * 2048}")
        A(f"ds_read_b64_tr_b16 {v(AR[m & 3] + 2, 2)}, {v(4 + t)} offset:{k * 2048 + 1024}")

    A("v_lshrrev_b32 v6, 5, v1")
    A("v_lshlrev_b32 v6, 4, v6")
    A(f"s_lshl_b32 s38, {s(sHP)}, 7")
    A(f"s_add_u32 s38, s38, {L_OWN}")
    A("v_add_u32 v6, s38, v6")
    A("v_lshlrev_b32 v104, 1, v3")
    A(f"s_lshl_b32 s38, {s(sHP)}, 4")
    A(f"s_add_u32 s38, s38, {s(sTT)}")
    A("s_lshl_b32 s38, s38, 2")
    A("s_add_u32 s38, s38, s46")
    A(f"s_lshl_b32 s39, {s(sTT)}, 15")
    A(f"s_lshl_b32 s40, {s(sHP)}, 14")
    A("s_add_u32 s39, s39, s40")
    A(f"s_add_u32 s39, s39, {s(sGA)}")
    for i in range(4):
        aread(i)
    A.xflag("s47", 0, 7, "o")
    A.spin([f"buffer_load_dword v105, v104, {s(WS, 4)}, s38 offen sc1"], ["v_cmp_ne_u32 vcc, v7, v105"])
    A.stamp("e1")
    def oload(k):
        A(f"buffer_load_dwordx4 {v(B + 4 * k, 4)}, v2, {s(SOUT, 4)}, s39 offen offset:{(k & 3) * 1024} sc1")
        if k & 3 == 3 and k < 15:
            A("s_add_u32 s39, s39, 4096")

    NO = P("no", 8)
    for k in range(NO):
        oload(k)
    GA, SH, SC, T = 16, 32, 48, 64
    wr = []
    for m, (k, t) in enumerate(seq):
        A(f"{MF} {v(ACC[t], 16)}, {v(AR[m & 3], 4)}, {v(B + 4 * k, 4)}, {'0' if k == 0 else v(ACC[t], 16)}")
        if m & 1 == 0 and NO + (m >> 1) < 16:
            oload(NO + (m >> 1))
        if m + 4 < 32:
            aread(m + 4)
        if "wd1" in OPT:
            NR, M = P("wdrows", 16), P("wdat", 21)
            if m == M - 3:
                A(f"s_lshr_b32 s38, {s(sG)}, 3")
                A("s_lshl_b32 s38, s38, 2")
                A(f"s_add_u32 s38, s38, {s(sW)}")
            if m == M - 2:
                A(f"s_mul_i32 s38, s38, {NR * 1024}")
                A(f"s_lshl_b32 s40, {s(sJ)}, 7")
                A("s_add_u32 s38, s38, s40")
            if m == M - 1:
                A(f"s_add_u32 s38, s38, {P('wda', 2) * 0x40000}")
                A(f"v_min_u32 v7, {NR - 1}, v1")
                A("v_lshlrev_b32 v7, 10, v7")
            if m == M:
                A(f"buffer_load_dword v7, v7, {s(T2, 4)}, s38 offen")
        if m == 27:
            A(f"s_xor_b32 s38, {s(sW)}, 2")
            A("s_lshl_b32 s38, s38, 12")
            A(f"s_add_u32 s38, s38, {L_RED}")
            A("v_add_u32 v4, s38, v2")
        if m == 28:
            own_vec(A, GA, 0)
            wr = [f"ds_write_b128 v4, {v(ACC[1] + 4 * q, 4)} offset:{q * 1024}" for q in range(4)]
        if m >= 29:
            A(wr.pop(0))
    A(wr.pop(0))
    A.stamp("oproj")
    A(f"s_lshl_b32 s38, {s(sW)}, 12")
    A(f"s_add_u32 s38, s38, {L_RED}")
    A("v_add_u32 v5, s38, v2")
    for d in range(8):
        A(f"v_lshlrev_b32 {v(T + 2 * d)}, 16, {v(XR + d)}")
        A(f"v_and_b32 {v(T + 2 * d + 1)}, 0xffff0000, {v(XR + d)}")
    A("s_waitcnt lgkmcnt(0)")
    A("s_barrier")
    for q in range(4):
        A(f"ds_read_b128 {v(ACC[1] + 4 * q, 4)}, v5 offset:{q * 1024}")
    for d in range(8):
        A(f"v_pk_fma_f32 {v(T + 2 * d, 2)}, {v(X1 + 2 * d, 2)}, {v(GA + 2 * d, 2)}, {v(T + 2 * d, 2)}")
    A(f"s_lshl_b32 s38, {s(sTT)}, 15")
    A(f"s_add_u32 s38, s38, {s(sGA)}")
    A(f"s_add_u32 s38, s38, {WS_B}")
    A(f"s_lshl_b32 s39, {s(sJ)}, 10")
    A(f"s_lshl_b32 s40, {s(sHP)}, 3")
    A("s_add_u32 s39, s39, s40")
    A("s_add_u32 s39, s39, s38")
    A("s_add_u32 s40, s38, 4096")
    for d in range(8):
        A(f"v_pk_fma_f32 {v(X1 + 2 * d, 2)}, {v(ACC[1] + 2 * d, 2)}, {v(GA + 2 * d, 2)}, {v(T + 2 * d, 2)}")
        if d == 0:
            A(f"v_pk_mul_f32 v[10:11], {v(X1, 2)}, {v(X1, 2)}")
        elif d == 1:
            A(f"v_pk_add_f32 v[8:9], {v(X1, 2)}, {v(X1 + 2, 2)}")
        else:
            A(f"v_pk_add_f32 v[8:9], v[8:9], {v(X1 + 2 * d, 2)}")
        if d:
            A(f"v_pk_fma_f32 v[10:11], {v(X1 + 2 * d, 2)}, {v(X1 + 2 * d, 2)}, v[10:11]")
    A("v_add_f32 v8, v8, v9")
    A("v_add_f32 v10, v10, v11")
    A(f"v_mov_b32 v9, {s(sTAG)}")
    A("v_permlane32_swap_b32 v8, v10")
    A("v_add_f32 v8, v8, v10")
    A.xstore("buffer_store_dwordx2", "v[8:9]", "v2", "s39")
    A.stamp("stat")
    A(f"v_mov_b32 v7, {s(sTAG)}")
    own_vec(A, SH, 1)
    own_vec(A, SC, 2)
    ffn_setup(A)
    G = 96
    lds = [f"buffer_load_dwordx4 {v(G + 4 * i, 4)}, v2, {s(WS, 4)}, {'s38' if i < 4 else 's40'} offen offset:{(i & 3) * 1024} sc1"
           for i in range(8)]
    chk = []
    for i in range(8):
        g = G + 4 * i
        if i == 0:
            chk += [f"v_min_u32 v10, {v(g + 1)}, {v(g + 3)}", f"v_max_u32 v11, {v(g + 1)}, {v(g + 3)}",
                    f"v_add_f32 v12, {v(g)}, {v(g + 2)}"]
        else:
            chk += [f"v_min3_u32 v10, v10, {v(g + 1)}, {v(g + 3)}", f"v_max3_u32 v11, v11, {v(g + 1)}, {v(g + 3)}",
                    f"v_add_f32 v12, v12, {v(g)}", f"v_add_f32 v12, v12, {v(g + 2)}"]
    chk += ["v_xor_b32 v10, v7, v10", "v_xor_b32 v11, v7, v11", "v_or_b32 v10, v10, v11", "v_cmp_ne_u32 vcc, 0, v10"]
    A.spin(lds, chk)
    A.stamp("e2a")
    A(f"v_mul_f32 v12, {f2u(1 / 512)}, v12")
    A("v_mov_b32 v13, v12")
    A(f"s_lshl_b32 s38, {s(sW)}, 5")
    A("v_permlane32_swap_b32 v12, v13")
    A("v_fma_f32 v13, -v12, v12, v13")
    A("v_max_f32 v13, 0, v13")
    A(f"v_add_f32 v13, {f2u(1e-5)}, v13")
    A("v_rsq_f32 v14, v13")
    A("s_add_u32 s38, s38, s46")
    A("v_mul_f32 v15, -v12, v14")
    for hh in range(2):
        for d in range(4 * hh, 4 * hh + 4):
            A(f"v_pk_fma_f32 {v(T + 2 * d, 2)}, {v(X1 + 2 * d, 2)}, v[14:15], v[14:15] op_sel:[0,0,1] op_sel_hi:[1,0,1]")
        for d in range(4 * hh, 4 * hh + 4):
            A(f"v_pk_fma_f32 {v(T + 2 * d, 2)}, {v(T + 2 * d, 2)}, {v(SC + 2 * d, 2)}, {v(SH + 2 * d, 2)}")
        for d in range(4 * hh, 4 * hh + 4):
            A(f"v_cvt_pk_bf16_f32 {v(16 + d)}, {v(T + 2 * d)}, {v(T + 2 * d + 1)}")
        A.xstore("buffer_store_dwordx4", v(16 + 4 * hh, 4), "v2", "s49", f"offset:{1024 * hh}", "h", True)
    A(f"s_lshl_b32 s40, {s(sW)}, 13")
    A(f"s_add_u32 s39, s40, {s(sGA)}")
    A(f"s_add_u32 m0, s40, {L_H}")
    A(f"v_add_u32 v4, {L_H}, v2")
    A.xflag("s47", 128, 7, "h")
    A.spin([f"buffer_load_dword v8, v3, {s(WS, 4)}, s38 offen offset:128 sc1"], ["v_cmp_ne_u32 vcc, v7, v8"])
    A.hcopy = []
    for c in range(4):
        for i in range(4):
            A.hcopy.append(f"buffer_load_dwordx4 v2, {s(SOUT, 4)}, s39 offen offset:{i * 1024} sc1 lds")
        if c < 3:
            x = 0x1000 if c == 1 else 0x8000
            A.hcopy += [f"s_xor_b32 m0, m0, {x}", f"s_xor_b32 s39, s39, {x}"]
    for _ in range(P("nh", 14)):
        A(A.hcopy.pop(0))
    A.stamp("e2b")


ORD = [8 * (i >> 2) + (i & 3) for i in range(16)] + [8 * (i >> 2) + 4 + (i & 3) for i in range(16)]


def ffn_setup(A):
    A(f"s_lshl_b32 s55, {s(sW)}, 14")
    A(f"s_lshl_b32 s54, {s(sJ)}, 7")
    A("s_add_u32 s54, s54, s55")
    A(f"s_add_u32 s41, {s(sGA)}, {WS_B}")
    A(f"s_lshl_b32 s56, {s(sTT)}, 5")
    A(f"s_add_u32 s56, s56, {s(sW)}")
    A("s_lshl_b32 s56, s56, 10")
    A("s_add_u32 s56, s56, s41")
    A("s_xor_b32 s57, s56, 32768")
    A("s_lshl_b32 s58, s45, 10")
    A("s_add_u32 s58, s58, s41")
    A("s_add_u32 s59, s58, 32768")
    A(f"s_sub_u32 s63, s58, {WS_B}")
    A(f"s_sub_u32 s64, s59, {WS_B}")
    A("s_lshl_b32 s60, s45, 2")
    A("s_add_u32 s60, s60, s46")
    A(f"s_lshl_b32 s61, {s(sW)}, 2")
    A("s_add_u32 s61, s61, s46")


def ffn(A):
    ACC = [16, 48]
    BR = 96
    PK, vWD, vA = 8, 12, 13
    D = 16
    BORD = [(st, i) for st in list(range(16)) + [21] for i in range(2)] + [(st, i) for i in (1, 0) for st in range(16, 21)]

    def areg(ai):
        return U[0] + 4 * ORD[ai] if ai < 32 else U[1] + 4 * ORD[ai - 32]

    def breg(bi):
        return U[1] + 4 * ORD[12 + bi] if bi < 20 else U[2] + 4 * ORD[bi - 20]

    A("v_lshlrev_b32 v3, 2, v3")
    slice_voffset(A, vWD, vA)
    slice_read_addr(A, vA, vA + 1, 2, "s55")
    A(f"v_xor_b32 {v(vA + 1)}, 64, {v(vA)}")
    A("v_and_b32 v15, 31, v1")
    A("v_lshlrev_b32 v15, 2, v15")
    A("v_lshrrev_b32 v1, 5, v1")
    A("v_lshl_add_u32 v0, v1, 3, v0")
    A(f"v_add_u32 v1, 7168, {v(vWD)}")

    def flag_ld(p):
        if p == 2:
            return [f"buffer_load_dword v5, v3, {s(WS, 4)}, s61 offen offset:{256 + 128 * p} sc1"]
        return [f"buffer_load_dword v5, v15, {s(WS, 4)}, s46 offen offset:{256 + 128 * p} sc1"]

    def bread(n, t):
        return f"ds_read_b128 {v(BR + 8 * (n & 3) + 4 * t, 4)}, v4 offset:{t * 32768 + ORD[n % 32] * 1024}"

    mf = []
    for n in range(96):
        p, kk = n >> 5, n & 31
        for t in range(2):
            acc = v(ACC[p & 1] + 16 * t, 16)
            mf.append(f"{MF} {acc}, {r(U[p] + 4 * ORD[kk], 4)}, {v(BR + 8 * (n & 3) + 4 * t, 4)}, {'0' if kk == 0 else acc}")
    HEAD = 7
    seq = [(st, t) for st in range(HEAD) for t in (2, 3)] + [(st, t) for st in range(HEAD) for t in (0, 1)]
    seq += [(st, t) for st in list(range(HEAD, 16)) + [21] for t in range(4)]
    seq += [(st, t) for t in (3, 2, 1, 0) for st in range(16, 21)]
    for st, t in seq:
        acc = v(D + 16 * t, 16)
        mf.append(f"{MF} {acc}, {r(areg(2 * st + (t >> 1)), 4)}, {r(breg(2 * st + (t & 1)), 4)}, {'0' if st == 0 else acc}")
    M21 = 192 + 64

    at = {}
    F = [P("f0", 16), P("f1", 16), P("f2", 13)]
    PL = [P("p0", 16), P("p1", 10), P("p2", 9), P("p3", 26)]
    C = [P("c0", 12), P("c1", 11), P("c2", 10)]
    LAG = P("lag", 24)
    qepi, qsync, qmem, qrd = [], [], [], []
    for p in range(3):
        e0 = 64 * (p + 1) + (3 if p < 2 else 1)
        for t in range(2):
            b = ACC[p & 1] + 16 * t
            for i in range(8):
                qepi.append([e0, 1, [f"v_max_f32 {v(b + i)}, 0, {v(b + i)}"], None, 0])
            for i in range(8):
                qepi.append([e0, 1, [f"v_mul_f32 {v(b + i)}, {v(b + i)}, {v(b + 8 + i)}"], None, 0])
            for d in range(4):
                qepi.append([e0, 1, [f"v_cvt_pk_bf16_f32 {v(PK + d)}, {v(b + 2 * d)}, {v(b + 2 * d + 1)}"], None, 0])
            e = (f"chk{p - 1}", 0) if p else e0
            sf, ss, so = (OF, OS, 63 + t) if p == 1 else (WSF, WSS, 58 + t)
            qepi.append([e, 3, [f"buffer_store_dwordx4 {v(PK, 4)}, v2, {s(sf, 4)}, {s(so)} offen ; def:h2_{p}"], None, 0])
            qepi.append([e, 3, [f"buffer_store_dwordx4 {v(PK, 4)}, v2, {s(ss, 4)}, {s(so)} offen sc1 ; def:h2_{p}"],
                         f"st{p}" if t else None, 0])
    for p in range(4):
        o = 256 + 128 * p
        if p < 3:
            qsync.append([(f"st{p}", F[p]), 0, [], None, 0])
        if p & 1:
            qsync.append([(f"b{8 * p + 7}", P("fb", 11)), 0, [], None, 0])
        qsync.append([0, 3, [f"buffer_store_dword v7, off, {s(WSF, 4)}, s60 offset:{o}"], None, 0])
        qsync.append([0, 2, [f"buffer_store_dword v7, off, {s(WSS, 4)}, s60 offset:{o} sc1"], f"fl{p}", 0])
        qsync.append([(f"fl{p}", PL[p]), 2, flag_ld(p), f"pl{p}", 0])
        if p < 3:
            qsync.append([(f"pl{p}", C[p]), 4, lambda E, p=p: E.check_or_spin(flag_ld(p), ["v_cmp_ne_u32 vcc, v7, v5"]),
                          f"chk{p}", 0])
    for x in A.hcopy:
        qmem.append([0, 2, [x], None, 2] if "lds" in x else [0, 1, [x], None, 0])
    for d in range(44):
        st, hf = d >> 1, d & 1
        e = 4 if st < 8 else (f"rd{st - 8}", 8)
        if not hf:
            qmem.append([0, 1, [f"s_add_u32 m0, s55, {(st & 7) * 2048}"], None, 0])
            if st:
                qmem.append([0, 1, ["s_add_u32 s54, s54, 65536"], None, 0])
        qmem.append([e, 2, [f"buffer_load_dwordx4 {'v1' if hf else v(vWD)}, {s(T2, 4)}, s54 offen offset:{hf * 1024} lds ; def:wd{st}"],
                     f"dma{d}", 1])
        o = (st & 7) * 2048
        qrd.append([max(0, 2 * d + 2), 0, [], None, 0])
        qrd.append([(f"dma{d | 1}", LAG), 3 - hf, [f"ds_read_b64_tr_b16 {r(areg(d), 2)}, {v(vA + hf)} offset:{o} ; use:wd{st}",
                                              f"ds_read_b64_tr_b16 {r(areg(d) + 2, 2)}, {v(vA + hf)} offset:{o + 1024}"],
                    f"rd{st}" if hf else None, 0])
    pos = lambda x: (0 if x >> 3 == 1 else WS_B) + (x & 7) * 4096
    cur = [0, 0]
    for st, i in BORD:
        bi = 2 * st + i
        if st:
            qmem.append([0, 1, [f"s_add_u32 {s(56 + i)}, {s(56 + i)}, {(pos(st) - pos(cur[i])) & 0xffffffff}"], None, 0])
            cur[i] = st
        qmem.append([2 * (44 + bi) + 2, 0, [], None, 0])
        qmem.append([(f"chk{st >> 3}", 0), 2,
                     [f"buffer_load_dwordx4 {r(breg(bi), 4)}, v2, {s(SOUT if st >> 3 == 1 else WS, 4)}, {s(56 + i)} offen sc1"
                      + (f" ; def:rd_{1 + 2 * (st >> 3)}" if st < 16 else "")], f"b{bi}", 2])
    qtail = [[M21 - 12, 1, ["v_add_u32 v8, s55, v2"], None, 0]]
    for i in range(1, 4):
        qtail.append([0, 3, [f"s_xor_b32 s38, {s(sW)}, {i}", "s_lshl_b32 s38, s38, 14", f"v_add_u32 {v(8 + i)}, s38, v2"], None, 0])
    for q in range(4):
        qtail.append([0, 2, [f"ds_read_b128 {v(96 + 4 * q, 4)}, v6 offset:{3 * 256 + q * 32}"], None, 0])
    for t in (3, 2, 1):
        e = M21 + 4 + 5 * (4 - t)
        qtail.append([e - 1, 5, ["s_nop 4"], None, 0])
        qtail.append([e, 5, ["s_nop 4"], None, 0])
        for q in range(4):
            qtail.append([0, 3, [f"ds_write_b128 v8, {v(D + 16 * t + 4 * q, 4)} offset:{(t - 1) * 4096 + q * 1024}"], None, 0])
    queues = [qmem, qsync, qepi, qrd, qtail]

    A("s_barrier ; use:hs0")
    A.stamp("up0")
    for n in range(3):
        for t in range(2):
            A(bread(n, t))
    E = K()
    E.nlab = 1000
    E("L_no_unit2:")
    last_bulk = [-9, -9, -9]
    for m, x in enumerate(mf):
        if m == 64:
            A.stamp("r1")
        if m == 128:
            A.stamp("r2")
            A("s_cmp_ge_u32 s45, 22")
            A("s_cbranch_scc1 L_no_unit2")
        if m == 192:
            A("L_up_done:")
            A.stamp("up1")
        if m == M21:
            A(f"s_cmp_ge_u32 {s(sW)}, 2")
            A("s_cbranch_scc1 L_down_tail")
        if m == M21 + 4:
            A("L_down_tail:")
        if m >= 192:
            st, t = seq[m - 192]
            assert at[f"b{2 * st + (t & 1)}"] + 10 <= m, (m, st, t, at[f"b{2 * st + (t & 1)}"])
            assert t >= 2 or not qepi, (m, len(qepi), at)
        A.stamp(f"m{m}")
        A(x)
        budget = 5
        if m == 26:
            A("s_barrier ; use:hs1")
            budget -= 2
        if m + 6 < 192:
            A(bread((m >> 1) + 3, m & 1))
            budget -= 1
        if m + 1 in (128, M21):
            budget -= 2
        if M21 <= m < M21 + 4:
            continue
        first = budget
        for q in queues:
            while q:
                e, cost, ins, name, bulk = q[0]
                if isinstance(e, tuple):
                    if e[0] not in at or at[e[0]] + e[1] > m:
                        break
                elif e > m:
                    break
                if cost > budget or (bulk and (budget < first or (m - last_bulk[-2] < 3 if "chk2" in at else m - last_bulk[-1] < 2)
                                               or (bulk == 1 and m < 180 and m - last_bulk[0] < P("rate", 7)))):
                    break
                if q is qmem and 192 <= m and qepi and True:
                    break
                q.pop(0)
                budget -= cost
                for X in ([A, E] if 128 <= m < 192 else [A]):
                    if callable(ins):
                        ins(X)
                    else:
                        for y in ins:
                            X(y)
                if name:
                    at[name] = m
                if bulk:
                    last_bulk = last_bulk[1:] + [m]
    for e, cost, ins, name, bulk in qtail:
        for y in ins:
            A(y)
    assert not (qsync or qepi or qrd or qmem)
    if "v" in OPT:
        print({k: x for k, x in at.items() if k[:2] in ("st", "fl", "pl", "ch") or k in ("dma43", "rd21", "b0", "b15", "b16", "b31", "b42", "b40")}, len(qtail))
    E(f"s_mov_b32 s58, {WS_SIZE}")
    E(f"s_mov_b32 s59, {WS_SIZE}")
    E("s_branch L_up_done")
    A.stubs += [x.text for x in E.ins] + E.stubs
    A.stamp("down1")
    A("s_waitcnt lgkmcnt(0)")
    A("s_barrier")
    R = 128
    for q in range(4):
        for t in range(3):
            A(f"ds_read_b128 {v(R + 16 * t + 4 * q, 4)}, {v(9 + t)} offset:{t * 4096 + q * 1024}")
    A.check_or_spin(flag_ld(3), ["v_cmp_ne_u32 vcc, v7, v5"])
    for q in range(4):
        for d in range(2 * q, 2 * q + 2):
            A(f"v_pk_add_f32 {v(D + 2 * d, 2)}, {v(D + 2 * d, 2)}, {v(R + 2 * d, 2)}")
            A(f"v_pk_add_f32 {v(R + 16 + 2 * d, 2)}, {v(R + 16 + 2 * d, 2)}, {v(R + 32 + 2 * d, 2)}")
            A(f"v_pk_add_f32 {v(D + 2 * d, 2)}, {v(D + 2 * d, 2)}, {v(R + 16 + 2 * d, 2)}")
            A(f"v_pk_fma_f32 {v(D + 2 * d, 2)}, {v(D + 2 * d, 2)}, {v(96 + 2 * d, 2)}, {v(X1 + 2 * d, 2)}")
            A(f"v_cvt_pk_bf16_f32 {v(32 + d)}, {v(D + 2 * d)}, {v(D + 2 * d + 1)}")
        if q & 1:
            b = 32 + 2 * (q - 1)
            A(f"v_permlane32_swap_b32 {v(b)}, {v(b + 2)}")
            A(f"v_permlane32_swap_b32 {v(b + 1)}, {v(b + 3)}")
            A(f"buffer_store_dwordx4 {v(b, 4)}, v0, {s(SOUT, 4)}, s52 offen offset:{16 * (q - 1)} {'sc1' if 'osc1' in OPT else ('nt' if 'ont' in OPT else '')}")


def build():
    A = K()
    prologue(A)
    attention(A)
    early, A.stubs = A.stubs, []
    attn_epilogue(A)
    outproj(A)
    ffn(A)
    if STAMPS:
        if len(STAMPS) > 2:
            A("s_waitcnt vmcnt(0)")
        A.stamp("end")
        A("s_lshl_b32 s38, s2, 2")
        A(f"s_add_u32 s38, s38, {s(sW)}")
        A("s_lshl_b32 s38, s38, 7")
        A(f"s_add_u32 s38, s38, {WS_STAMP}")
        for i in range(len(STAMPS)):
            A(f"v_mov_b32 v4, {s(76 + 2 * i)}")
            A(f"buffer_store_dword v4, off, {s(WS, 4)}, s38 offset:{8 * i}")
    if any(o.startswith("pad=") for o in OPT):
        A("L_pad:")
        A("s_sleep 1")
        A("s_memrealtime s[96:97]")
        A("s_sub_u32 s96, s96, s98")
        A("s_cmp_lt_i32 s96, 6000")
        A("s_cbranch_scc1 L_pad")
    A("s_endpgm")
    for x in A.stubs:
        A(x)
    A("L_end:")
    A("s_endpgm")
    B = K()
    for x in early:
        B(x)
    fallback(B)
    g = [x.label for x in A.ins].index("L_gap")
    A.ins[g:g + 1] = B.ins
    return A


def add_pads(A):
    if "pad" not in OPT:
        return
    sz = ins_sizes(A)
    i0 = [x.label for x in A.ins].index("L_aligned") + 1
    pos, addr, page = [], 0, 0
    i = i0
    while i < len(A.ins):
        if addr >= page * 4096 and A.ins[i].ws:
            k, ad = i, addr
            best = i
            while ad + 4 <= page * 4096 + 64 and k < len(A.ins):
                if k > i0 and A.ins[k - 1].kind == "mfma" and A.ins[k].kind == "valu":
                    best = k
                    break
                ad += sz[k]
                k += 1
            pos.append(best)
            addr += 4
            page += 1
        addr += sz[i]
        i += 1
    n = len(pos)
    assert n >= 4
    for p in reversed(range(n)):
        tgt = f"L_page{p + 4}" if p + 4 < n else "L_warmed"
        A.ins[pos[p]:pos[p]] = [Ins(f"L_page{p}:"), Ins(f"s_cbranch_execz {tgt} ; warm")]


HEAD = """; adaLN block: multi-query attention + ReGLU feed-forward, one launch of 256 workgroups (one per CU).
; Generated by gen/fused.py (hand-written generator).
; @launch grid=(256,1,1) block=(256,1,1) lds=%d
.amdgcn_target "amdgcn-amd-amdhsa--gfx950"
""" % LDS_BYTES


def main(out, opt=""):
    OPT.clear()
    OPT.update(x for x in opt.split(",") if x)
    STAMPS.clear()
    for k, names in STAMP_SETS.items():
        if k in OPT:
            STAMPS.extend(names)
    for o in OPT:
        if o.startswith("st="):
            STAMPS.extend(o[3:].split(":"))
    A = build()
    text = ("; stamps: " + ",".join(STAMPS) + "\n" if STAMPS else "") + HEAD + kernel_text(NAME + "_kernel", A, verbose="v" in OPT, post=add_pads)
    open(out, "w").write(text)


if __name__ == "__main__":
    main(sys.argv[1], sys.argv[2] if len(sys.argv) > 2 else "")
```
